```python
import torch

def _softmax(x, axis=-1):
    return torch.softmax(x, dim=axis)
def _gelu(x):
    return torch.nn.functional.gelu(x, approximate="tanh")
def _silu(x):
    return torch.nn.functional.silu(x)
def _sigmoid(x):
    return torch.sigmoid(x)
def _layernorm(x, axis=-1, eps=1e-5):
    m = x.mean(dim=axis, keepdim=True)
    v = x.var(dim=axis, keepdim=True, unbiased=False)
    return (x - m) / torch.sqrt(v + eps)
def _scatter_add(tgt, idx, src, axis=0):
    return tgt.clone().index_add_(axis, idx, src)
def _segment_sum(src, seg, n):
    out = torch.zeros((n,) + src.shape[1:], dtype=src.dtype)
    return out.index_add_(0, seg, src)
def _pad(x, pw):
    flat = tuple(v for pair in reversed(pw) for v in pair)
    return torch.nn.functional.pad(x, flat)

kernel_name = 'recurrent_scan__compressed_kv_cla__dense_activation_gelu__decode'

def setup_inputs():

    _w = (lambda a: (lambda t: t.to(torch.bfloat16) if t.is_floating_point() else t)(torch.as_tensor(a)))
    def _A_setup():
        B, H, Sq, Sk, D, M = 1, 32, 1, 8192, 192, 640
        Dc = 4 * D
        return {
            "x": _w((lambda *s: torch.randn(*s, dtype=torch.bfloat16) * 0.1)(B, Sq, M)),
            "c_kv": _w((lambda *s: torch.randn(*s, dtype=torch.bfloat16) * 3.2)(B, Sk, Dc)),
            "w_q": _w((lambda *s: torch.randn(*s, dtype=torch.bfloat16) * 0.8)(M, H, D) * (M ** -0.5)),
            "w_uk": _w((lambda *s: torch.randn(*s, dtype=torch.bfloat16) * 0.8)(Dc, H, D) * (Dc ** -0.5)),
            "w_uv": _w((lambda *s: torch.randn(*s, dtype=torch.bfloat16) * 3.2)(Dc, H, D) * (Dc ** -0.5)),
            "w_o": _w((lambda *s: torch.randn(*s, dtype=torch.bfloat16) * 3.2)(H, D, M) * ((H * D) ** -0.5)),
        }
    _A_in = _A_setup()

    def _B_setup():
        B, S, D, F = 1, 1, 640, 1536
        return {
            "x": _w((lambda *s: torch.randn(*s, dtype=torch.bfloat16) * 0.1)(B, S, D)),
            "w1": _w((lambda *s: torch.randn(*s, dtype=torch.bfloat16) * 3.2)(D, F) * (D ** -0.5)),
            "b1": _w((lambda *s: torch.randn(*s, dtype=torch.bfloat16) * 3.2)(F) * 0.01),
            "w2": _w((lambda *s: torch.randn(*s, dtype=torch.bfloat16) * 3.2)(F, D) * (F ** -0.5)),
            "b2": _w((lambda *s: torch.randn(*s, dtype=torch.bfloat16) * 3.2)(D) * 0.01),
        }
    _B_in = _B_setup()

    return {
        "A_x": _A_in["x"],
        "A_c_kv": _A_in["c_kv"],
        "A_w_q": _A_in["w_q"],
        "A_w_uk": _A_in["w_uk"],
        "A_w_uv": _A_in["w_uv"],
        "A_w_o": _A_in["w_o"],
        "B_x": _B_in["x"],
        "B_w1": _B_in["w1"],
        "B_b1": _B_in["b1"],
        "B_w2": _B_in["w2"],
        "B_b2": _B_in["b2"],
    }

def reference(A_x, A_c_kv, A_w_q, A_w_uk, A_w_uv, A_w_o, B_x, B_w1, B_b1, B_w2, B_b2):
    def _A_ref(x, c_kv, w_q, w_uk, w_uv, w_o):
        B, Sq, M = x.shape[0], x.shape[1], x.shape[2]
        Sk = c_kv.shape[1]
        H, D = w_q.shape[1], w_q.shape[2]
        q = torch.einsum("bqm,mhd->bhqd", x, w_q)
        k = torch.einsum("bkc,chd->bhkd", c_kv, w_uk)
        v = torch.einsum("bkc,chd->bhkd", c_kv, w_uv)
        scores = torch.einsum("bhqd,bhkd->bhqk", q, k) * (D ** -0.5)
        off = Sk - Sq
        qi = torch.arange(Sq)[:, None]
        kj = torch.arange(Sk)[None, :]
        cmask = kj <= (qi + off)
        scores = torch.where(cmask[None, None], scores, -1e9)
        p = _softmax(scores, axis=-1)
        ctx = torch.einsum("bhqk,bhkd->bhqd", p, v)
        return torch.einsum("bhqd,hdm->bqm", ctx, w_o)

    def _B_ref(x, w1, b1, w2, b2):
        h = torch.einsum("bsd,df->bsf", x, w1) + b1
        h = _gelu(h)
        return torch.einsum("bsf,fd->bsd", h, w2) + b2

    x = A_x
    xn = _layernorm(x, axis=-1)
    s = _A_ref(xn, A_c_kv, A_w_q, A_w_uk, A_w_uv, A_w_o)
    g = _silu(_B_ref(xn, B_w1, B_b1, B_w2, B_b2))
    return x + s * g
```

```python
import sys
K = []
PTR = dict(x=0, ckv=8, wq=16, wuk=24, wuv=32, wo=40, w1=56, b1=64, w2=72, b2=80, out=88, dbg=96, ws=104)
SZ = dict(x=1280, ckv=12582912, wq=7864320, wuk=9437184, wuv=9437184, wo=7864320, w1=1966080, b1=3072, w2=1966080, b2=1280, out=1280, dbg=256, ws=0x10000000)
WS = dict(xn=0, q=0x1000, h=0x8000, qa=0x10000, sc=0x100000, cc=0x300000, ctx=0x340000, s=0x350000, y=0x360000, probe=0x370000)
def srd(a, reg, name):
    a(f"s_load_dwordx2 s[{reg}:{reg+1}], s[0:1], {PTR[name]}")
    a(f"s_mov_b32 s{reg+2}, {SZ[name]}"); a(f"s_mov_b32 s{reg+3}, 0x20000")
def rbf(a, v, t):
    a(f"v_cvt_pk_bf16_f32 v{t}, v{v}, v{v}"); a(f"v_lshlrev_b32 v{v}, 16, v{t}")
def wave_reduce(a, v, t, op):
    for off in (1, 2, 4, 8, 16, 32):
        a(f"v_xor_b32 v{t}, {off}, v0"); a(f"v_and_b32 v{t}, 63, v{t}"); a(f"v_lshlrev_b32 v{t}, 2, v{t}")
        a(f"ds_bpermute_b32 v{t}, v{t}, v{v}"); a("s_waitcnt lgkmcnt(0)"); a(f"{op} v{v}, v{v}, v{t}")
def k_ln():
    L = []; a = L.append
    a("s_cmp_ge_u32 s2, 1"); a("s_cbranch_scc1 L_ln_end")
    srd(a, 4, "x"); srd(a, 8, "ws"); a("s_waitcnt lgkmcnt(0)")
    a("v_lshlrev_b32 v1, 1, v0")
    for j in range(10): a(f"buffer_load_ushort v{10+j}, v1, s[4:7], 0 offen offset:{j*128}")
    a("s_waitcnt vmcnt(0)")
    a("v_mov_b32 v2, 0")
    for j in range(10): a(f"v_lshlrev_b32 v{10+j}, 16, v{10+j}"); a(f"v_add_f32 v2, v2, v{10+j}")
    wave_reduce(a, 2, 3, "v_add_f32")
    a("v_mul_f32 v2, 0x3accccd, v2".replace("0x3accccd", "0x3acccccd"))
    a("v_mov_b32 v4, 0")
    for j in range(10): a(f"v_sub_f32 v5, v{10+j}, v2"); a("v_fmac_f32 v4, v5, v5")
    wave_reduce(a, 4, 3, "v_add_f32")
    a("v_mul_f32 v4, 0x3acccccd, v4")
    rbf(a, 2, 3); rbf(a, 4, 3)
    a("v_add_f32 v4, 0x3727c5ac, v4"); rbf(a, 4, 3)
    a("v_sqrt_f32 v4, v4"); a("s_nop 0"); rbf(a, 4, 3)
    a("v_rcp_f32 v6, v4"); a("s_nop 0")
    a("v_lshlrev_b32 v1, 2, v0")
    for j in range(10):
        a(f"v_sub_f32 v5, v{10+j}, v2"); rbf(a, 5, 3)
        a("v_mul_f32 v7, v5, v6"); a("v_fma_f32 v8, -v7, v4, v5"); a("v_fma_f32 v7, v8, v6, v7"); rbf(a, 7, 3)
        a(f"buffer_store_dword v7, v1, s[8:11], 0 offen offset:{WS['xn']+j*256}")
    a("s_waitcnt vmcnt(0)"); a("L_ln_end:")
    K.append(("ln_kernel", 1, 64, L))
def k_N(name, W, nb, ncol, Kd, stride, a_off, a_bstride, w_bstride, o_off, o_bstride, rnd=1, U=8):
    L = []; a = L.append
    nt = ncol // 128
    a(f"s_cmp_ge_u32 s2, {nb*nt}"); a(f"s_cbranch_scc1 L_{name}_end")
    srd(a, 4, W); srd(a, 8, "ws")
    a(f"s_mov_b32 s12, {(1<<32)//nt + 1 if nt > 1 else 0}")
    if nt > 1: a("s_mul_hi_u32 s13, s2, s12")
    else: a("s_mov_b32 s13, s2")
    a(f"s_mul_i32 s14, s13, {nt}"); a("s_sub_u32 s14, s2, s14")
    a(f"s_mul_i32 s15, s13, {w_bstride}"); a("s_lshl_b32 s16, s14, 8"); a("s_add_u32 s15, s15, s16")
    a("v_lshlrev_b32 v1, 2, v0")
    a("s_waitcnt lgkmcnt(0)")
    a(f"s_mul_i32 s16, s13, {a_bstride}"); a(f"s_add_u32 s16, s16, {a_off}")
    a("s_add_u32 s18, s8, s16"); a("s_addc_u32 s19, s9, 0")
    a("v_mov_b32 v2, 0"); a("v_mov_b32 v3, 0"); a("s_mov_b32 s17, 0")
    a(f"L_{name}_loop:")
    a(f"s_load_dwordx8 s[24:31], s[18:19], s17")
    for u in range(U):
        a(f"buffer_load_dword v{10+u}, v1, s[4:7], s15 offen"); a(f"s_add_u32 s15, s15, {stride}")
    a("s_waitcnt vmcnt(0) lgkmcnt(0)")
    for u in range(U):
        a(f"v_lshlrev_b32 v4, 16, v{10+u}"); a(f"v_and_b32 v5, 0xffff0000, v{10+u}")
        a(f"v_fmac_f32 v2, s{24+u}, v4"); a(f"v_fmac_f32 v3, s{24+u}, v5")
    a(f"s_add_u32 s17, s17, {4*U}"); a(f"s_cmp_lt_u32 s17, {4*Kd}"); a(f"s_cbranch_scc1 L_{name}_loop")
    if rnd: rbf(a, 2, 4); rbf(a, 3, 4)
    a(f"s_mul_i32 s16, s13, {o_bstride}"); a("s_lshl_b32 s14, s14, 9"); a("s_add_u32 s16, s16, s14"); a(f"s_add_u32 s16, s16, {o_off}")
    a("v_lshlrev_b32 v1, 3, v0")
    a("buffer_store_dwordx2 v[2:3], v1, s[8:11], s16 offen")
    a("s_waitcnt vmcnt(0)"); a(f"L_{name}_end:")
    K.append((name + "_kernel", nb * nt, 64, L))
def k_T(name, W, nb, nrow, Kd, rstride, a_off, a_bstride, w_bstride, o_off, o_bstride, scale=None):
    L = []; a = L.append
    nt = nrow // 64
    a(f"s_cmp_ge_u32 s2, {nb*nt}"); a(f"s_cbranch_scc1 L_{name}_end")
    srd(a, 4, W); srd(a, 8, "ws")
    a(f"s_mov_b32 s12, {(1<<32)//nt + 1}"); a("s_mul_hi_u32 s13, s2, s12")
    a(f"s_mul_i32 s14, s13, {nt}"); a("s_sub_u32 s14, s2, s14")
    a(f"s_mul_i32 s15, s13, {w_bstride}"); a(f"s_mul_i32 s16, s14, {64*rstride}"); a("s_add_u32 s15, s15, s16")
    a(f"s_mov_b32 s20, {rstride}"); a("v_mul_lo_u32 v1, v0, s20")
    a("s_waitcnt lgkmcnt(0)")
    a(f"s_mul_i32 s16, s13, {a_bstride}"); a(f"s_add_u32 s16, s16, {a_off}")
    a("s_add_u32 s18, s8, s16"); a("s_addc_u32 s19, s9, 0")
    a("v_mov_b32 v2, 0"); a("s_mov_b32 s17, 0")
    a(f"L_{name}_loop:")
    a(f"s_load_dwordx16 s[24:39], s[18:19], s17")
    a(f"buffer_load_dwordx4 v[12:15], v1, s[4:7], s15 offen"); a(f"buffer_load_dwordx4 v[16:19], v1, s[4:7], s15 offen offset:16")
    a("s_add_u32 s15, s15, 32")
    a("s_waitcnt vmcnt(0) lgkmcnt(0)")
    for u in range(8):
        a(f"v_lshlrev_b32 v4, 16, v{12+u}"); a(f"v_and_b32 v5, 0xffff0000, v{12+u}")
        a(f"v_fmac_f32 v2, s{24+2*u}, v4"); a(f"v_fmac_f32 v2, s{25+2*u}, v5")
    a(f"s_add_u32 s17, s17, 64"); a(f"s_cmp_lt_u32 s17, {4*Kd}"); a(f"s_cbranch_scc1 L_{name}_loop")
    if scale: a(f"v_mul_f32 v2, {scale}, v2")
    a(f"s_mul_i32 s16, s13, {o_bstride}"); a("s_lshl_b32 s14, s14, 8"); a("s_add_u32 s16, s16, s14"); a(f"s_add_u32 s16, s16, {o_off}")
    a("v_lshlrev_b32 v1, 2, v0")
    a("buffer_store_dword v2, v1, s[8:11], s16 offen")
    a("s_waitcnt vmcnt(0)"); a(f"L_{name}_end:")
    K.append((name + "_kernel", nb * nt, 64, L))
def k_softmax():
    L = []; a = L.append
    a("s_cmp_ge_u32 s2, 32"); a("s_cbranch_scc1 L_sm_end")
    srd(a, 8, "ws"); a("s_lshl_b32 s12, s2, 15"); a(f"s_add_u32 s12, s12, {WS['sc']}")
    a("v_lshlrev_b32 v1, 4, v0"); a("s_waitcnt lgkmcnt(0)")
    a("s_mov_b32 s13, s12")
    for j in range(32):
        a(f"buffer_load_dwordx4 v[{8+4*j}:{11+4*j}], v1, s[8:11], s13 offen"); a("s_add_u32 s13, s13, 1024")
    a("s_waitcnt vmcnt(0)")
    a("v_mov_b32 v2, v8")
    for j in range(128): a(f"v_max_f32 v2, v2, v{8+j}")
    wave_reduce(a, 2, 3, "v_max_f32")
    a("v_mov_b32 v4, 0")
    for j in range(128):
        a(f"v_sub_f32 v{8+j}, v{8+j}, v2"); a(f"v_exp_f32 v{8+j}, v{8+j}"); a("s_nop 0"); a(f"v_add_f32 v4, v4, v{8+j}")
    wave_reduce(a, 4, 3, "v_add_f32")
    a("v_rcp_f32 v4, v4"); a("s_nop 0")
    for j in range(128): a(f"v_mul_f32 v{8+j}, v{8+j}, v4")
    for j in range(32):
        a(f"buffer_store_dwordx4 v[{8+4*j}:{11+4*j}], v1, s[8:11], s12 offen"); a("s_add_u32 s12, s12, 1024")
    a("s_waitcnt vmcnt(0)"); a("L_sm_end:")
    K.append(("sm_kernel", 32, 64, L))
def k_gelu():
    L = []; a = L.append
    a("s_cmp_ge_u32 s2, 24"); a("s_cbranch_scc1 L_ge_end")
    srd(a, 4, "b1"); srd(a, 8, "ws"); a("s_lshl_b32 s12, s2, 6"); a("v_add_u32 v1, s12, v0"); a("v_lshlrev_b32 v2, 1, v1"); a("v_lshlrev_b32 v1, 2, v1")
    a(f"s_mov_b32 s13, {WS['h']}")
    a("s_waitcnt lgkmcnt(0)")
    a("buffer_load_ushort v3, v2, s[4:7], 0 offen"); a("buffer_load_dword v4, v1, s[8:11], s13 offen"); a("s_waitcnt vmcnt(0)")
    a("v_lshlrev_b32 v3, 16, v3"); a("v_add_f32 v4, v4, v3"); rbf(a, 4, 5)
    a("v_mul_f32 v5, v4, v4"); a("v_mul_f32 v5, 0x3d372713, v5"); a("v_add_f32 v5, 1.0, v5"); a("v_mul_f32 v5, v5, v4")
    a("v_mul_f32 v5, 0xc0135761, v5")
    a("v_exp_f32 v5, v5"); a("s_nop 0"); a("v_add_f32 v5, 1.0, v5"); a("v_rcp_f32 v5, v5"); a("s_nop 0"); a("v_mul_f32 v4, v4, v5"); rbf(a, 4, 5)
    a("buffer_store_dword v4, v1, s[8:11], s13 offen"); a("s_waitcnt vmcnt(0)"); a("L_ge_end:")
    K.append(("ge_kernel", 24, 64, L))
def k_final(amp=0):
    L = []; a = L.append
    a("s_cmp_ge_u32 s2, 10"); a("s_cbranch_scc1 L_fi_end")
    srd(a, 4, "b2"); srd(a, 8, "ws"); srd(a, 16, "x"); srd(a, 20, "out")
    a("s_lshl_b32 s12, s2, 6"); a("v_add_u32 v1, s12, v0"); a("v_lshlrev_b32 v2, 1, v1"); a("v_lshlrev_b32 v1, 2, v1")
    a(f"s_mov_b32 s13, {WS['y']}"); a(f"s_mov_b32 s14, {WS['s']}")
    a("s_waitcnt lgkmcnt(0)")
    a("buffer_load_ushort v3, v2, s[4:7], 0 offen"); a("buffer_load_dword v4, v1, s[8:11], s13 offen")
    a("buffer_load_ushort v6, v2, s[16:19], 0 offen"); a("buffer_load_dword v7, v1, s[8:11], s14 offen"); a("s_waitcnt vmcnt(0)")
    a("v_lshlrev_b32 v3, 16, v3"); a("v_add_f32 v4, v4, v3"); rbf(a, 4, 5)
    a("v_mul_f32 v5, 0xbfb8aa3b, v4"); a("v_exp_f32 v5, v5"); a("s_nop 0"); a("v_add_f32 v5, 1.0, v5"); a("v_rcp_f32 v5, v5"); a("s_nop 0"); a("v_mul_f32 v4, v4, v5"); rbf(a, 4, 5)
    a("v_mul_f32 v4, v4, v7"); rbf(a, 4, 5)
    a("v_lshlrev_b32 v6, 16, v6"); a("v_add_f32 v4, v4, v6"); a("v_cvt_pk_bf16_f32 v4, v4, v4")
    a("buffer_store_short v4, v2, s[20:23], 0 offen"); a("s_waitcnt vmcnt(0)"); a("L_fi_end:")
    K.append(("fi_kernel", 10, 64, L))
def build(pre=[], post=[]):
    K.clear()
    for p in pre: K.append(p)
    k_ln()
    k_N("q", "wq", 1, 6144, 640, 12288, WS["xn"], 0, 0, WS["q"], 0)
    k_N("h", "w1", 1, 1536, 640, 3072, WS["xn"], 0, 0, WS["h"], 0)
    k_gelu()
    k_N("y", "w2", 1, 640, 1536, 1280, WS["h"], 0, 0, WS["y"], 0)
    k_T("qa", "wuk", 32, 768, 192, 12288, WS["q"], 768, 384, WS["qa"], 3072)
    k_T("sc", "ckv", 32, 8192, 768, 1536, WS["qa"], 3072, 0, WS["sc"], 32768, scale="0x3dd53b94")
    k_softmax()
    k_N("cc", "ckv", 32, 768, 8192, 1536, WS["sc"], 32768, 0, WS["cc"], 3072, rnd=0)
    k_N("cxa", "wuv", 32, 128, 768, 12288, WS["cc"], 3072, 384, WS["ctx"], 768)
    k_N("cxb", "wuv", 32, 128, 768, 12288, WS["cc"], 3072, 384, WS["ctx"] + 256, 768)
    K[-1] = (K[-1][0], K[-1][1], K[-1][2], [l if not l.startswith("s_lshl_b32 s16, s14, 8") else "s_mov_b32 s16, 128" for l in K[-1][3]])
    k_N("s", "wo", 1, 640, 6144, 1280, WS["ctx"], 0, 0, WS["s"], 0)
    k_final()
    for p in post: K.append(p)
    out = []
    for k in K:
        lds = k[4] if len(k) > 4 else 0
        out.append(f"; @launch kernel={k[0]} grid=({k[1]},1,1) block=({k[2]},1,1) lds={lds}")
    out.append('.amdgcn_target "amdgcn-amd-amdhsa--gfx950"'); out.append(".text")
    seen = set()
    for k in K:
        if k[0] in seen: continue
        seen.add(k[0])
        out += [f".globl {k[0]}", ".p2align 8", f".type {k[0]},@function", f"{k[0]}:"] + k[3] + ["s_endpgm"]
    out.append('.section .rodata,"a"')
    for n in [k[0] for k in K]:
        if n not in seen: continue
        seen.discard(n)
        out += [".p2align 6", f".amdhsa_kernel {n}", "  .amdhsa_next_free_vgpr 256", "  .amdhsa_next_free_sgpr 96", "  .amdhsa_accum_offset 256",
                "  .amdhsa_group_segment_fixed_size 0", "  .amdhsa_kernarg_size 112", "  .amdhsa_user_sgpr_count 2", "  .amdhsa_user_sgpr_kernarg_segment_ptr 1",
                "  .amdhsa_system_sgpr_workgroup_id_x 1", "  .amdhsa_float_denorm_mode_32 3", ".end_amdhsa_kernel"]
    return "\n".join(out) + "\n"
if __name__ == "__main__":
    open("base.s", "w").write(build())
```

```python
import sys
HDR = """; @launch grid=(256,1,1) block=(%d,1,1) lds=%d
.amdgcn_target "amdgcn-amd-amdhsa--gfx950"
.text
.globl KN
.p2align 8
.type KN,@function
KN:
"""
FTR = """
s_endpgm
.section .rodata,"a"
.p2align 6
.amdhsa_kernel KN
  .amdhsa_next_free_vgpr %d
  .amdhsa_next_free_sgpr 96
  .amdhsa_accum_offset %d
  .amdhsa_group_segment_fixed_size 0
  .amdhsa_kernarg_size 112
  .amdhsa_user_sgpr_count 2
  .amdhsa_user_sgpr_kernarg_segment_ptr 1
  .amdhsa_system_sgpr_workgroup_id_x 1
.end_amdhsa_kernel
"""
KN = "recurrent_scan__compressed_kv_cla__dense_activation_gelu__decode_kernel"
def gen(nwaves, flags="", order="contig"):
    arrays = [(16, 7864320), (24, 9437184), (8, 12582912), (32, 9437184), (40, 7864320), (56, 1966080), (72, 1966080)]
    T = nwaves * 64
    L = []
    a = L.append
    a("s_memrealtime s[40:41]")
    a("s_cmp_ge_u32 s2, 256"); a("s_cbranch_scc1 L_end")
    for i, (off, sz) in enumerate(arrays):
        a(f"s_load_dwordx2 s[{4+4*i}:{5+4*i}], s[0:1], {off}")
    a("s_load_dwordx2 s[32:33], s[0:1], 104")
    a("v_lshlrev_b32 v1, 4, v0")
    a("s_waitcnt lgkmcnt(0)")
    for i, (off, sz) in enumerate(arrays):
        a(f"s_mov_b32 s{6+4*i}, {sz}"); a(f"s_mov_b32 s{7+4*i}, 0x20000")
    a("s_mov_b32 s34, 0x10000000"); a("s_mov_b32 s35, 0x20000")
    v = 4
    marks = []
    n = 0
    for i, (off, sz) in enumerate(arrays):
        per = sz // 256
        a(f"s_mul_i32 s36, s2, {per}")
        nl = (per + T * 16 - 1) // (T * 16)
        for j in range(nl):
            rem = per - j * T * 16
            if rem < T * 16:
                a(f"v_cmp_gt_u32 vcc, {rem}, v1" if rem > 64 else f"v_cmp_gt_u32 vcc, {rem}, v1")
                a("s_and_saveexec_b64 s[38:39], vcc")
                a(f"s_cbranch_execz L_sk{i}")
            a(f"buffer_load_dwordx4 v[{v}:{v+3}], v1, s[{4+4*i}:{7+4*i}], s36 offen {flags}")
            if rem < T * 16:
                a(f"L_sk{i}:")
                a("s_mov_b64 exec, s[38:39]")
            a(f"s_add_u32 s36, s36, {T*16}")
            v += 4; n += 1
        marks.append(n)
    a("s_memrealtime s[42:43]")
    for i, m in enumerate(marks):
        a(f"s_waitcnt vmcnt({min(63, n - m)})")
        a(f"s_memrealtime s[{44+2*i}:{45+2*i}]")
    a("s_waitcnt lgkmcnt(0)")
    a("v_lshrrev_b32 v2, 6, v0"); a("s_nop 1"); a("v_readfirstlane_b32 s36, v2")
    a(f"s_mul_i32 s37, s2, {nwaves}"); a("s_add_u32 s36, s36, s37"); a("s_lshl_b32 s36, s36, 6")
    a("v_mov_b32 v3, 0")
    for i in range(9):
        a(f"v_mov_b32 v2, s{40+2*i}")
        a(f"buffer_store_dword v2, v3, s[32:35], s36 offen offset:{4*i}")
    a("s_getreg_b32 s38, hwreg(HW_REG_XCC_ID)")
    a("v_mov_b32 v2, s38")
    a(f"buffer_store_dword v2, v3, s[32:35], s36 offen offset:{4*9}")
    a("s_waitcnt vmcnt(0)")
    a("L_end:")
    nv = (v + 7) // 8 * 8
    assert nv <= 256, nv
    return (HDR % (T, 81920 + 1024) + "\n".join(L) + FTR % (nv, nv)).replace("KN", KN)
if __name__ == "__main__":
    for nw in (4, 8, 16):
        for fl in ("", "nt"):
            open(f"mb_stream_{nw}{fl}.s", "w").write(gen(nw, fl))
```

```python
import gen_base as gb
import mb_stream
PB = 0x400000
def probe_stream(flags, nwaves=4):
    src = mb_stream.gen(nwaves, flags)
    body = src.split(mb_stream.KN + ":\n")[1].split("\ns_endpgm")[0].split("\n")
    body = [l.replace("L_end", "L_pr_end").replace("L_sk", "L_pr_sk") for l in body]
    i = body.index("s_lshl_b32 s36, s36, 6")
    body.insert(i + 1, f"s_add_u32 s36, s36, {PB}")
    return ("probe_kernel", 256, nwaves * 64, body, 82944)
def probe_icache():
    L = []; a = L.append
    a("s_memrealtime s[40:41]")
    a("s_cmp_ge_u32 s2, 256"); a("s_cbranch_scc1 L_pr_end")
    a("s_load_dwordx2 s[32:33], s[0:1], 104")
    a("s_mov_b32 s34, 0x10000000"); a("s_mov_b32 s35, 0x20000")
    a("s_waitcnt lgkmcnt(0)")
    a(".rept 2048"); a("v_add3_u32 v8, v1, v2, v3"); a(".endr")
    a("s_memrealtime s[56:57]"); a("s_waitcnt lgkmcnt(0)")
    a("v_lshrrev_b32 v2, 6, v0"); a("s_nop 1"); a("v_readfirstlane_b32 s36, v2")
    a(f"s_mul_i32 s37, s2, 4"); a("s_add_u32 s36, s36, s37"); a("s_lshl_b32 s36, s36, 6"); a(f"s_add_u32 s36, s36, {PB}")
    a("v_mov_b32 v3, 0")
    for i in (0, 8):
        a(f"v_mov_b32 v2, s{40+2*i}")
        a(f"buffer_store_dword v2, v3, s[32:35], s36 offen offset:{4*i}")
    a("s_waitcnt vmcnt(0)")
    a("L_pr_end:")
    return ("probe_kernel", 256, 256, L, 82944)
def amp(kind, AMP=200):
    L = []; a = L.append
    a("s_cmp_ge_u32 s2, 1"); a("s_cbranch_scc1 L_amp_end")
    gb.srd(a, 8, "ws"); gb.srd(a, 12, "dbg"); a("s_waitcnt lgkmcnt(0)")
    a("v_lshlrev_b32 v1, 6, v0"); a(f"s_mov_b32 s16, {PB}")
    for j in range(16):
        a(f"buffer_load_dword v{10+j}, v1, s[8:11], s16 offen"); a(f"buffer_load_dword v{30+j}, v1, s[8:11], s16 offen offset:32"); a("s_add_u32 s16, s16, 4096")
    a("s_waitcnt vmcnt(0)")
    a("v_mov_b32 v2, -1"); a("v_mov_b32 v4, 0")
    for j in range(16):
        a(f"v_min_u32 v2, v2, v{10+j}")
        if kind == "total": a(f"v_max_u32 v4, v4, v{30+j}")
        elif kind == "skew": a(f"v_max_u32 v4, v4, v{10+j}")
        elif kind == "dur": a(f"v_sub_u32 v5, v{30+j}, v{10+j}"); a(f"v_max_u32 v4, v4, v5")
    gb.wave_reduce(a, 2, 3, "v_min_u32"); gb.wave_reduce(a, 4, 3, "v_max_u32")
    if kind != "dur": a("v_sub_u32 v4, v4, v2")
    a("v_min_u32 v4, 5000, v4")
    a("v_mov_b32 v5, 0"); a("buffer_store_dword v4, v5, s[12:15], 0 offen")
    a("s_nop 1"); a("v_readfirstlane_b32 s20, v4"); a(f"s_mul_i32 s20, s20, {AMP}")
    a("s_memrealtime s[22:23]"); a("s_waitcnt lgkmcnt(0)")
    a("L_amp_spin:"); a("s_memrealtime s[24:25]"); a("s_waitcnt lgkmcnt(0)"); a("s_sub_u32 s24, s24, s22"); a("s_cmp_lt_u32 s24, s20"); a("s_cbranch_scc1 L_amp_spin")
    a("s_waitcnt vmcnt(0)"); a("L_amp_end:")
    return ("amp_kernel", 1, 64, L)
if __name__ == "__main__":
    open("probe_nt_total.s", "w").write(gb.build([probe_stream("nt")], [amp("total")]))
    open("probe_pl_total.s", "w").write(gb.build([probe_stream("")], [amp("total")]))
    open("probe_nt_skew.s", "w").write(gb.build([probe_stream("nt")], [amp("skew")]))
    open("probe_ic_dur.s", "w").write(gb.build([probe_icache()], [amp("dur")]))
    open("probe_nt_amp0.s", "w").write(gb.build([probe_stream("nt")], [amp("total", 0)]))
    open("probe_pl_amp0.s", "w").write(gb.build([probe_stream("")], [amp("total", 0)]))
```

```python
import re

REG = re.compile(r"^(-|abs\(|\|)?([vas])(\d+|\[(\d+):(\d+)\])\)?\|?$")


def regs_of(op):
    op = op.strip()
    if op in ("vcc", "exec", "m0"):
        return [(op, 0)]
    if op in ("vcc_lo", "vcc_hi"):
        return [("vcc", 0)]
    if op in ("exec_lo", "exec_hi"):
        return [("exec", 0)]
    m = REG.match(op)
    if not m:
        return []
    k = m.group(2)
    if m.group(4) is not None:
        return [(k, i) for i in range(int(m.group(4)), int(m.group(5)) + 1)]
    return [(k, int(m.group(3)))]


TRANS = ("v_exp_f32", "v_log_f32", "v_rcp_f32", "v_rsq_f32", "v_sqrt_f32", "v_sin_f32", "v_cos_f32")


class Ins:
    def __init__(self, text):
        self.text = text
        t = text.split(";")[0].strip()
        self.label = None
        self.kind = "other"
        self.dst = []
        self.src = []
        self.ws = 1
        self.target = None
        self.uncond = False
        if not t or t.startswith("."):
            self.kind = "dir"
            self.ws = 0
            return
        if t.endswith(":"):
            self.label = t[:-1]
            self.kind = "label"
            self.ws = 0
            return
        parts = t.split(None, 1)
        mn = parts[0]
        self.mn = mn
        rest = parts[1] if len(parts) > 1 else ""
        ops = []
        depth = 0
        cur = ""
        for ch in rest:
            if ch in "[(":
                depth += 1
            if ch in "])":
                depth -= 1
            if ch == "," and depth == 0:
                ops.append(cur)
                cur = ""
            else:
                cur += ch
        if cur.strip():
            ops.append(cur)
        mods = ""
        if ops:
            last = ops[-1].strip().split(None, 1)
            ops[-1] = last[0]
            mods = last[1] if len(last) > 1 else ""
        ops = [o.strip() for o in ops]
        self.ops = ops
        self.mods = mods
        R = [regs_of(o) for o in ops]
        flat = lambda x: [r for l in x for r in l]
        if mn.startswith("v_mfma"):
            self.kind = "mfma"
            self.dst = R[0]
            self.A, self.B, self.C = R[1], R[2], R[3]
            self.src = flat(R[1:])
            self.passes = 8 if "32x32x16" in mn else 4
        elif mn.startswith("v_"):
            self.kind = "valu"
            self.dst = R[0]
            self.src = flat(R[1:])
            if "permlane" in mn and "swap" in mn:
                self.dst = R[0] + R[1]
                self.src = R[0] + R[1]
            if mn.startswith(("v_fmac", "v_dot2c", "v_writelane")):
                self.src = self.src + R[0]
            if mn.startswith(("v_add_co", "v_sub_co", "v_addc_co")):
                self.dst = R[0] + R[1]
                self.src = flat(R[2:])
            self.dpp = any(k in mods for k in ("quad_perm", "row_", "wave_"))
            if self.dpp:
                self.src = self.src + R[0]
            self.trans = mn.startswith(TRANS)
            self.perml = "permlane" in mn
            self.rdlane = mn.startswith(("v_readlane", "v_readfirstlane"))
        elif mn.startswith(("buffer_", "global_")):
            self.kind = "vmem"
            self.lds = " lds" in (" " + mods)
            if "load" in mn and not self.lds:
                self.dst = R[0]
                self.src = flat(R[1:])
                if "d16" in mn:
                    self.src = self.src + R[0]
            else:
                self.src = flat(R)
            self.wide_store = "store" in mn and ("x3" in mn or "x4" in mn)
            if self.wide_store:
                self.data = R[0] if mn.startswith("buffer_") else R[1]
        elif mn.startswith("ds_"):
            self.kind = "ds"
            if mn.startswith(("ds_read", "ds_bpermute", "ds_permute", "ds_swizzle")):
                self.dst = R[0]
                self.src = flat(R[1:])
            else:
                self.src = flat(R)
        elif mn.startswith("s_"):
            self.kind = "salu"
            if mn == "s_nop":
                self.ws = int(ops[0], 0) + 1
            elif mn.startswith(("s_cbranch", "s_branch")):
                self.target = ops[0]
                self.uncond = mn == "s_branch"
            elif mn == "s_endpgm":
                self.uncond = True
            elif mn.startswith(("s_cmp", "s_bitcmp", "s_waitcnt", "s_barrier", "s_sleep", "s_setprio")):
                self.src = flat(R)
            else:
                self.dst = R[0] if R else []
                self.src = flat(R[1:])


BIG = 99


class State:
    def __init__(self):
        self.ev = {}

    def copy(self):
        s = State()
        s.ev = dict(self.ev)
        return s

    def merge(self, o):
        ch = False
        for k, v in o.ev.items():
            if v < self.ev.get(k, BIG):
                self.ev[k] = v
                ch = True
        return ch

    def tick(self, n):
        if n:
            self.ev = {k: v + n for k, v in self.ev.items() if v + n < 24}

    def age(self, e, r):
        return self.ev.get((e, r), BIG)


def need(ins, st):
    n = 0

    def req(e, regs, w):
        nonlocal n
        for r in regs:
            a = st.age(e, r)
            if a < w:
                n = max(n, w - a)

    vec = lambda regs: [r for r in regs if r[0] in "va" and r[0] != "vcc"]
    sca = lambda regs: [r for r in regs if r[0] in ("s", "vcc")]
    k = ins.kind
    if k == "mfma":
        req("valu_w", vec(ins.src), 2)
        for p, ab, c in ((4, 8, 6), (8, 12, 10)):
            req(("mfma_w", p), ins.A + ins.B, ab)
            for r in set(ins.C + ins.dst):
                a = st.age(("mfma_w", p), r)
                if a < c:
                    same = st.ev.get((("mfma_tuple", p, ins.dst[0], len(ins.dst)), r), BIG) == a and ins.passes == p and (ins.C == ins.dst)
                    if not same:
                        n = max(n, c - a)
    if k in ("valu", "vmem", "ds"):
        for p, w in ((4, 8), (8, 12)):
            req(("mfma_w", p), vec(ins.src) + vec(ins.dst), w)
    if k == "valu":
        for p, w in ((4, 3), (8, 7)):
            req(("mfma_c", p), vec(ins.dst), w)
        if ins.dpp or ins.perml:
            req("valu_w", vec(ins.src), 2)
        if ins.rdlane:
            req("valu_w", vec(ins.src), 1)
            req("valu_sw", sca(ins.src), 4)
        if ins.mn.startswith("v_writelane"):
            req("valu_sw", sca(ins.src), 4)
        req("valu_sw", sca(ins.src), 2)
        if not ins.trans:
            req("trans_w", vec(ins.src), 1)
        else:
            req("trans_w", vec(ins.src), 1)
        req("wstore", vec(ins.dst), 2)
    if k in ("vmem", "ds"):
        req("wstore", vec(ins.dst), 1)
        req("trans_w", vec(ins.src), 1)
    if k == "vmem":
        req("valu_sw", sca(ins.src), 5)
        if ins.lds:
            req("salu_w", [("m0", 0)], 1)
    if k == "salu":
        req("valu_sw", [r for r in sca(ins.src) if r[0] == "s"], 1)
    return n


def apply(ins, st):
    st.tick(ins.ws)
    k = ins.kind
    if k == "mfma":
        for r in ins.dst:
            st.ev[(("mfma_w", ins.passes), r)] = 0
            st.ev[(("mfma_tuple", ins.passes, ins.dst[0], len(ins.dst)), r)] = 0
        for r in ins.C:
            st.ev[(("mfma_c", ins.passes), r)] = 0
    elif k == "valu":
        for r in ins.dst:
            if r[0] in ("s", "vcc"):
                st.ev[("valu_sw", r)] = 0
            else:
                st.ev[("valu_w", r)] = 0
                if ins.trans:
                    st.ev[("trans_w", r)] = 0
                else:
                    st.ev.pop(("trans_w", r), None)
    elif k == "vmem":
        if ins.wide_store:
            for r in ins.data:
                st.ev[("wstore", r)] = 0
    elif k == "salu":
        for r in ins.dst:
            if r[0] == "m0":
                st.ev[("salu_w", r)] = 0
            st.ev.pop(("valu_sw", r), None)


def fix_hazards(lines):
    ins = [Ins(l) for l in lines]
    pad = [0] * len(ins)
    at_label = {}
    for _ in range(8):
        changed = False
        st = State()
        live = True
        for i, x in enumerate(ins):
            if x.kind == "label":
                if not live:
                    st = State()
                    live = True
                if x.label in at_label:
                    st.merge(at_label[x.label])
                continue
            if x.kind == "dir":
                continue
            st.tick(pad[i])
            n = need(x, st)
            if n:
                pad[i] += n
                st.tick(n)
                changed = True
            apply(x, st)
            if x.target:
                s = at_label.setdefault(x.target, State())
                if s.merge(st):
                    changed = True
            if x.uncond:
                live = False
        if not changed:
            break
    out = []
    for i, x in enumerate(ins):
        n = pad[i]
        while n > 0:
            k = min(n, 16)
            out.append(f"s_nop {k-1}")
            n -= k
        out.append(x.text)
    return out


class Asm:
    def __init__(self):
        self.L = []
        self.vm = []

    def __call__(self, text):
        for t in text.split("\n"):
            t = t.strip()
            if t:
                self.L.append(t)

    def vmem(self, text, tag=None):
        self(text)
        self.vm.append(tag)

    def vm_n(self, tag):
        idx = [i for i, t in enumerate(self.vm) if t == tag]
        assert idx, tag
        return len(self.vm) - 1 - idx[-1]

    def wait_vm(self, tag, extra=""):
        n = self.vm_n(tag)
        assert n <= 63, n
        self(f"s_waitcnt vmcnt({n}){extra}")
        self.vm = self.vm[len(self.vm) - n:] if n else []

    def wait_vm_n(self, n):
        self(f"s_waitcnt vmcnt({n})")
        if len(self.vm) > n:
            self.vm = self.vm[len(self.vm) - n:] if n else []

    def wait_all(self):
        self("s_waitcnt vmcnt(0)")
        self.vm = []
```

```python
import sys, struct, math
from asmlib import Asm, fix_hazards

KN = "recurrent_scan__compressed_kv_cla__dense_activation_gelu__decode_kernel"


def f32(x):
    return hex(struct.unpack("<I", struct.pack("<f", x))[0])


EPOCH = 0
FLAGS = 0x1000
XQ = 0x10000
CLR0 = 0x40000
XQA = CLR0
XP = XQA + 49152
XM = XP + 524288
XO = XM + 65536
XML = XO + 786432
XS = XML + 4096
XY = XS + 96 * 2560
CLR_END = XY + 24 * 2560
CLR_PER = 57344
assert CLR_END <= CLR0 + 32 * CLR_PER
STAMP = 0x400000
WS_SIZE = 0x10000000

R1 = 24608
R2 = 4 * R1
LDS_SIZE = R2 + 24576 + 1024
SPIN = 200000

DEF = dict(stamps=0, a_first=8, a_x2_wait=3, h_x1_wait=6, f_paced=4, h_prepoll=1, wnt="nt", h_ack=1, p_ahead=9)


def gen(**kw):
    P = dict(DEF)
    P.update(kw)
    a = Asm()
    NT = P["wnt"]
    nstamp = [0]

    def stamp(i):
        if P["stamps"]:
            a(f"s_memrealtime s[{48+2*i}:{49+2*i}]")

    def dump_stamps():
        if not P["stamps"]:
            return
        stamp(13)
        a("s_waitcnt lgkmcnt(0)")
        a("s_mov_b64 exec, -1")
        a("v_mov_b32 v250, 0")
        for i in range(14):
            a(f"v_writelane_b32 v250, s{48+2*i}, {i}")
        a("v_writelane_b32 v250, s29, 14")
        a("s_lshl_b32 s27, s2, 2\ns_add_u32 s27, s27, s3\ns_lshl_b32 s27, s27, 6")
        a(f"s_add_u32 s27, s27, {STAMP}")
        a("v_lshlrev_b32 v251, 2, v1")
        a("s_mov_b64 exec, 0xffff")
        a("buffer_store_dword v250, v251, s[16:19], s27 offen")

    def srd(reg, size):
        a(f"s_mov_b32 s{reg+2}, {size}")
        a(f"s_mov_b32 s{reg+3}, 0x20000")

    def common_ids():
        a("v_lshrrev_b32 v2, 6, v0")
        a("v_and_b32 v1, 63, v0")
        a("v_readfirstlane_b32 s3, v2")
        a("s_and_b32 s24, s2, 7")
        srd(16, WS_SIZE)
        a("s_mov_b32 s29, 0")
        if P["stamps"]:
            for i in range(1, 14):
                a(f"s_mov_b64 s[{48+2*i}:{49+2*i}], 0")

    def load_epoch():
        a(f"s_load_dword s26, s[16:17], {EPOCH}")

    def make_tag():
        a("s_mul_i32 s26, s26, 0x9e3779b1")
        a("s_add_u32 s26, s26, 0x7f4a7c15")

    def rbf(v, t=None):
        a(f"v_cvt_pk_bf16_f32 v{v}, v{v}, v{v}")
        a(f"v_and_b32 v{v}, 0xffff0000, v{v}")

    def wave_sum(v, s):
        for m in ("quad_perm:[1,0,3,2] row_mask:0xf", "quad_perm:[2,3,0,1] row_mask:0xf", "row_half_mirror row_mask:0xf",
                  "row_mirror row_mask:0xf", "row_bcast:15 row_mask:0xa", "row_bcast:31 row_mask:0xc"):
            a(f"v_add_f32 v{v}, v{v}, v{v} {m} bank_mask:0xf")
        a(f"v_readlane_b32 s{s}, v{v}, 63")

    def x_stats_loads(v):
        a("v_lshlrev_b32 v3, 4, v1")
        a("v_lshlrev_b32 v4, 2, v1")
        a.vmem(f"buffer_load_dwordx4 v[{v}:{v+3}], v3, s[4:7], 0 offen", "x")
        a.vmem(f"buffer_load_dword v{v+4}, v4, s[4:7], 0 offen offset:1024", "x")

    def ln_stats(v, t):
        for j in range(5):
            a(f"v_lshlrev_b32 v{t+2*j}, 16, v{v+j}")
            a(f"v_and_b32 v{t+2*j+1}, 0xffff0000, v{v+j}")
        a(f"v_add_f32 v{t+10}, v{t}, v{t+1}")
        for j in range(2, 10):
            a(f"v_add_f32 v{t+10}, v{t+10}, v{t+j}")
        wave_sum(t + 10, 32)
        a(f"v_mov_b32 v{t+10}, {f32(1/640)}")
        a(f"v_mul_f32 v{t+10}, s32, v{t+10}")
        for j in range(10):
            a(f"v_sub_f32 v{t+j}, v{t+j}, v{t+10}")
        a(f"v_mul_f32 v{t+11}, v{t}, v{t}")
        for j in range(1, 10):
            a(f"v_fmac_f32 v{t+11}, v{t+j}, v{t+j}")
        wave_sum(t + 11, 33)
        a(f"v_mov_b32 v{t+11}, {f32(1/640)}")
        a(f"v_mul_f32 v{t+11}, s33, v{t+11}")
        rbf(t + 10)
        rbf(t + 11)
        a(f"v_add_f32 v{t+11}, {f32(1e-5)}, v{t+11}")
        rbf(t + 11)
        a(f"v_sqrt_f32 v{t+11}, v{t+11}")
        a(f"v_readfirstlane_b32 s32, v{t+10}")
        rbf(t + 11)
        a(f"v_rcp_f32 v{t+10}, v{t+11}")
        a(f"v_readfirstlane_b32 s33, v{t+11}")
        a(f"v_readfirstlane_b32 s34, v{t+10}")

    def normalize(v, t):
        a(f"v_subrev_f32 v{v}, s32, v{v}")
        rbf(v)
        a(f"v_mul_f32 v{t}, s34, v{v}")
        a(f"v_fma_f32 v{v}, -v{t}, s33, v{v}")
        a(f"v_fmac_f32 v{t}, s34, v{v}")
        a(f"v_cvt_pk_bf16_f32 v{v}, v{t}, v{t}")

    def sel_masks(m, t):
        a(f"v_and_b32 v{t}, 1, v1")
        a(f"v_lshlrev_b32 v{t}, 4, v{t}")
        a(f"v_mov_b32 v{t+1}, 0xffff")
        a(f"v_lshlrev_b32 v{t}, v{t}, v{t+1}")
        a(f"v_bfe_u32 v{t+1}, v1, 1, 2")
        for d in range(4):
            a(f"v_cmp_eq_u32 vcc, {d}, v{t+1}")
            a(f"v_cndmask_b32 v{m+d}, 0, v{t}, vcc")

    def flag_load(vd, va):
        a(f"v_and_b32 v{va}, 31, v1")
        a(f"v_lshlrev_b32 v{va}, 7, v{va}")
        a(f"s_mov_b32 s27, {FLAGS}")
        a.vmem(f"buffer_load_dword v{vd}, v{va}, s[16:19], s27 offen sc1", "flag")

    slow = []

    def flag_check(vd, va, name):
        a(f"v_cmp_ne_u32 vcc, s26, v{vd}")
        a(f"s_cbranch_vccnz L_{name}_fslow")
        a(f"L_{name}_fok:")
        slow.append(f"""L_{name}_fslow:
            s_mov_b32 s27, {FLAGS}
            s_mov_b32 s28, 0
            L_{name}_floop:
            s_add_u32 s29, s29, 0x10000
            buffer_load_dword v{vd}, v{va}, s[16:19], s27 offen sc1
            s_add_u32 s28, s28, 1
            s_waitcnt vmcnt(0)
            v_cmp_ne_u32 vcc, s26, v{vd}
            s_cbranch_vccz L_{name}_fok
            s_cmp_lt_u32 s28, {SPIN}
            s_cbranch_scc1 L_{name}_floop
            s_branch L_{name}_fok""")

    def phase5(vin, vmask, wreg, vt, lds_s, s_out):
        acc = vt + 16
        for t in range(4):
            a(f"v_cvt_pk_bf16_f32 v{vin+t}, v{vin+t}, v{vin+t}")
        for t in range(4):
            for d in range(4):
                a(f"v_and_b32 v{vt+4*t+d}, v{vin+t}, v{vmask+d}")
            if t == 0:
                continue
            tt = t - 1
            for b in range(5):
                q = wreg + 4 * (tt * 5 + b)
                c = "0" if tt == 0 else f"v[{acc+4*b}:{acc+4*b+3}]"
                a(f"v_mfma_f32_16x16x32_bf16 v[{acc+4*b}:{acc+4*b+3}], v[{vt+4*tt}:{vt+4*tt+3}], a[{q}:{q+3}], {c}")
        for b in range(5):
            q = wreg + 4 * (15 + b)
            a(f"v_mfma_f32_16x16x32_bf16 v[{acc+4*b}:{acc+4*b+3}], v[{vt+12}:{vt+15}], a[{q}:{q+3}], v[{acc+4*b}:{acc+4*b+3}]")
        a("s_mov_b32 exec_hi, 0")
        for b in range(5):
            a(f"ds_write_b128 v{lds_s}, v[{acc+4*b}:{acc+4*b+3}] offset:{b*512}")
        a("s_mov_b32 exec_hi, 0xff")
        a("s_waitcnt lgkmcnt(0)")
        a("s_barrier")
        for w in range(4):
            a(f"ds_read_b128 v[{vt+4*w}:{vt+4*w+3}], v{lds_s+1} offset:{w*2560}")
        a("s_waitcnt lgkmcnt(2)")
        for k in (0, 2):
            a(f"v_pk_add_f32 v[{vt+k}:{vt+k+1}], v[{vt+k}:{vt+k+1}], v[{vt+4+k}:{vt+5+k}]")
        a("s_waitcnt lgkmcnt(0)")
        for k in (0, 2):
            a(f"v_pk_add_f32 v[{vt+8+k}:{vt+9+k}], v[{vt+8+k}:{vt+9+k}], v[{vt+12+k}:{vt+13+k}]")
        for k in (2, 0):
            a(f"v_pk_add_f32 v[{vt+k}:{vt+k+1}], v[{vt+k}:{vt+k+1}], v[{vt+8+k}:{vt+9+k}]")
        a(f"v_min_u32 v{vt+3}, -2, v{vt+3}")
        a.vmem(f"buffer_store_dwordx4 v[{vt}:{vt+3}], v{lds_s+2}, s[16:19], s{s_out} offen sc1", "pub")
        a("s_mov_b64 exec, -1")

    def phase5_addrs(lds_s, base, t):
        a(f"v_and_b32 v{t}, 15, v1")
        a(f"v_lshlrev_b32 v{t}, 5, v{t}")
        a(f"v_and_b32 v{t+1}, 16, v1")
        a(f"s_mul_i32 s27, s3, 2560")
        a(f"s_add_u32 s27, s27, {base}")
        a(f"v_add3_u32 v{lds_s}, v{t}, v{t+1}, s27")
        a(f"s_mul_i32 s27, s3, 640")
        a(f"v_lshl_add_u32 v{lds_s+2}, v1, 4, s27")
        a(f"v_add_u32 v{lds_s+1}, {base}, v{lds_s+2}")

    def w5_addr(v, t):
        a(f"v_lshrrev_b32 v{t}, 4, v1")
        a(f"v_mul_u32_u24 v{t}, 5120, v{t}")
        a(f"v_and_b32 v{v}, 15, v1")
        a(f"v_lshl_add_u32 v{v}, v{v}, 4, v{t}")

    def w5_load(n, v, srdr, s0, s1, wreg, tag):
        t, b = n // 5, n % 5
        off = (t & 1) * 1280 + b * 256
        q = wreg + 4 * n
        a.vmem(f"buffer_load_dwordx4 a[{q}:{q+3}], v{v}, s[{srdr}:{srdr+3}], s{s1 if t >= 2 else s0} offen offset:{off} {NT}", tag)

    stamp(0)
    a("s_cmpk_ge_u32 s2, 256")
    a("s_cbranch_scc1 L_exit")
    a("s_load_dwordx2 s[12:13], s[0:1], 24")
    a("s_load_dwordx2 s[4:5], s[0:1], 0")
    a("s_load_dwordx2 s[8:9], s[0:1], 16")
    a("s_load_dwordx2 s[16:17], s[0:1], 104")
    a("s_getpc_b64 s[30:31]")
    a("L_pc:")
    a("v_lshlrev_b32 v5, 7, v0")
    a("v_min_u32 v5, L_codeend-L_pc-4, v5")
    a("global_load_dword v255, v5, s[30:31]")
    a("s_lshr_b32 s25, s2, 3")
    a("s_cmp_lt_u32 s25, 16")
    a("s_cbranch_scc1 L_A")
    a("s_cmp_ge_u32 s25, 28")
    a("s_cbranch_scc1 L_F")

    a.vm = []
    common_ids()
    srd(12, 9437184)
    a("s_sub_u32 s25, s25, 16")
    a("v_lshrrev_b32 v3, 3, v1")
    a("v_lshrrev_b32 v4, 5, v1")
    a("v_and_b32 v5, 3, v3")
    a("v_lshl_add_u32 v4, v4, 3, v5")
    a("v_mul_u32_u24 v4, 12288, v4")
    a("v_lshrrev_b32 v3, 1, v3")
    a("v_xor_b32 v3, v3, v1")
    a("v_and_b32 v3, 7, v3")
    a("v_lshl_add_u32 v6, v3, 4, v4")
    a("v_xor_b32 v7, 64, v6")
    a(f"v_add_u32 v7, {16*12288}, v7")
    a(f"s_mul_i32 s35, s25, {64*12288}")
    a("s_lshl_b32 s36, s24, 2")
    a("s_add_u32 s36, s36, s3")
    a("s_mul_i32 s27, s36, 384")
    a("s_add_u32 s35, s35, s27")
    a(f"s_mul_i32 s37, s3, {R1}")
    a("s_mov_b32 m0, s37")
    a("s_movk_i32 s38, 896")
    a("s_movk_i32 s39, 1280")
    a(f"s_mov_b32 s40, {4*12288}")
    a("s_mov_b32 s28, 0")
    a("s_waitcnt lgkmcnt(0)")
    load_epoch()
    a("L_H_uk:")
    for par in range(2):
        for t in range(3):
            a(f"buffer_load_dwordx4 v{6+par}, s[12:15], s35 offen offset:{t*128} {NT} lds")
            a(f"s_add_u32 m0, m0, s{39 if t == 2 else 38}")
    a("s_add_u32 s35, s35, s40")
    a(f"s_xor_b32 s40, s40, {(4*12288) ^ (28*12288)}")
    a("s_add_u32 s28, s28, 1")
    a("s_cmp_lt_u32 s28, 4")
    a("s_cbranch_scc1 L_H_uk")
    a.vm = [("uk", n // 6) for n in range(24)]
    stamp(1)
    a("s_load_dwordx2 s[8:9], s[0:1], 32")
    a("s_load_dwordx2 s[20:21], s[0:1], 40")
    a("v_and_b32 v2, 15, v1")
    a("v_lshrrev_b32 v3, 4, v1")
    a("v_lshrrev_b32 v4, 3, v2")
    a("v_mul_u32_u24 v4, 3072, v4")
    a("v_and_b32 v5, 7, v2")
    a("v_lshl_add_u32 v4, v5, 7, v4")
    a("v_lshrrev_b32 v5, 1, v2")
    a("v_xor_b32 v5, v5, v3")
    a("v_lshl_add_u32 v4, v5, 4, v4")
    a("v_add_u32 v8, s37, v4")
    a("v_xad_u32 v9, v4, 64, s37")
    a("v_lshlrev_b32 v10, 4, v1")
    a("s_lshl_b32 s41, s36, 12")
    a(f"s_add_u32 s41, s41, {XQ}")
    a("s_lshl_b32 s27, s3, 9")
    a(f"s_add_u32 s27, s27, {R2}")
    a("v_lshl_add_u32 v11, v1, 1, s27")
    a("v_lshl_add_u32 v12, v3, 4, s27")
    a("v_lshrrev_b32 v4, 1, v3")
    a("v_lshl_add_u32 v4, v2, 1, v4")
    a("v_lshlrev_b32 v4, 10, v4")
    a("v_and_b32 v5, 1, v3")
    a("v_lshl_add_u32 v13, v5, 6, v4")
    a("s_lshl_b32 s42, s25, 12")
    a("s_lshl_b32 s27, s24, 7")
    a("s_add_u32 s42, s42, s27")
    a("s_lshl_b32 s27, s3, 4")
    a("s_add_u32 s42, s42, s27")
    a(f"s_add_u32 s42, s42, {XQA}")
    a("s_waitcnt lgkmcnt(0)")
    make_tag()
    srd(8, 9437184)
    srd(20, 7864320)

    def uk_read(T):
        for kk in range(6):
            q = (T * 6 + kk) * 4
            a(f"ds_read_b128 a[{q}:{q+3}], v{8+(kk&1)} offset:{T*6144+(kk>>1)*1024}")

    def xq_loads(tag):
        for mq in range(4):
            t = f"buffer_load_dwordx4 v[{16+4*mq}:{19+4*mq}], v10, s[16:19], s41 offen offset:{mq*1024} sc1"
            if tag:
                a.vmem(t, tag)
            else:
                a(t)

    a.wait_vm(("uk", 1))
    uk_read(0)
    uk_read(1)
    a.wait_vm_n(P["h_x1_wait"])
    xq_loads("xq")
    flag_load(14, 15)
    stamp(2)
    for T in (2, 3):
        if ("uk", T) in a.vm:
            a.wait_vm(("uk", T))
        uk_read(T)
    a.wait_all()
    stamp(3)

    def xq_check():
        a("v_cmp_ne_u32 vcc, s26, v19")
        a("v_cmp_ne_u32 s[44:45], s26, v23")
        a("v_cmp_ne_u32 s[46:47], s26, v27")
        a("s_or_b64 s[44:45], s[44:45], vcc")
        a("v_cmp_ne_u32 vcc, s26, v31")
        a("s_or_b64 s[44:45], s[44:45], s[46:47]")
        a("s_or_b64 vcc, vcc, s[44:45]")

    xq_check()
    a("s_cbranch_scc1 L_H_xq_slow")
    a("L_H_xq_ok:")
    main = a.L
    a.L = []
    a("L_H_xq_slow:")
    a("s_mov_b32 s28, 0")
    a("L_H_xq_loop:")
    a("s_add_u32 s29, s29, 1")
    xq_loads(None)
    a("s_add_u32 s28, s28, 1")
    a("s_waitcnt vmcnt(0)")
    xq_check()
    a("s_cbranch_scc0 L_H_xq_ok")
    a(f"s_cmp_lt_u32 s28, {SPIN}")
    a("s_cbranch_scc1 L_H_xq_loop")
    a("s_branch L_H_xq_ok")
    slow.append("\n".join(a.L))
    a.L = main
    stamp(4)
    for k in range(3):
        a(f"v_add_f32 v{16+k}, v{16+k}, v{20+k}")
        a(f"v_add_f32 v{24+k}, v{24+k}, v{28+k}")
    for k in range(3):
        a(f"v_add_f32 v{16+k}, v{16+k}, v{24+k}")
    a("v_cvt_pk_bf16_f32 v16, v16, v17")
    a("v_cvt_pk_bf16_f32 v18, v18, v18")
    a("ds_write_b16 v11, v16")
    a("ds_write_b16_d16_hi v11, v16 offset:128")
    a("ds_write_b16 v11, v18 offset:256")
    for kk in range(6):
        a(f"ds_read_b128 v[{32+4*kk}:{35+4*kk}], v12 offset:{kk*64}")
    flag_check(14, 15, "H")
    for kk in range(6):
        a(f"s_waitcnt lgkmcnt({5-kk})")
        for T in range(4):
            q = (T * 6 + kk) * 4
            c = "0" if kk == 0 else f"v[{16+4*T}:{19+4*T}]"
            a(f"v_mfma_f32_16x16x32_bf16 v[{16+4*T}:{19+4*T}], a[{q}:{q+3}], v[{32+4*kk}:{35+4*kk}], {c}")
    a("v_cmp_eq_u32 vcc, 1, v2")
    a(f"s_mov_b32 s27, {f32(math.log2(math.e)/math.sqrt(192))}")
    a("s_mov_b32 exec_lo, 0x30003")
    a("s_mov_b32 exec_hi, 0x30003")
    for k in range(8):
        a(f"v_cndmask_b32 v{16+k}, v{16+k}, v{24+k}, vcc")
    for k in range(8):
        a(f"v_mul_f32 v{16+k}, s27, v{16+k}")
    for k in range(4):
        a(f"v_cvt_pk_bf16_f32 v{24+k}, v{16+2*k}, v{17+2*k}")
    a("v_min_u32 v27, -2, v27")
    a.vmem("buffer_store_dwordx4 v[24:27], v13, s[16:19], s42 offen sc1", "pub")
    a("s_mov_b64 exec, -1")
    stamp(5)
    a("s_mul_i32 s27, s25, 43")
    a("s_lshr_b32 s27, s27, 7")
    a("s_mul_i32 s28, s27, 3")
    a("s_sub_u32 s28, s25, s28")
    a("s_lshl_b32 s36, s24, 2")
    a("s_add_u32 s36, s36, s27")
    a("s_mul_i32 s35, s36, 384")
    a("s_lshl_b32 s27, s28, 7")
    a("s_add_u32 s35, s35, s27")
    a(f"s_mul_i32 s27, s3, {192*12288}")
    a("s_add_u32 s35, s35, s27")
    a("s_mul_i32 s38, s36, 3")
    a("s_add_u32 s38, s38, s28")
    a("s_mul_i32 s43, s38, 2560")
    a(f"s_add_u32 s43, s43, {XS}")
    a("s_lshl_b32 s38, s38, 2")
    a("s_add_u32 s38, s38, s3")
    a(f"s_mul_i32 s38, s38, {16*1280}")
    a("s_add_u32 s39, s38, 2560")
    a(f"v_mul_u32_u24 v4, {4*12288}, v3")
    a("v_lshl_add_u32 v6, v2, 3, v4")
    a("v_lshrrev_b32 v4, 1, v3")
    a("v_mul_u32_u24 v4, 48, v4")
    a("v_and_b32 v5, 1, v3")
    a("v_lshl_add_u32 v4, v5, 3, v4")
    a("v_mul_u32_u24 v4, 12288, v4")
    a("v_lshl_add_u32 v7, v2, 3, v4")
    w5_addr(8, 4)
    a("s_mov_b32 s44, 0x05040100")
    a("s_mov_b32 s45, 0x07060302")
    if P["h_ack"]:
        a.wait_all()
    stamp(6)
    RAW = 112
    UVR = 160

    def uv_perm(s):
        r = RAW + 16 * (s % 3)
        for T in range(4):
            for m in range(4):
                lo = r + 2 * (2 * m) + (T >> 1)
                hi = r + 2 * (2 * m + 1) + (T >> 1)
                a(f"v_perm_b32 v{UVR+16*s+4*T+m}, v{hi}, v{lo}, s{44+(T&1)}")

    on = 0
    for s in range(6):
        for e in range(8):
            row = (48 * s + 16 * (e >> 2) + (e & 3)) if s < 4 else (96 * (s - 4) + 32 + e)
            a(f"s_add_u32 s27, s35, {row*12288}")
            r = RAW + 16 * (s % 3) + 2 * e
            a.vmem(f"buffer_load_dwordx2 v[{r}:{r+1}], v{6 if s < 4 else 7}, s[8:11], s27 offen {NT}", ("uv", s))
            if e in (2, 5, 7):
                w5_load(on, 8, 20, 38, 39, 0, "wo")
                on += 1
        if s == 0:
            sel_masks(16, 4)
            phase5_addrs(20, R2 + 4096, 4)
            a("v_xor_b32 v4, v2, v3")
            a("v_lshlrev_b32 v4, 4, v4")
            a("v_mul_u32_u24 v5, 1536, v3")
            for n in range(4):
                a(f"v_xor_b32 v9, {64*n}, v4")
                a(f"v_add_u32 v9, {4*n*1536}, v9")
                a(f"v_add_u32 v{24+n}, v9, v5")
            a("v_lshrrev_b32 v5, 3, v1")
            a("v_lshrrev_b32 v4, 1, v5")
            a("v_xor_b32 v4, v4, v1")
            a("v_and_b32 v4, 7, v4")
            a("v_lshlrev_b32 v4, 4, v4")
            a("v_mul_u32_u24 v5, 1536, v5")
            a("v_add_u32 v28, v4, v5")
            a("v_xor_b32 v4, 64, v4")
            a(f"v_add_u32 v4, {8*1536}, v4")
            a("v_add_u32 v29, v4, v5")
            a("s_mul_i32 s40, s36, 24576")
            a(f"s_add_u32 s40, s40, {XO}")
            a("s_lshl_b32 s27, s3, 7")
            a("s_add_u32 s41, s40, s27")
            a("s_add_u32 s41, s41, 1024")
            a("s_lshl_b32 s27, s3, 8")
            a("s_add_u32 s40, s40, s27")
            a("v_xor_b32 v4, v2, v3")
            a("v_lshlrev_b32 v4, 4, v4")
            a("v_lshl_add_u32 v5, v2, 8, s37")
            for n in range(4):
                a(f"v_xor_b32 v9, {64*n}, v4")
                a(f"v_add_u32 v{30+n}, v9, v5")
            a("v_lshrrev_b32 v4, 1, v2")
            a("v_xor_b32 v4, v4, v3")
            a("v_lshlrev_b32 v4, 4, v4")
            a("v_lshl_add_u32 v5, v2, 7, s37")
            a("v_add_u32 v34, v4, v5")
            a("v_xad_u32 v35, v4, 64, v5")
            a("v_lshlrev_b32 v36, 10, v3")
            a("s_lshl_b32 s42, s36, 3")
            a(f"s_add_u32 s42, s42, {XML}")
            a("s_lshl_b32 s27, s3, 8")
            a(f"s_add_u32 s27, s27, {R2+2048}")
            a("v_lshlrev_b32 v4, 2, v3")
            a("v_lshl_add_u32 v4, v2, 4, v4")
            a("v_add_u32 v37, s27, v4")
            a("s_lshl_b32 s27, s3, 6")
            a(f"s_add_u32 s27, s27, {R2+2048}")
            a("v_lshl_add_u32 v38, v3, 4, s27")
        if s >= 2:
            a.wait_vm(("uv", s - 2))
            uv_perm(s - 2)
    while on < 20:
        w5_load(on, 8, 20, 38, 39, 0, "wo")
        on += 1
    a.wait_vm(("uv", 4))
    uv_perm(4)
    a.wait_vm(("uv", 5))
    uv_perm(5)
    stamp(7)
    ML = 40
    OA = 48
    AC = 72

    def xml_loads():
        for r in range(4):
            a(f"buffer_load_dwordx2 v[{ML+2*r}:{ML+2*r+1}], v36, s[16:19], s42 offen offset:{r*256} sc1")

    def xml_chk(v):
        a(f"v_max3_u32 v{v}, v{ML+1}, v{ML+3}, v{ML+5}")
        a(f"v_max_u32 v{v}, v{v}, v{ML+7}")

    a("s_mov_b32 s28, 0")
    if P["h_prepoll"]:
        a("L_H_pp:")
        xml_loads()
        a("s_add_u32 s28, s28, 1")
        a("s_add_u32 s29, s29, 0x100")
        a("s_waitcnt vmcnt(0)")
        xml_chk(39)
        a("v_cmp_eq_u32 vcc, -1, v39")
        a("s_cbranch_vccz L_H_x3")
        a(f"s_cmp_lt_u32 s28, {SPIN}")
        a("s_cbranch_scc1 L_H_pp")
    a("L_H_x3:")
    stamp(8)
    a("s_mov_b32 m0, s37")
    a("s_add_u32 s28, s28, 1")
    if not P["h_prepoll"]:
        xml_loads()
    for n in range(6):
        a(f"buffer_load_dwordx4 v{24+n}, s[16:19], s{40 if n < 4 else 41} offen sc1 lds")
        if n < 5:
            a("s_add_u32 m0, m0, 1024")
    if not P["h_prepoll"]:
        a("s_waitcnt vmcnt(6)")
    xml_chk(39)
    a(f"v_max3_f32 v4, v{ML}, v{ML+2}, v{ML+4}")
    a(f"v_max_f32 v4, v4, v{ML+6}")
    for sw in ("32", "16"):
        a("v_mov_b32 v5, v4")
        a(f"v_permlane{sw}_swap_b32 v4, v5")
        a("v_max_f32 v4, v4, v5")
    for r in range(4):
        a(f"v_sub_f32 v{10+r}, v{ML+2*r}, v4")
    for r in range(4):
        a(f"v_exp_f32 v{10+r}, v{10+r}")
    a(f"v_mul_f32 v4, v10, v{ML+1}")
    for r in range(1, 4):
        a(f"v_fmac_f32 v4, v{10+r}, v{ML+2*r+1}")
    for sw in ("32", "16"):
        a("v_mov_b32 v5, v4")
        a(f"v_permlane{sw}_swap_b32 v4, v5")
        a("v_add_f32 v4, v4, v5")
    a("v_rcp_f32 v4, v4")
    for r in range(4):
        a(f"v_mul_f32 v{10+r}, v{10+r}, v4")
    a("s_waitcnt vmcnt(2)")
    for s in range(4):
        a(f"ds_read_b128 v[{OA+4*s}:{OA+4*s+3}], v{30+s}")
    a("s_waitcnt vmcnt(0)")
    a.vm = []
    for s in range(4, 6):
        a(f"ds_read_b128 v[{OA+4*s}:{OA+4*s+3}], v{30+s} offset:4096")
    for s in range(6):
        a(f"s_waitcnt lgkmcnt({5-s})")
        for T in range(4):
            c = "0" if s == 0 else f"v[{AC+4*T}:{AC+4*T+3}]"
            q = UVR + 16 * s + 4 * T
            a(f"v_mfma_f32_16x16x32_bf16 v[{AC+4*T}:{AC+4*T+3}], v[{OA+4*s}:{OA+4*s+3}], v[{q}:{q+3}], {c}")
        a(f"v_max3_u32 v39, v39, v{OA+4*s+1}, v{OA+4*s+3}")
    a("v_cmp_eq_u32 vcc, -1, v39")
    a("s_cbranch_vccnz L_H_x3_retry")
    a("L_H_x3_ok:")
    slow.append(f"""L_H_x3_retry:
        s_add_u32 s29, s29, 0x1000000
        s_cmp_lt_u32 s28, {SPIN}
        s_cbranch_scc1 L_H_x3
        s_branch L_H_x3_ok""")
    stamp(9)
    for T in range(4):
        a(f"v_mul_f32 v{AC+4*T}, v10, v{AC+4*T}")
    for r in range(1, 4):
        for T in range(4):
            a(f"v_fmac_f32 v{AC+4*T}, v{10+r}, v{AC+4*T+r}")
    a(f"v_permlane32_swap_b32 v{AC}, v{AC+8}")
    a(f"v_permlane32_swap_b32 v{AC+4}, v{AC+12}")
    a(f"v_add_f32 v{AC}, v{AC}, v{AC+8}")
    a(f"v_add_f32 v{AC+4}, v{AC+4}, v{AC+12}")
    a(f"v_permlane16_swap_b32 v{AC}, v{AC+4}")
    a(f"v_add_f32 v{AC}, v{AC}, v{AC+4}")
    a(f"ds_write_b32 v37, v{AC}")
    a("s_waitcnt lgkmcnt(0)")
    a("s_barrier")
    for w in range(4):
        a(f"ds_read_b128 v[{48+4*w}:{51+4*w}], v38 offset:{w*256}")
    a("s_waitcnt lgkmcnt(2)")
    for k in (0, 2):
        a(f"v_pk_add_f32 v[{48+k}:{49+k}], v[{48+k}:{49+k}], v[{52+k}:{53+k}]")
    a("s_waitcnt lgkmcnt(0)")
    for k in (0, 2):
        a(f"v_pk_add_f32 v[{56+k}:{57+k}], v[{56+k}:{57+k}], v[{60+k}:{61+k}]")
    for k in (0, 2):
        a(f"v_pk_add_f32 v[{48+k}:{49+k}], v[{48+k}:{49+k}], v[{56+k}:{57+k}]")
    stamp(10)
    phase5(48, 16, 0, 64, 20, 43)
    stamp(11)
    dump_stamps()
    a("L_exit:")
    a("s_endpgm")

    a(".p2align 8")
    a("L_A:")
    a.vm = []
    common_ids()
    srd(4, 1280)
    srd(8, 7864320)
    a("v_lshrrev_b32 v2, 3, v1")
    a("v_and_b32 v5, 7, v1")
    a("v_mul_u32_u24 v6, 12288, v2")
    a("v_lshl_add_u32 v6, v5, 4, v6")
    a("v_lshlrev_b32 v7, 1, v2")
    a("s_and_b32 s27, s25, 3")
    a("s_lshl_b32 s27, s27, 2")
    a("s_add_u32 s27, s27, s3")
    a("s_mul_i32 s35, s27, 80")
    a(f"s_mul_i32 s36, s27, {40*12288}")
    a("s_lshr_b32 s27, s25, 2")
    a("s_lshl_b32 s28, s24, 2")
    a("s_add_u32 s27, s27, s28")
    a("s_mul_i32 s27, s27, 384")
    a("s_add_u32 s36, s36, s27")
    a(f"s_mov_b32 s28, {8*12288}")
    a("s_waitcnt lgkmcnt(0)")
    load_epoch()
    a("s_load_dwordx2 s[12:13], s[0:1], 8")
    x_stats_loads(8)
    for g in range(5):
        a.vmem(f"buffer_load_ushort v{13+g}, v7, s[4:7], s35 offen offset:{16*g}", "x")
    for g in range(5):
        for t in range(3):
            q = (g * 3 + t) * 4
            a.vmem(f"buffer_load_dwordx4 a[{q}:{q+3}], v6, s[8:11], s36 offen offset:{t*128} {NT}", ("wq", g))
        if g < 4:
            a("s_add_u32 s36, s36, s28")
    stamp(1)
    a("v_lshrrev_b32 v3, 1, v2")
    a("v_xor_b32 v3, v3, v5")
    a("v_mul_u32_u24 v4, 1536, v2")
    a("v_lshl_add_u32 v6, v3, 4, v4")
    a("v_xor_b32 v7, 64, v6")
    a(f"v_add_u32 v7, {8*1536}, v7")
    a("s_lshl_b32 s27, s24, 4")
    a("s_add_u32 s27, s27, s25")
    a(f"s_mul_i32 s35, s27, {64*1536}")
    a("s_lshl_b32 s43, s27, 10")
    a(f"s_add_u32 s43, s43, {XQ}")
    a("s_mul_i32 s28, s3, 384")
    a("s_add_u32 s35, s35, s28")
    for p in range(4):
        a(f"s_xor_b32 s28, s3, {p}")
        a(f"s_mul_i32 s28, s28, {16*1536}")
        a(f"s_add_u32 s{38+p}, s35, s28")
    a(f"s_mul_i32 s37, s3, {R1}")
    a("s_mov_b32 m0, s37")
    a("s_movk_i32 s46, 896")
    a("s_movk_i32 s47, 1280")
    sel_masks(20, 3)
    a("s_waitcnt lgkmcnt(0)")
    make_tag()
    srd(12, 12582912)
    a.wait_vm("x")
    ln_stats(8, 24)
    for g in range(5):
        a(f"v_lshlrev_b32 v{13+g}, 16, v{13+g}")
        normalize(13 + g, 3)
        for d in range(4):
            a(f"v_and_b32 v{24+4*g+d}, v{13+g}, v{20+d}")
    stamp(2)
    ck = [0]

    def ckv_dma():
        n = ck[0]
        p, par, t = n // 6, (n // 3) & 1, n % 3
        a.vmem(f"buffer_load_dwordx4 v{6+par}, s[12:15], s{38+p} offen offset:{t*128} lds", ("ck", n // 12))
        a(f"s_add_u32 m0, m0, s{47 if t == 2 else 46}")
        ck[0] += 1

    nf = P["a_first"]
    for g in range(5):
        while ck[0] < (nf * (g + 1) + 4) // 5 and ck[0] < nf:
            ckv_dma()
        a.wait_vm(("wq", g))
        for t in range(3):
            q = (g * 3 + t) * 4
            c = "0" if g == 0 else f"v[{44+4*t}:{47+4*t}]"
            a(f"v_mfma_f32_16x16x32_bf16 v[{44+4*t}:{47+4*t}], v[{24+4*g}:{27+4*g}], a[{q}:{q+3}], {c}")
        if g == 0:
            a("v_bfe_u32 v3, v1, 3, 1")
            a("v_mul_u32_u24 v3, 768, v3")
            a("v_lshl_add_u32 v3, v5, 5, v3")
            a("v_and_b32 v4, 16, v1")
            a("s_mul_i32 s27, s3, 1536")
            a(f"s_add_u32 s27, s27, {R2}")
            a("v_add3_u32 v8, v3, v4, s27")
            a("v_lshlrev_b32 v9, 2, v1")
            a(f"v_add_u32 v9, {R2}, v9")
            a("v_lshlrev_b32 v10, 4, v1")
    stamp(3)
    a("s_mov_b32 exec_lo, 0x00ff00ff")
    a("s_mov_b32 exec_hi, 0xff00ff00")
    for t in range(3):
        a(f"ds_write_b128 v8, v[{44+4*t}:{47+4*t}] offset:{t*256}")
    a("s_mov_b64 exec, -1")
    a("s_waitcnt lgkmcnt(0)")
    a("s_barrier")
    a("s_cmp_lg_u32 s3, 0")
    a("s_cbranch_scc1 L_A_noq")
    for k in range(12):
        a(f"ds_read2st64_b32 v[{24+2*k}:{25+2*k}], v9 offset0:{2*k} offset1:{2*k+1}")
    a("v_mov_b32 v15, s26")
    a("s_waitcnt lgkmcnt(6)")
    for t in range(3):
        a(f"v_add_f32 v{12+t}, v{24+t}, v{27+t}")
    for p in (2, 3):
        for t in range(3):
            a(f"v_add_f32 v{12+t}, v{12+t}, v{24+3*p+t}")
    a("s_waitcnt lgkmcnt(0)")
    for p in range(4, 8):
        for t in range(3):
            a(f"v_add_f32 v{12+t}, v{12+t}, v{24+3*p+t}")
    a("buffer_store_dwordx4 v[12:15], v10, s[16:19], s43 offen sc1")
    a("L_A_noq:")
    stamp(4)
    flag_load(16, 17)
    while ck[0] < 24:
        ckv_dma()
    stamp(5)
    a("v_and_b32 v2, 31, v1")
    a("v_lshrrev_b32 v3, 5, v1")
    a("v_lshrrev_b32 v4, 3, v2")
    a("v_mul_u32_u24 v4, 3072, v4")
    a("v_lshl_add_u32 v4, v5, 7, v4")
    a("v_bfe_u32 v11, v2, 1, 3")
    a("v_xor_b32 v11, v11, v3")
    a("v_lshl_add_u32 v4, v11, 4, v4")
    a("v_add_u32 v20, s37, v4")
    a("v_xad_u32 v21, v4, 32, s37")
    a("v_xad_u32 v22, v4, 64, s37")
    a("v_xor_b32 v4, 64, v4")
    a("v_xad_u32 v23, v4, 32, s37")
    a("v_lshrrev_b32 v4, 2, v2")
    a("v_lshlrev_b32 v4, 7, v4")
    a("v_lshl_add_u32 v4, v3, 6, v4")
    a("v_and_b32 v11, 3, v1")
    a("v_lshl_add_u32 v24, v11, 4, v4")
    a("s_mul_i32 s38, s3, 12288")
    a(f"s_add_u32 s38, s38, {XQA}")
    a("s_add_u32 s39, s38, 4096")
    a("s_add_u32 s40, s38, 8192")
    a("s_mov_b32 s27, 0x15555556")
    for m in range(3):
        a(f"v_add_u32 v4, {64*m}, v1")
        a("v_mul_hi_u32 v11, v4, s27")
        a(f"v_mul_u32_u24 v11, {1536-192}, v11")
        a(f"v_lshl_add_u32 v{25+m}, v4, 4, v11")
    a("s_lshr_b32 s27, s25, 3")
    a("s_lshl_b32 s35, s24, 1")
    a("s_add_u32 s35, s35, s27")
    a("s_and_b32 s36, s25, 7")
    a("s_lshl_b32 s27, s35, 2")
    a("s_add_u32 s27, s27, s3")
    a(f"s_mul_i32 s41, s27, {128*1536}")
    a("s_mul_i32 s27, s36, 192")
    a("s_add_u32 s41, s41, s27")
    a(f"s_movk_i32 s46, 1024")
    a(f"s_movk_i32 s47, {16*1536}")
    for p in range(1, 4):
        a(f"s_xor_b32 s27, s3, {p}")
        a("s_mul_i32 s27, s27, 6144")
        a(f"s_add_u32 s27, s27, {R2+(p-1)*2048}")
        a(f"v_add_u32 v{27+p}, s27, v10")
    a("s_mul_i32 s27, s3, 6144")
    a(f"s_add_u32 s27, s27, {R2}")
    a("v_add_u32 v31, s27, v10")
    a("s_lshl_b32 s27, s24, 4")
    a("s_add_u32 s27, s27, s25")
    a("s_lshl_b32 s27, s27, 2")
    a("s_add_u32 s27, s27, s3")
    a("s_lshl_b32 s42, s27, 10")
    a(f"s_add_u32 s42, s42, {XP}")
    a("s_lshl_b32 s43, s27, 7")
    a(f"s_add_u32 s43, s43, {XM}")
    a("v_lshlrev_b32 v32, 2, v2")
    a("v_and_b32 v18, 15, v1")
    a("v_lshrrev_b32 v19, 4, v1")
    a("v_lshlrev_b32 v4, 13, v19")
    a("v_lshl_add_u32 v33, v18, 4, v4")
    a("v_lshlrev_b32 v4, 10, v19")
    a("v_lshl_add_u32 v34, v18, 2, v4")
    a("s_lshr_b32 s27, s3, 1")
    a("s_and_b32 s28, s3, 1")
    a("s_lshl_b32 s44, s35, 15")
    a("s_lshl_b32 s20, s27, 8")
    a("s_add_u32 s44, s44, s20")
    a(f"s_add_u32 s44, s44, {XP}")
    a("s_add_u32 s45, s44, 4096")
    a("s_lshl_b32 s20, s35, 12")
    a("s_lshl_b32 s21, s27, 6")
    a("s_add_u32 s20, s20, s21")
    a(f"s_add_u32 s20, s20, {XM}")
    a(f"v_mul_u32_u24 v4, {R1}, v19")
    a("v_lshrrev_b32 v11, 2, v18")
    a("v_mul_u32_u24 v11, 192, v11")
    a("v_add_u32 v4, v4, v11")
    a("v_and_b32 v11, 3, v1")
    a("v_lshl_add_u32 v4, v11, 3, v4")
    a("s_mul_i32 s21, s28, 96")
    a("v_add_u32 v35, s21, v4")
    a("v_lshl_add_u32 v36, v18, 2, v19")
    a("v_lshlrev_b32 v36, 2, v36")
    a("v_lshrrev_b32 v4, 2, v1")
    a("v_mul_u32_u24 v4, 24576, v4")
    a("v_lshl_add_u32 v37, v11, 4, v4")
    a("v_lshl_add_u32 v38, v11, 3, v4")
    a(f"s_mul_i32 s21, s27, {16*24576}")
    a("s_mul_i32 s22, s35, 1536")
    a("s_add_u32 s21, s21, s22")
    a(f"s_add_u32 s21, s21, {XO}")
    a("s_lshl_b32 s23, s36, 1")
    a("s_add_u32 s23, s23, s28")
    a("s_lshl_b32 s22, s23, 5")
    a("s_add_u32 s22, s22, s21")
    a("s_add_u32 s22, s22, 1024")
    a("s_lshl_b32 s28, s23, 6")
    a("s_add_u32 s21, s21, s28")
    a("s_lshl_b32 s35, s35, 8")
    a("s_lshl_b32 s27, s27, 7")
    a("s_add_u32 s35, s35, s27")
    a(f"s_add_u32 s35, s35, {XML}")
    a("v_lshlrev_b32 v39, 3, v1")
    for k in range(4):
        a(f"v_mov_b32 v{40+k}, 0x3f803f80")
    CA = 64
    QA = 64
    SA = 112

    def ck_read(kt):
        for kk in range(12):
            q = CA + (kt * 12 + kk) * 4
            a(f"ds_read_b128 a[{q}:{q+3}], v{20+(kk&3)} offset:{kt*12288+(kk>>2)*1024}")

    def qa_load(kk):
        return f"buffer_load_dwordx4 v[{QA+4*kk}:{QA+4*kk+3}], v24, s[16:19], s{38+(kk>>2)} offen offset:{(kk&3)*1024} sc1"

    def s_mfma(kk):
        for kt in range(2):
            q = CA + (kt * 12 + kk) * 4
            c = "0" if kk == 0 else f"v[{SA+16*kt}:{SA+16*kt+15}]"
            a(f"v_mfma_f32_32x32x16_bf16 v[{SA+16*kt}:{SA+16*kt+15}], a[{q}:{q+3}], v[{QA+4*kk}:{QA+4*kk+3}], {c}")

    l2 = [0]

    def l2_dma():
        n = l2[0]
        a.vmem(f"buffer_load_dwordx4 v{25+n%3}, s[12:15], s41 offen lds", ("l2", n // 12))
        a("s_add_u32 m0, m0, s46")
        if n % 3 == 2:
            a("s_add_u32 s41, s41, s47")
        l2[0] += 1

    if ("ck", 0) in a.vm:
        a.wait_vm(("ck", 0))
    ck_read(0)
    if "flag" in a.vm:
        a.wait_vm("flag")
    flag_check(16, 17, "A")
    a.wait_vm_n(P["a_x2_wait"])
    stamp(6)
    for kk in range(12):
        a.vmem(qa_load(kk), ("qa", kk))
    if ("ck", 1) in a.vm:
        a.wait_vm(("ck", 1))
    ck_read(1)
    a("s_mov_b32 m0, s37")
    a("v_mov_b32 v11, 0")
    for kk in range(12):
        a.wait_vm(("qa", kk), f" lgkmcnt({11-kk})")
        s_mfma(kk)
        if kk & 1:
            a(f"v_max3_u32 v11, v11, v{QA+4*kk-1}, v{QA+4*kk+3}")
        l2_dma()
    a("v_cmp_eq_u32 vcc, -1, v11")
    a("s_cbranch_vccnz L_A_x2_slow")
    a("L_A_x2_ok:")
    main = a.L
    a.L = []
    a("L_A_x2_slow:")
    a("s_mov_b32 s28, 0")
    a("L_A_x2_loop:")
    a("s_add_u32 s29, s29, 1")
    for kk in range(12):
        a(qa_load(kk))
    a("v_mov_b32 v11, 0")
    a("s_add_u32 s28, s28, 1")
    a("s_waitcnt vmcnt(0)")
    for kk in range(1, 12, 2):
        a(f"v_max3_u32 v11, v11, v{QA+4*kk-1}, v{QA+4*kk+3}")
    a("v_cmp_eq_u32 vcc, -1, v11")
    a("s_cbranch_vccz L_A_x2_redo")
    a(f"s_cmp_lt_u32 s28, {SPIN}")
    a("s_cbranch_scc1 L_A_x2_loop")
    a("L_A_x2_redo:")
    for kk in range(12):
        s_mfma(kk)
    a("s_branch L_A_x2_ok")
    slow.append("\n".join(a.L))
    a.L = main
    stamp(7)
    for p in range(1, 4):
        for k in range(2):
            r = SA + 8 * p + 4 * k
            a(f"ds_write_b128 v{27+p}, v[{r}:{r+3}] offset:{k*1024}")
    a.wait_vm(("l2", 0), " lgkmcnt(0)")
    a("s_barrier")
    for p in range(3):
        for k in range(2):
            r = QA + 8 * p + 4 * k
            a(f"ds_read_b128 v[{r}:{r+3}], v31 offset:{p*2048+k*1024}")
    for p in range(3):
        a(f"s_waitcnt lgkmcnt({4-2*p})")
        for k in range(0, 8, 2):
            a(f"v_pk_add_f32 v[{SA+k}:{SA+k+1}], v[{SA+k}:{SA+k+1}], v[{QA+8*p+k}:{QA+8*p+k+1}]")
    a(f"v_max3_f32 v4, v{SA}, v{SA+1}, v{SA+2}")
    a(f"v_max3_f32 v11, v{SA+3}, v{SA+4}, v{SA+5}")
    a(f"v_max3_f32 v4, v4, v{SA+6}, v{SA+7}")
    a("v_max_f32 v4, v4, v11")
    a("v_mov_b32 v11, v4")
    a("v_permlane32_swap_b32 v4, v11")
    a("v_max_f32 v4, v4, v11")
    a("v_ceil_f32 v4, v4")
    for e in range(8):
        a(f"v_sub_f32 v{SA+e}, v{SA+e}, v4")
    for e in range(8):
        a(f"v_exp_f32 v{SA+e}, v{SA+e}")
    a("v_min_u32 v4, -2, v4")
    for m in range(4):
        a(f"v_cvt_pk_bf16_f32 v{12+m}, v{SA+2*m}, v{SA+2*m+1}")
    a("v_min_u32 v15, -2, v15")
    a.vmem("buffer_store_dwordx4 v[12:15], v10, s[16:19], s42 offen sc1", "pub")
    a("s_mov_b32 exec_hi, 0")
    a.vmem("buffer_store_dword v4, v32, s[16:19], s43 offen sc1", "pub")
    a("s_mov_b64 exec, -1")
    stamp(8)
    trn = [0]

    def tr_read():
        n = trn[0]
        s, T, b = n // 6, (n // 2) % 3, n & 1
        q = (s * 3 + T) * 4 + 2 * b
        a(f"ds_read_b64_tr_b16 a[{q}:{q+1}], v35 offset:{(16*(s>>1)+4*(s&1)+8*b)*192+32*T}")
        trn[0] += 1

    for n in range(12):
        l2_dma()
        for k in range(4):
            tr_read()
    stamp(9)
    MR = 44
    PR = 64
    PT = 128
    OC = 136

    def m_load(p):
        return f"buffer_load_dword v{MR+p}, v34, s[16:19], s20 offen offset:{p*128} sc1"

    def p_load(s):
        return f"buffer_load_dwordx4 v[{PR+4*s}:{PR+4*s+3}], v33, s[16:19], s{44+(s>>3)} offen offset:{(s&7)*512} sc1"

    def m_check():
        a(f"v_max3_u32 v11, v{MR}, v{MR+1}, v{MR+2}")
        a(f"v_max3_u32 v11, v11, v{MR+3}, v{MR+4}")
        a(f"v_max3_u32 v11, v11, v{MR+5}, v{MR+6}")
        a(f"v_max_u32 v11, v11, v{MR+7}")

    def m_max():
        a(f"v_max3_f32 v60, v{MR}, v{MR+1}, v{MR+2}")
        a(f"v_max3_f32 v61, v{MR+3}, v{MR+4}, v{MR+5}")
        a(f"v_max3_f32 v60, v60, v{MR+6}, v{MR+7}")
        a("v_max_f32 v60, v60, v61")
        for sw in ("32", "16"):
            a("v_mov_b32 v61, v60")
            a(f"v_permlane{sw}_swap_b32 v60, v61")
            a("v_max_f32 v60, v60, v61")

    def delta(p):
        a(f"v_sub_f32 v{MR+8+p}, v60, v{MR+p}")
        a(f"v_min_f32 v{MR+8+p}, 0x437f0000, v{MR+8+p}")
        a(f"v_cvt_u32_f32 v{MR+8+p}, v{MR+8+p}")
        a(f"v_mul_u32_u24 v{MR+8+p}, 0x800080, v{MR+8+p}")

    def pv_adj(s):
        t = PT + 4 * (s & 1)
        for d in range(4):
            a(f"v_pk_sub_u16 v{t+d}, v{PR+4*s+d}, v{MR+8+(s>>1)} clamp")

    def pv_mfma(s, T):
        t = PT + 4 * (s & 1)
        c = "0" if s == 0 else f"v[{OC+4*T}:{OC+4*T+3}]"
        q = (s * 3 + T) * 4
        A = f"a[{q}:{q+3}]" if T < 3 else "v[40:43]"
        a(f"v_mfma_f32_16x16x32_bf16 v[{OC+4*T}:{OC+4*T+3}], {A}, v[{t}:{t+3}], {c}")

    for p in range(8):
        a.vmem(m_load(p), "m")
    pl = [0]

    def p_issue():
        if pl[0] < 16:
            a.vmem(p_load(pl[0]), ("p", pl[0]))
            pl[0] += 1

    p_issue()
    p_issue()
    a.wait_vm(("l2", 1))
    a("s_barrier")
    while pl[0] < P["p_ahead"]:
        p_issue()
        for k in range(7):
            if trn[0] < 96:
                tr_read()
    while trn[0] < 96:
        tr_read()
    a.wait_vm("m")
    stamp(10)
    m_check()
    m_max()
    delta(0)
    for s in range(16):
        p_issue()
        a.wait_vm(("p", s), " lgkmcnt(0)" if s == 0 else "")
        pv_adj(s)
        if s & 1:
            a(f"v_max3_u32 v11, v11, v{PR+4*s-1}, v{PR+4*s+3}")
        elif s < 14:
            delta(s // 2 + 1)
        for T in range(4):
            pv_mfma(s, T)
    a("v_cmp_eq_u32 vcc, -1, v11")
    a("s_cbranch_vccnz L_A_p_slow")
    a("L_A_p_ok:")
    main = a.L
    a.L = []
    a("L_A_p_slow:")
    a("s_mov_b32 s28, 0")
    a("L_A_p_loop:")
    a("s_add_u32 s29, s29, 0x100")
    for p in range(8):
        a(m_load(p))
    for s in range(16):
        a(p_load(s))
    a("s_add_u32 s28, s28, 1")
    a("s_waitcnt vmcnt(0)")
    m_check()
    for s in range(1, 16, 2):
        a(f"v_max3_u32 v11, v11, v{PR+4*s-1}, v{PR+4*s+3}")
    a("v_cmp_eq_u32 vcc, -1, v11")
    a("s_cbranch_vccz L_A_p_redo")
    a(f"s_cmp_lt_u32 s28, {SPIN}")
    a("s_cbranch_scc1 L_A_p_loop")
    a("L_A_p_redo:")
    m_max()
    for s in range(16):
        if not s & 1:
            delta(s // 2)
        pv_adj(s)
        for T in range(4):
            pv_mfma(s, T)
    a("s_branch L_A_p_ok")
    slow.append("\n".join(a.L))
    a.L = main
    stamp(11)
    for k in range(6):
        a(f"v_cvt_pk_bf16_f32 v{OC+k}, v{OC+2*k}, v{OC+2*k+1}")
        if k & 1:
            a(f"v_min_u32 v{OC+k}, -2, v{OC+k}")
        a(f"ds_permute_b32 v{44+k}, v36, v{OC+k}")
    a(f"v_min_u32 v61, -2, v{OC+12}")
    a("s_waitcnt lgkmcnt(2)")
    a("buffer_store_dwordx4 v[44:47], v37, s[16:19], s21 offen sc1")
    a("s_waitcnt lgkmcnt(0)")
    a("buffer_store_dwordx2 v[48:49], v38, s[16:19], s22 offen sc1")
    a("s_cmp_lg_u32 s23, 0")
    a("s_cbranch_scc1 L_A_end")
    a("s_mov_b64 exec, 0xffff")
    a("buffer_store_dwordx2 v[60:61], v39, s[16:19], s35 offen sc1")
    a("L_A_end:")
    stamp(12)
    dump_stamps()
    a("s_endpgm")

    a(".p2align 8")
    a("L_F:")
    a.vm = []
    common_ids()
    srd(4, 1280)
    a("s_sub_u32 s25, s25, 28")
    a("s_lshl_b32 s35, s24, 2")
    a("s_add_u32 s35, s35, s25")
    a(f"s_mul_i32 s36, s35, {CLR_PER}")
    a(f"s_add_u32 s36, s36, {CLR0}")
    a(f"s_add_u32 s37, s36, {CLR_PER}")
    a("v_lshlrev_b32 v3, 4, v0")
    for k in range(4):
        a(f"v_mov_b32 v{4+k}, -1")
    a("s_waitcnt lgkmcnt(0)")
    load_epoch()
    a("s_load_dwordx2 s[8:9], s[0:1], 56")
    a("s_load_dwordx2 s[12:13], s[0:1], 72")
    a("s_load_dwordx2 s[20:21], s[0:1], 64")
    a("s_load_dwordx2 s[76:77], s[0:1], 80")
    a("s_load_dwordx2 s[80:81], s[0:1], 88")
    a("L_F_clr:")
    a("buffer_store_dwordx4 v[4:7], v3, s[16:19], s36 offen sc1")
    a("s_add_u32 s36, s36, 4096")
    a("s_cmp_lt_u32 s36, s37")
    a("s_cbranch_scc1 L_F_clr")
    a("s_waitcnt lgkmcnt(0)")
    make_tag()
    srd(8, 1966080)
    srd(12, 1966080)
    srd(20, 3072)
    srd(76, 1280)
    srd(80, 1280)
    a("s_lshl_b32 s27, s35, 7")
    a(f"s_add_u32 s27, s27, {FLAGS}")
    a("v_mov_b32 v8, s26")
    a("v_mov_b32 v9, 0")
    a("s_waitcnt vmcnt(0)")
    a("s_barrier")
    stamp(1)
    a("s_cmp_lg_u32 s3, 0")
    a("s_cbranch_scc1 L_F_noflag")
    a("s_mov_b64 exec, 1")
    a("buffer_store_dword v8, v9, s[16:19], s27 offen sc1")
    a("s_mov_b64 exec, -1")
    a("L_F_noflag:")
    a("s_cmp_eq_u32 s25, 3")
    a("s_cbranch_scc1 L_F_end")
    a("s_mul_i32 s35, s24, 3")
    a("s_add_u32 s35, s35, s25")
    x_stats_loads(8)
    a("v_lshrrev_b32 v2, 3, v1")
    a("v_mul_u32_u24 v5, 40, v2")
    a("s_mul_i32 s27, s3, 320")
    a.vmem("buffer_load_dwordx4 v[36:39], v5, s[4:7], s27 offen", "x")
    a.vmem("buffer_load_dwordx4 v[40:43], v5, s[4:7], s27 offen offset:16", "x")
    a.vmem("buffer_load_dwordx2 v[44:45], v5, s[4:7], s27 offen offset:32", "x")
    a("v_lshrrev_b32 v19, 4, v1")
    a("v_lshlrev_b32 v3, 3, v19")
    a("s_lshl_b32 s27, s35, 2")
    a("s_add_u32 s27, s27, s3")
    a(f"s_mul_i32 s38, s27, {16*1280}")
    a("s_add_u32 s39, s38, 2560")
    a("s_lshl_b32 s27, s27, 5")
    a.vmem("buffer_load_dwordx2 v[46:47], v3, s[20:23], s27 offen", "x")
    a("v_and_b32 v5, 7, v1")
    a("v_lshlrev_b32 v3, 1, v19")
    a("v_lshl_add_u32 v48, v5, 3, v3")
    a("s_lshl_b32 s40, s35, 6")
    a.vmem("buffer_load_ushort v49, v48, s[4:7], s40 offen", "x")
    a.vmem("buffer_load_ushort v50, v48, s[76:79], s40 offen", "x")
    a(f"v_mul_u32_u24 v6, {20*3072}, v2")
    a("v_lshl_add_u32 v6, v5, 4, v6")
    a(f"s_mul_i32 s36, s3, {160*3072}")
    a("s_lshl_b32 s27, s35, 7")
    a("s_add_u32 s36, s36, s27")
    w5_addr(7, 3)
    sel_masks(20, 3)
    phase5_addrs(51, R2 + 4096, 3)
    a("s_mul_i32 s43, s35, 2560")
    a(f"s_add_u32 s43, s43, {XY}")
    a("v_bfe_u32 v3, v1, 3, 1")
    a("v_lshlrev_b32 v3, 8, v3")
    a("v_lshl_add_u32 v3, v5, 5, v3")
    a("v_and_b32 v4, 16, v1")
    a("s_lshl_b32 s27, s3, 9")
    a(f"s_add_u32 s27, s27, {R2}")
    a("v_add3_u32 v54, v3, v4, s27")
    a("s_lshl_b32 s27, s3, 6")
    a(f"s_add_u32 s27, s27, {R2}")
    a("v_lshl_add_u32 v55, v19, 4, s27")
    a("v_mul_u32_u24 v56, 2560, v2")
    a("v_lshl_add_u32 v56, v5, 4, v56")
    a.wait_vm("x")
    ln_stats(8, 24)
    for g in range(20):
        if g & 1:
            a(f"v_and_b32 v4, 0xffff0000, v{36+g//2}")
        else:
            a(f"v_lshlrev_b32 v4, 16, v{36+g//2}")
        normalize(4, 3)
        for d in range(4):
            a(f"v_and_b32 v{64+4*g+d}, v4, v{20+d}")
    flag_load(16, 17)
    a.wait_all()
    flag_check(16, 17, "F")
    stamp(2)
    for g in range(20):
        q = 4 * g
        a.vmem(f"buffer_load_dwordx4 a[{q}:{q+3}], v6, s[8:11], s36 offen offset:{(g&1)*3072} {NT}", ("w1", g))
        if g & 1:
            a("s_add_u32 s36, s36, 6144")
        if g < P["f_paced"]:
            a.wait_all()
        w5_load(g, 7, 12, 38, 39, 80, "w2")
    stamp(3)
    a.wait_vm(("w1", 19))
    for g in range(20):
        q = 4 * g
        c = "0" if g == 0 else "v[24:27]"
        a(f"v_mfma_f32_16x16x32_bf16 v[24:27], v[{64+q}:{67+q}], a[{q}:{q+3}], {c}")
    a("s_mov_b32 exec_lo, 0x00ff00ff")
    a("s_mov_b32 exec_hi, 0xff00ff00")
    a("ds_write_b128 v54, v[24:27]")
    a("s_mov_b64 exec, -1")
    a("s_waitcnt lgkmcnt(0)")
    a("s_barrier")
    for p in range(8):
        a(f"ds_read_b128 v[{64+4*p}:{67+4*p}], v55 offset:{p*256}")
    a("s_waitcnt lgkmcnt(0)")
    for p in range(1, 8):
        for k in (0, 2):
            a(f"v_pk_add_f32 v[{64+k}:{65+k}], v[{64+k}:{65+k}], v[{64+4*p+k}:{65+4*p+k}]")
    for k in range(4):
        v = 64 + k
        rbf(v)
        if k & 1:
            a(f"v_and_b32 v3, 0xffff0000, v{46+k//2}")
        else:
            a(f"v_lshlrev_b32 v3, 16, v{46+k//2}")
        a(f"v_add_f32 v{v}, v{v}, v3")
        rbf(v)
        a(f"v_mul_f32 v3, v{v}, v{v}")
        a(f"v_mul_f32 v3, {f32(0.044715)}, v3")
        a("v_add_f32 v3, 1.0, v3")
        a(f"v_mul_f32 v3, v3, v{v}")
        a(f"v_mul_f32 v3, {f32(-2*math.sqrt(2/math.pi)*math.log2(math.e))}, v3")
        a("v_exp_f32 v3, v3")
        a("v_add_f32 v3, 1.0, v3")
        a("v_rcp_f32 v3, v3")
        a(f"v_mul_f32 v{v}, v{v}, v3")
    a.wait_all()
    stamp(4)
    phase5(64, 20, 80, 72, 51, 43)
    stamp(5)
    a("s_cmp_lg_u32 s3, 0")
    a("s_cbranch_scc1 L_F_end")
    a("s_cmp_ge_u32 s35, 20")
    a("s_cbranch_scc1 L_F_end")
    a.wait_all()

    def z_gather(name, base, n, cnt):
        a("s_lshl_b32 s41, s35, 7")
        a(f"s_add_u32 s41, s41, {base}")
        a("s_mov_b32 s28, 0")
        a(f"L_Z_{name}:")
        a("s_mov_b32 s27, s41")
        a(f"s_add_u32 s29, s29, {cnt}")
        for k in range(n):
            a(f"buffer_load_dwordx4 v[{64+4*k}:{67+4*k}], v56, s[16:19], s27 offen sc1")
            if k < n - 1:
                a("s_add_u32 s27, s27, 20480")
        a("s_add_u32 s28, s28, 1")
        a(f"s_waitcnt vmcnt({n-2})")
        a("v_max_u32 v3, v67, v71")
        for kk in (0, 2):
            a(f"v_pk_add_f32 v[{60+kk}:{61+kk}], v[{64+kk}:{65+kk}], v[{68+kk}:{69+kk}]")
        for k in range(2, n):
            a(f"s_waitcnt vmcnt({n-1-k})")
            a(f"v_max_u32 v3, v3, v{67+4*k}")
            for kk in (0, 2):
                a(f"v_pk_add_f32 v[{60+kk}:{61+kk}], v[{60+kk}:{61+kk}], v[{64+4*k+kk}:{65+4*k+kk}]")
        a("v_cmp_eq_u32 vcc, -1, v3")
        a(f"s_cbranch_vccnz L_Z_{name}_r")
        a(f"L_Z_{name}_ok:")
        slow.append(f"""L_Z_{name}_r:
            s_cmp_lt_u32 s28, {SPIN}
            s_cbranch_scc1 L_Z_{name}
            s_branch L_Z_{name}_ok""")
        a("v_permlane32_swap_b32 v60, v62")
        a("v_permlane32_swap_b32 v61, v63")
        a("v_add_f32 v60, v60, v62")
        a("v_add_f32 v61, v61, v63")
        a("v_permlane16_swap_b32 v60, v61")
        a("v_add_f32 v60, v60, v61")
        a("v_add_f32 v60, v60, v60 row_ror:8 row_mask:0xf bank_mask:0xf")
        rbf(60)

    z_gather("y", XY, 3, 1)
    a("v_lshlrev_b32 v50, 16, v50")
    a("v_add_f32 v50, v50, v60")
    rbf(50)
    a(f"v_mul_f32 v3, {f32(-math.log2(math.e))}, v50")
    a("v_exp_f32 v3, v3")
    a("v_add_f32 v3, 1.0, v3")
    a("v_rcp_f32 v3, v3")
    a("v_mul_f32 v50, v50, v3")
    rbf(50)
    a("v_lshlrev_b32 v49, 16, v49")
    stamp(6)
    z_gather("s", XS, 12, 0x100)
    a("v_mul_f32 v60, v60, v50")
    rbf(60)
    a("v_add_f32 v60, v60, v49")
    a("v_cvt_pk_bf16_f32 v60, v60, v60")
    a("s_mov_b32 exec_lo, 0x00ff00ff")
    a("s_mov_b32 exec_hi, 0x00ff00ff")
    a("buffer_store_short v60, v48, s[80:83], s40 offen")
    stamp(7)
    a("s_cmp_lg_u32 s35, 0")
    a("s_cbranch_scc1 L_F_end")
    a("s_mov_b64 exec, 1")
    a("v_mov_b32 v8, s26")
    a("v_mov_b32 v9, 0")
    a(f"buffer_store_dword v8, v9, s[16:19], 0 offen offset:{EPOCH} sc1")
    a("L_F_end:")
    dump_stamps()
    a("s_endpgm")
    for blk in slow:
        a(blk)
    a("L_codeend:")

    body = fix_hazards(a.L)
    hdr = open("recurrent_scan__compressed_kv_cla__dense_activation_gelu__decode.s.ref").read().split("; Override launch")[0] if P.get("hdr", 1) else ""
    out = hdr
    out += f"; @launch grid=(256,1,1) block=(256,1,1) lds={LDS_SIZE}\n"
    out += f""".amdgcn_target "amdgcn-amd-amdhsa--gfx950"
.text
.globl {KN}
.p2align 8
.type {KN},@function
{KN}:
"""
    out += "\n".join(("" if l.endswith(":") or l.startswith(".") else "    ") + l for l in body)
    out += f"""
s_endpgm
.section .rodata,"a"
.p2align 6
.amdhsa_kernel {KN}
  .amdhsa_next_free_vgpr 512
  .amdhsa_next_free_sgpr 96
  .amdhsa_accum_offset 256
  .amdhsa_group_segment_fixed_size 0
  .amdhsa_kernarg_size 112
  .amdhsa_user_sgpr_count 2
  .amdhsa_user_sgpr_kernarg_segment_ptr 1
  .amdhsa_system_sgpr_workgroup_id_x 1
  .amdhsa_float_denorm_mode_32 3
.end_amdhsa_kernel
"""
    return out


def parse(spec):
    kw = {}
    for p in spec.split(","):
        if "=" in p:
            k, v = p.split("=")
            kw[k] = int(v) if v.lstrip("-").isdigit() else v.replace("+", " ").replace("_", "")
    return kw


if __name__ == "__main__":
    out = sys.argv[1]
    kw = parse(sys.argv[2]) if len(sys.argv) > 2 else {}
    open(out, "w").write(gen(**kw))
```

```python
import sys, struct, math
from asmlib import Asm, fix_hazards

KN = "recurrent_scan__compressed_kv_cla__dense_activation_gelu__decode_kernel"


def f32(x):
    return hex(struct.unpack("<I", struct.pack("<f", x))[0])


EPOCH = 0
FLAGS = 0x4000
XH = 0x8000
XQ = 0x10000
XM = 0x30000
XP = 0x40000
XC = 0xC0000
XQA = 0x120000
XN2 = XQA + 49152
CLR0 = XN2 + 16384
XN3 = CLR0
XN5 = XN3 + 8192
XML = XN5 + 8192
XO = XML + 32768
XS = XO + 786432
XY = XS + 128 * 2560
CLR_END = XY + 32 * 2560
CLR_PER = 40960
assert CLR_END <= CLR0 + 32 * CLR_PER
STAMP = 0x400000
WS_SIZE = 0x10000000

R1 = 24608
R2 = 4 * R1
LDS_SIZE = R2 + 24576 + 1024
SPIN = 200000

DEF = dict(stamps=0, wnt="nt", local=1, rot=1, re=1,
           dQ=6, a_first=4, q_bar=1, dH1=7, nH1=0, dH=7, x1_wait=2, wo1=0, dV1=2, nV1=6, dV=7, n2=0,
           dC1=3, nC1=0, dC=7, a_flag_at=20, a_x2_wait=2, l2_pre=0, rr=2, l2b_w=3, l2b_mid=3, p_ahead=9, tr_in=4,
           n3_step=14, n5_pos=1, h_looks=10, a_looks=8, dF=2, dF2=5, qrot=1)


def gen(**kw):
    P = dict(DEF)
    P.update(kw)
    a = Asm()
    NT = P["wnt"]
    RE = P["local"] and P["re"]

    def stamp(i, fine=None):
        if not P["stamps"]:
            return
        if fine is None:
            if P["stamps"] != 1 and (role[0] == "A" or P["stamps"] == 3) and 0 < i < 15:
                return
        elif fine != P["stamps"]:
            return
        a(f"s_memrealtime s[{48+2*i}:{49+2*i}]")
        if fine is None and 0 < i < 15 and P.get("stop" + role[0]) == i:
            a("s_waitcnt vmcnt(0)")
            dump_stamps()
            a("s_endpgm")
            a(f"L_dead_{role[0]}:")

    role = ["H"]

    def dump_stamps():
        if not P["stamps"]:
            return
        stamp(15)
        a("s_waitcnt lgkmcnt(0)")
        a("s_mov_b64 exec, -1")
        a("v_mov_b32 v250, 0")
        for i in range(16):
            a(f"v_writelane_b32 v250, s{48+2*i}, {i}")
        a("v_writelane_b32 v250, s29, 16")
        a("s_lshl_b32 s27, s2, 2\ns_add_u32 s27, s27, s3\ns_lshl_b32 s27, s27, 7")
        a(f"s_add_u32 s27, s27, {STAMP}")
        a("v_lshlrev_b32 v251, 2, v1")
        a("s_mov_b32 exec_hi, 0")
        a("buffer_store_dword v250, v251, s[16:19], s27 offen")

    def srd(reg, size):
        a(f"s_mov_b32 s{reg+2}, {size}")
        a(f"s_mov_b32 s{reg+3}, 0x20000")

    def common_ids():
        a("v_lshrrev_b32 v2, 6, v0")
        a("v_and_b32 v1, 63, v0")
        a("v_readfirstlane_b32 s3, v2")
        a("s_and_b32 s24, s2, 7")
        srd(16, WS_SIZE)
        a("s_mov_b32 s29, 0")
        if P.get("stop" + role[0]) == 0:
            a("s_waitcnt lgkmcnt(0)")
            for i in range(1, 16):
                a(f"s_mov_b64 s[{48+2*i}:{49+2*i}], 0")
            dump_stamps()
            a("s_endpgm")
            a(f"L_dead_{role[0]}:")
        if P["stamps"] and P["stamps"] != 3:
            for i in range(1, 16):
                a(f"s_mov_b64 s[{48+2*i}:{49+2*i}], 0")

    def load_epoch():
        a(f"s_load_dword s26, s[16:17], {EPOCH}")
        a("s_load_dwordx2 s[30:31], s[0:1], 96")

    def make_tag():
        a("s_mul_i32 s26, s26, 0x9e3779b1")
        a("s_add_u32 s26, s26, 0x7f4a7c15")

    def rbf(v, t=None):
        a(f"v_cvt_pk_bf16_f32 v{v}, v{v}, v{v}")
        a(f"v_and_b32 v{v}, 0xffff0000, v{v}")

    def wave_sum(v, s):
        for m in ("quad_perm:[1,0,3,2] row_mask:0xf", "quad_perm:[2,3,0,1] row_mask:0xf", "row_half_mirror row_mask:0xf",
                  "row_mirror row_mask:0xf", "row_bcast:15 row_mask:0xa", "row_bcast:31 row_mask:0xc"):
            a(f"v_add_f32 v{v}, v{v}, v{v} {m} bank_mask:0xf")
        a(f"v_readlane_b32 s{s}, v{v}, 63")

    def x_stats_loads(v):
        a("v_lshlrev_b32 v3, 4, v1")
        a("v_lshlrev_b32 v4, 2, v1")
        a.vmem(f"buffer_load_dwordx4 v[{v}:{v+3}], v3, s[4:7], 0 offen", "x")
        a.vmem(f"buffer_load_dword v{v+4}, v4, s[4:7], 0 offen offset:1024", "x")

    def ln_stats(v, t):
        for j in range(5):
            a(f"v_lshlrev_b32 v{t+2*j}, 16, v{v+j}")
            a(f"v_and_b32 v{t+2*j+1}, 0xffff0000, v{v+j}")
        a(f"v_add_f32 v{t+10}, v{t}, v{t+1}")
        for j in range(2, 10):
            a(f"v_add_f32 v{t+10}, v{t+10}, v{t+j}")
        wave_sum(t + 10, 32)
        a(f"v_mov_b32 v{t+10}, {f32(1/640)}")
        a(f"v_mul_f32 v{t+10}, s32, v{t+10}")
        for j in range(10):
            a(f"v_sub_f32 v{t+j}, v{t+j}, v{t+10}")
        a(f"v_mul_f32 v{t+11}, v{t}, v{t}")
        for j in range(1, 10):
            a(f"v_fmac_f32 v{t+11}, v{t+j}, v{t+j}")
        wave_sum(t + 11, 33)
        a(f"v_mov_b32 v{t+11}, {f32(1/640)}")
        a(f"v_mul_f32 v{t+11}, s33, v{t+11}")
        rbf(t + 10)
        rbf(t + 11)
        a(f"v_add_f32 v{t+11}, {f32(1e-5)}, v{t+11}")
        rbf(t + 11)
        a(f"v_sqrt_f32 v{t+11}, v{t+11}")
        a(f"v_readfirstlane_b32 s32, v{t+10}")
        rbf(t + 11)
        a(f"v_rcp_f32 v{t+10}, v{t+11}")
        a(f"v_readfirstlane_b32 s33, v{t+11}")
        a(f"v_readfirstlane_b32 s34, v{t+10}")

    def normalize(v, t):
        a(f"v_subrev_f32 v{v}, s32, v{v}")
        rbf(v)
        a(f"v_mul_f32 v{t}, s34, v{v}")
        a(f"v_fma_f32 v{v}, -v{t}, s33, v{v}")
        a(f"v_fmac_f32 v{t}, s34, v{v}")
        a(f"v_cvt_pk_bf16_f32 v{v}, v{t}, v{t}")

    def sel_masks(m, t):
        a(f"v_and_b32 v{t}, 1, v1")
        a(f"v_lshlrev_b32 v{t}, 4, v{t}")
        a(f"v_mov_b32 v{t+1}, 0xffff")
        a(f"v_lshlrev_b32 v{t}, v{t}, v{t+1}")
        a(f"v_bfe_u32 v{t+1}, v1, 1, 2")
        for d in range(4):
            a(f"v_cmp_eq_u32 vcc, {d}, v{t+1}")
            a(f"v_cndmask_b32 v{m+d}, 0, v{t}, vcc")

    def flag_load(lvl):
        a(f"s_load_dword s92, s[30:31], {128*lvl}")

    slow = []

    def cap(f, *args):
        main = a.L
        a.L = []
        f(*args)
        r = a.L
        a.L = main
        return r

    LOC = "" if P["local"] else " sc1"

    def only_if(vd, cond, nl, vsrc):
        a(f"s_cmp_eq_u32 s{cond}, 0")
        a(f"s_cselect_b32 s27, {nl}, 0")
        a("v_cmp_gt_u32 vcc, s27, v1")
        a(f"v_mov_b32 v{vd}, 0x20000000")
        a(f"v_cndmask_b32 v{vd}, v{vd}, v{vsrc}, vcc")

    def notice(va, soff):
        a.vmem(f"buffer_atomic_add v161, v{va}, s[16:19], s{soff} offen sc1", "note")

    def poll_cnt(name, offs, target, cnt):
        a("s_mov_b32 s28, 0")
        a(f"L_{name}:")
        for i, o in enumerate(offs):
            a(f"s_load_dword s{92+i}, s[90:91], {o} glc")
        a("s_add_u32 s28, s28, 1")
        if cnt:
            a(f"s_add_u32 s29, s29, {cnt}")
        a(f"s_cmp_ge_u32 s28, {SPIN}")
        a("s_waitcnt lgkmcnt(0)")
        a(f"s_cbranch_scc1 L_{name}_out")
        for i in range(1, len(offs)):
            a(f"s_min_i32 s92, s92, s{92+i}")
        a(f"s_cmp_lt_i32 s92, {target}")
        a(f"s_cbranch_scc1 L_{name}")
        a(f"L_{name}_out:")

    def cnt_base(sreg):
        a(f"s_add_u32 s90, s16, s{sreg}")
        a("s_addc_u32 s91, s17, 0")

    def pop_n(fill, n):
        while fill and (n > 0 or fill[0].startswith(("s_cselect", "s_addc", "s_cbranch"))):
            a(fill.pop(0))
            n -= 1

    def throttle(d):
        if len(a.vm) > d:
            a.wait_vm_n(d)

    def flag_check(name, lvl):
        a("s_cmp_lt_u32 s92, 32")
        a(f"s_cbranch_scc1 L_{name}_fslow")
        a(f"L_{name}_fok:")
        slow.append(f"""L_{name}_fslow:
            s_mov_b32 s28, 0
            v_mov_b32 v252, 0
            L_{name}_floop:
            s_add_u32 s29, s29, 0x10000
            global_load_dword v253, v252, s[30:31] offset:{128*lvl} sc1
            s_add_u32 s28, s28, 1
            s_waitcnt vmcnt(0)
            v_cmp_gt_u32 vcc, 32, v253
            s_cbranch_vccz L_{name}_fok
            s_cmp_lt_u32 s28, {SPIN}
            s_cbranch_scc1 L_{name}_floop
            s_branch L_{name}_fok""")

    def phase5(vin, vmask, wreg, vt, lds_s, s_out, ng=4, hook=None):
        acc = vt + 16
        for t in range(ng):
            a(f"v_cvt_pk_bf16_f32 v{vin+t}, v{vin+t}, v{vin+t}")
        for d in range(4):
            a(f"v_and_b32 v{vt+d}, v{vin}, v{vmask+d}")
        for t in range(ng):
            if hook:
                hook(t + 1)
            for b in range(5):
                q = wreg + 4 * (t * 5 + b)
                c = "0" if t == 0 else f"v[{acc+4*b}:{acc+4*b+3}]"
                a(f"v_mfma_f32_16x16x32_bf16 v[{acc+4*b}:{acc+4*b+3}], v[{vt+4*t}:{vt+4*t+3}], a[{q}:{q+3}], {c}")
                if t + 1 < ng and b < 2:
                    for d in (2 * b, 2 * b + 1):
                        a(f"v_and_b32 v{vt+4*(t+1)+d}, v{vin+t+1}, v{vmask+d}")
        if hook:
            hook(ng + 1)
        a("s_mov_b32 exec_hi, 0")
        for b in range(5):
            a(f"ds_write_b128 v{lds_s}, v[{acc+4*b}:{acc+4*b+3}] offset:{b*512}")
        a("s_mov_b32 exec_hi, 0xff")
        if hook:
            hook(ng + 2)
        a("s_waitcnt lgkmcnt(0)")
        a("s_barrier")
        for w in range(4):
            a(f"ds_read_b128 v[{vt+4*w}:{vt+4*w+3}], v{lds_s+1} offset:{w*2560}")
        a("s_waitcnt lgkmcnt(2)")
        for k in (0, 2):
            a(f"v_pk_add_f32 v[{vt+k}:{vt+k+1}], v[{vt+k}:{vt+k+1}], v[{vt+4+k}:{vt+5+k}]")
        a("s_waitcnt lgkmcnt(0)")
        for k in (0, 2):
            a(f"v_pk_add_f32 v[{vt+8+k}:{vt+9+k}], v[{vt+8+k}:{vt+9+k}], v[{vt+12+k}:{vt+13+k}]")
        for k in (2, 0):
            a(f"v_pk_add_f32 v[{vt+k}:{vt+k+1}], v[{vt+k}:{vt+k+1}], v[{vt+8+k}:{vt+9+k}]")
        a(f"v_min_u32 v{vt+3}, -2, v{vt+3}")
        a.vmem(f"buffer_store_dwordx4 v[{vt}:{vt+3}], v{lds_s+2}, s[16:19], s{s_out} offen sc1", "pub")
        a("s_mov_b64 exec, -1")

    def phase5_addrs(lds_s, base, t):
        a(f"v_and_b32 v{t}, 15, v1")
        a(f"v_lshlrev_b32 v{t}, 5, v{t}")
        a(f"v_and_b32 v{t+1}, 16, v1")
        a(f"s_mul_i32 s27, s3, 2560")
        a(f"s_add_u32 s27, s27, {base}")
        a(f"v_add3_u32 v{lds_s}, v{t}, v{t+1}, s27")
        a(f"s_mul_i32 s27, s3, 640")
        a(f"v_lshl_add_u32 v{lds_s+2}, v1, 4, s27")
        a(f"v_add_u32 v{lds_s+1}, {base}, v{lds_s+2}")

    def tail_setup(sn, vj, vg, vt):
        phase5_addrs(156, R2 + 14336, vt)
        a(f"v_mul_u32_u24 v{vt}, 1280, v{vg}")
        a(f"v_lshl_add_u32 v159, v{vj}, 4, v{vt}")
        a(f"v_lshlrev_b32 v{vt}, 10, v{vj}")
        a(f"v_lshl_add_u32 v160, v{vg}, 4, v{vt}")
        a(f"s_lshr_b32 s87, s{sn}, 2")
        a("s_lshl_b32 s27, s24, 2")
        a("s_add_u32 s87, s87, s27")
        a(f"s_and_b32 s27, s{sn}, 3")
        a("s_lshl_b32 s27, s27, 2")
        a("s_add_u32 s27, s27, s3")
        a("s_mul_i32 s84, s87, 48")
        a("s_add_u32 s84, s84, s27")
        a("s_mulk_i32 s84, 5120")
        a(f"s_add_u32 s85, s84, {64*1280}")
        a(f"s_add_u32 s86, s84, {128*1280}")
        a("s_mulk_i32 s87, 12288")
        a("s_lshl_b32 s27, s27, 6")
        a("s_add_u32 s87, s87, s27")
        a(f"s_add_u32 s87, s87, {XC}")
        a("s_lshl_b32 s88, s24, 4")
        a(f"s_add_u32 s88, s88, s{sn}")
        a("s_lshl_b32 s83, s24, 7")
        a(f"s_add_u32 s83, s83, {XN5}")
        a("s_mulk_i32 s88, 2560")
        a(f"s_add_u32 s88, s88, {XS}")
        for k in range(3):
            a(f"v_mov_b32 v{164+k}, 0")
        a("v_mov_b32 v161, 1")
        a(f"v_lshlrev_b32 v{vt}, 10, v1")
        only_if(162, 3, 8, vt)

    def wo_load(n):
        q = 192 + 4 * n
        a.vmem(f"buffer_load_dwordx4 a[{q}:{q+3}], v159, s[20:23], s{84+n//5} offen offset:{(n%5)*256} {NT}", "wo")

    def tail():
        re = "buffer_store_dwordx4 v[28:31], v163, s[16:19], s43 offen sc1"
        a("L_T:")
        a("s_mov_b32 exec_lo, 0x0fff0fff")
        a("s_mov_b32 exec_hi, 0x0fff0fff")
        a("s_mov_b32 s28, 0")
        stamp(13)
        a("L_T_x4:")
        a("buffer_load_dwordx4 v[164:167], v160, s[16:19], s87 offen sc1")
        a("s_add_u32 s28, s28, 1")
        a.wait_all()
        a("v_cmp_ne_u32 vcc, s26, v167")
        a("s_cbranch_vccnz L_T_x4_retry")
        a("L_T_x4_ok:")
        slow.append(f"""L_T_x4_retry:
            s_cmp_lg_u32 s28, {P['h_looks']}
            s_cbranch_scc1 L_T_x4_nore
            s_mov_b64 exec, -1
            {re}
            s_mov_b32 exec_lo, 0x0fff0fff
            s_mov_b32 exec_hi, 0x0fff0fff
            L_T_x4_nore:
            s_cmp_lt_u32 s28, {SPIN}
            s_cbranch_scc1 L_T_x4
            s_branch L_T_x4_ok""")
        a("s_mov_b64 exec, -1")
        stamp(14)

        def n5(pos):
            if pos == P["n5_pos"]:
                notice(162, 83)

        n5(0)
        for m in ("quad_perm:[1,0,3,2]", "quad_perm:[2,3,0,1]", "row_half_mirror", "row_mirror"):
            for k in range(3):
                a(f"v_add_f32 v{164+k}, v{164+k}, v{164+k} {m} row_mask:0xf bank_mask:0xf")
        phase5(164, 152, 192, 168, 156, 88, ng=3, hook=n5)
        if RE:
            a(re)

    def x_loads():
        a("v_lshlrev_b32 v7, 1, v2")
        a("s_mul_i32 s35, s46, 80")
        x_stats_loads(8)
        for g in range(5):
            a.vmem(f"buffer_load_ushort v{13+g}, v7, s[4:7], s35 offen offset:{16*g}", "x")

    def tile40_load(n, areg, va, srdr, tag):
        g, t = n // 3, n % 3
        q = areg + n * 4
        a.vmem(f"buffer_load_dwordx4 a[{q}:{q+3}], v{va}, s[{srdr}:{srdr+3}], s44 offen offset:{t*128} {NT}", (tag, g))
        if t == 2 and g < 4:
            a("s_add_u32 s44, s44, s45")

    def ln_part():
        ln_stats(8, 24)
        for g in range(5):
            a(f"v_lshlrev_b32 v{13+g}, 16, v{13+g}")
            normalize(13 + g, 3)
            for d in range(4):
                a(f"v_and_b32 v{24+4*g+d}, v{13+g}, v{152+d}")
        a("v_bfe_u32 v3, v1, 3, 1")
        a("v_mul_u32_u24 v3, 768, v3")
        a("v_lshl_add_u32 v3, v5, 5, v3")
        a("v_and_b32 v4, 16, v1")
        a("s_mul_i32 s28, s3, 1536")
        a(f"s_add_u32 s28, s28, {R2}")
        a("v_add3_u32 v22, v3, v4, s28")
        a("v_lshlrev_b32 v23, 2, v1")
        a(f"v_add_u32 v23, {R2}, v23")
        a("v_lshlrev_b32 v10, 4, v1")

    def tile40_finish(name, areg, tag, nxt, nfirst, depth, dst, slot, flags, before_bar=None):
        done = [0]

        def ready():
            while done[0] < 5 and (tag, done[0]) not in a.vm:
                g = done[0]
                for t in range(3):
                    q = areg + (g * 3 + t) * 4
                    c = "0" if g == 0 else f"v[{44+4*t}:{47+4*t}]"
                    a(f"v_mfma_f32_16x16x32_bf16 v[{44+4*t}:{47+4*t}], v[{24+4*g}:{27+4*g}], a[{q}:{q+3}], {c}")
                done[0] += 1

        ready()
        for k in range(nfirst):
            throttle(depth)
            nxt()
            ready()
        while done[0] < 5:
            a.wait_vm((tag, done[0]))
            ready()
        if before_bar:
            before_bar()
        a("s_mov_b32 exec_lo, 0x00ff00ff")
        a("s_mov_b32 exec_hi, 0xff00ff00")
        for t in range(3):
            a(f"ds_write_b128 v22, v[{44+4*t}:{47+4*t}] offset:{t*256}")
        a("s_mov_b64 exec, -1")
        a("s_waitcnt lgkmcnt(0)")
        a("s_barrier")
        a("s_cmp_lg_u32 s3, 0")
        a(f"s_cbranch_scc1 L_{name}_nopub")
        for k in range(12):
            a(f"ds_read2st64_b32 v[{64+2*k}:{65+2*k}], v23 offset0:{2*k} offset1:{2*k+1}")
        a(f"v_mov_b32 v{dst+3}, s26")
        a("s_waitcnt lgkmcnt(6)")
        for t in range(3):
            a(f"v_add_f32 v{dst+t}, v{64+t}, v{67+t}")
        for p in (2, 3):
            for t in range(3):
                a(f"v_add_f32 v{dst+t}, v{dst+t}, v{64+3*p+t}")
        a("s_waitcnt lgkmcnt(0)")
        for p in range(4, 8):
            for t in range(3):
                a(f"v_add_f32 v{dst+t}, v{dst+t}, v{64+3*p+t}")
        a(f"buffer_store_dwordx4 v[{dst}:{dst+3}], v10, s[16:19], s{slot} offen{flags}")
        a(f"L_{name}_nopub:")

    stamp(0)
    a("s_cmpk_ge_u32 s2, 256")
    a("s_cbranch_scc1 L_exit")
    a("s_load_dwordx2 s[4:5], s[0:1], 0")
    a("s_load_dwordx2 s[8:9], s[0:1], 16")
    a("s_load_dwordx2 s[12:13], s[0:1], 24")
    a("s_load_dwordx2 s[16:17], s[0:1], 104")
    a("s_getpc_b64 s[30:31]")
    a("L_pc:")
    a("v_lshlrev_b32 v5, 7, v0")
    a("v_min_u32 v5, L_codeend-L_pc-4, v5")
    a("global_load_dword v255, v5, s[30:31]")
    a("s_lshr_b32 s25, s2, 3")
    a("s_cmp_lt_u32 s25, 16")
    a("s_cbranch_scc1 L_A")
    a("s_cmp_ge_u32 s25, 28")
    a("s_cbranch_scc1 L_F")

    a.vm = []
    common_ids()
    srd(12, 9437184)
    a("s_sub_u32 s25, s25, 16")
    a("v_lshrrev_b32 v2, 3, v1")
    a("v_and_b32 v5, 7, v1")
    a("v_lshrrev_b32 v4, 5, v1")
    a("v_and_b32 v3, 3, v2")
    a("v_lshl_add_u32 v4, v4, 3, v3")
    a("v_mul_u32_u24 v4, 12288, v4")
    a("v_lshrrev_b32 v3, 1, v2")
    a("v_xor_b32 v3, v3, v5")
    a("v_lshl_add_u32 v6, v3, 4, v4")
    a("v_xor_b32 v7, 64, v6")
    a(f"v_add_u32 v7, {16*12288}, v7")
    a(f"s_mul_i32 s35, s25, {64*12288}")
    a("s_lshl_b32 s36, s24, 2")
    a("s_add_u32 s36, s36, s3")
    a("s_mul_i32 s27, s36, 384")
    a("s_add_u32 s35, s35, s27")
    a(f"s_mul_i32 s37, s3, {R1}")
    a("s_mov_b32 m0, s37")
    a("s_movk_i32 s38, 896")
    a("s_movk_i32 s39, 1280")
    a(f"s_mov_b32 s40, {4*12288}")
    a("s_waitcnt lgkmcnt(0)")
    tn = [0]

    def tile_dma(srdr, xor, tag, grp):
        n = tn[0]
        par, t = (n // 3) & 1, n % 3
        a.vmem(f"buffer_load_dwordx4 v{6+par}, s[{srdr}:{srdr+3}], s35 offen offset:{t*128} {NT} lds", (tag, n // grp))
        a(f"s_add_u32 m0, m0, s{39 if t == 2 else 38}")
        if n % 6 == 5 and n < 23:
            a("s_add_u32 s35, s35, s40")
            a(f"s_xor_b32 s40, s40, {xor}")
        tn[0] += 1

    XR = (4*12288) ^ (28*12288)
    uk = lambda: tile_dma(12, XR, "uk", 6)

    def h_setup():
        load_epoch()
        a("s_load_dwordx2 s[8:9], s[0:1], 32")
        a("s_load_dwordx2 s[20:21], s[0:1], 40")
        a("v_lshlrev_b32 v10, 4, v1")
        sel_masks(152, 3)
        a("v_and_b32 v2, 15, v1")
        a("v_lshrrev_b32 v3, 4, v1")
        a("v_lshrrev_b32 v4, 3, v2")
        a("v_mul_u32_u24 v4, 3072, v4")
        a("v_and_b32 v5, 7, v2")
        a("v_lshl_add_u32 v4, v5, 7, v4")
        a("v_lshrrev_b32 v5, 1, v2")
        a("v_xor_b32 v5, v5, v3")
        a("v_lshl_add_u32 v4, v5, 4, v4")
        a("v_add_u32 v8, s37, v4")
        a("v_xad_u32 v9, v4, 64, s37")
        a("s_lshl_b32 s41, s36, 12")
        a(f"s_add_u32 s41, s41, {XQ}")
        a("s_lshl_b32 s27, s3, 9")
        a(f"s_add_u32 s27, s27, {R2+12288}")
        a("v_lshl_add_u32 v11, v1, 1, s27")
        a("v_lshl_add_u32 v12, v3, 4, s27")
        a("v_lshrrev_b32 v4, 1, v3")
        a("v_lshl_add_u32 v4, v2, 1, v4")
        a("v_lshlrev_b32 v4, 10, v4")
        a("v_and_b32 v5, 1, v3")
        a("v_lshl_add_u32 v13, v5, 6, v4")
        a("s_lshl_b32 s42, s25, 12")
        a("s_lshl_b32 s27, s24, 7")
        a("s_add_u32 s42, s42, s27")
        a("s_lshl_b32 s27, s3, 4")
        a("s_add_u32 s42, s42, s27")
        a(f"s_add_u32 s42, s42, {XQA}")
        tail_setup(25, 2, 3, 4)
        a("v_mov_b32 v163, v10")
        a("v_lshlrev_b32 v4, 9, v1")
        only_if(150, 3, 32, 4)
        a("s_lshr_b32 s82, s24, 1")
        a("s_lshl_b32 s82, s82, 7")
        a(f"s_add_u32 s82, s82, {XN2}")
        a("s_waitcnt lgkmcnt(0)")
        make_tag()
        srd(8, 9437184)
        srd(20, 7864320)

    def uk_read(T):
        for kk in range(6):
            q = (T * 6 + kk) * 4
            a(f"ds_read_b128 a[{q}:{q+3}], v{8+(kk&1)} offset:{T*6144+(kk>>1)*1024}")

    def xq_loads(tag):
        for mq in range(4):
            t = f"buffer_load_dwordx4 v[{16+4*mq}:{19+4*mq}], v10, s[16:19], s41 offen offset:{mq*1024} sc1"
            if tag:
                a.vmem(t, tag)
            else:
                a(t)

    def xq_check():
        a("v_cmp_ne_u32 vcc, s26, v19")
        a("v_cmp_ne_u32 s[92:93], s26, v23")
        a("v_cmp_ne_u32 s[94:95], s26, v27")
        a("s_or_b64 s[92:93], s[92:93], vcc")
        a("v_cmp_ne_u32 vcc, s26, v31")
        a("s_or_b64 s[92:93], s[92:93], s[94:95]")
        a("s_or_b64 vcc, vcc, s[92:93]")

    first = True
    while tn[0] < 24:
        d = P["dH1"] if tn[0] < P["nH1"] else P["dH"]
        if first and len(a.vm) > d:
            h_setup()
            first = False
        throttle(d)
        uk()
    assert not first
    stamp(1)
    rd = [0]

    def uk_ready():
        while rd[0] < 4 and ("uk", rd[0]) not in a.vm:
            uk_read(rd[0])
            rd[0] += 1

    won = 0
    uk_ready()
    throttle(P["x1_wait"])
    xq_loads("xq")
    flag_load(0)
    stamp(2)
    while won < P["wo1"]:
        wo_load(won)
        won += 1
    uk_ready()
    while rd[0] < 4:
        a.wait_vm(("uk", rd[0]))
        uk_ready()
    a.wait_vm("xq", " lgkmcnt(0)")
    flag_check("H", 0)
    stamp(3)
    xq_check()
    a("s_cbranch_scc1 L_H_xq_slow")
    a("L_H_xq_ok:")
    stamp(4)
    slow.append("\n".join(["L_H_xq_slow:", "s_mov_b32 s28, 0", "L_H_xq_loop:", "s_add_u32 s29, s29, 1",
                           ] + cap(xq_loads, None) +
                          ["s_add_u32 s28, s28, 1", "s_waitcnt vmcnt(0)"] + cap(xq_check) +
                          ["s_cbranch_scc0 L_H_xq_ok", f"s_cmp_lt_u32 s28, {SPIN}", "s_cbranch_scc1 L_H_xq_loop", "s_branch L_H_xq_ok"]))
    for k in range(3):
        a(f"v_add_f32 v{16+k}, v{16+k}, v{20+k}")
        a(f"v_add_f32 v{24+k}, v{24+k}, v{28+k}")
    for k in range(3):
        a(f"v_add_f32 v{16+k}, v{16+k}, v{24+k}")
    a("v_cvt_pk_bf16_f32 v16, v16, v17")
    a("v_cvt_pk_bf16_f32 v18, v18, v18")
    a("ds_write_b16 v11, v16")
    a("ds_write_b16_d16_hi v11, v16 offset:128")
    a("ds_write_b16 v11, v18 offset:256")
    for kk in range(6):
        a(f"ds_read_b128 v[{32+4*kk}:{35+4*kk}], v12 offset:{kk*64}")
    for kk in range(6):
        a(f"s_waitcnt lgkmcnt({5-kk})")
        for T in range(4):
            q = (T * 6 + kk) * 4
            c = "0" if kk == 0 else f"v[{16+4*T}:{19+4*T}]"
            a(f"v_mfma_f32_16x16x32_bf16 v[{16+4*T}:{19+4*T}], a[{q}:{q+3}], v[{32+4*kk}:{35+4*kk}], {c}")
    a("v_cmp_eq_u32 vcc, 1, v2")
    a(f"s_mov_b32 s27, {f32(math.log2(math.e)/math.sqrt(192))}")
    a("s_mov_b32 exec_lo, 0x30003")
    a("s_mov_b32 exec_hi, 0x30003")
    for k in range(8):
        a(f"v_cndmask_b32 v{16+k}, v{16+k}, v{24+k}, vcc")
    for k in range(8):
        a(f"v_mul_f32 v{16+k}, s27, v{16+k}")
    for k in range(4):
        a(f"v_cvt_pk_bf16_f32 v{24+k}, v{16+2*k}, v{17+2*k}")
    a("v_min_u32 v27, -2, v27")
    a.vmem("buffer_store_dwordx4 v[24:27], v13, s[16:19], s42 offen sc1", "pub")
    a("s_mov_b64 exec, -1")
    stamp(5)
    a("s_barrier")
    if P["n2"]:
        notice(150, 82)
    stamp(6)
    a("s_cmp_lt_u32 s25, 8")
    a("s_cselect_b32 s44, 16, 4")
    a("s_cselect_b32 s45, 4, 8")
    a("s_cselect_b32 s40, 8, 48")
    a(f"s_cselect_b32 s46, {(8*12288) ^ (40*12288)}, 0")
    a("s_cselect_b32 s27, 1, 2")
    a(f"s_cselect_b32 s28, 0, {32*12288}")
    a("s_mulk_i32 s45, 12288")
    a("s_mulk_i32 s40, 12288")
    a("s_and_b32 s35, s25, 7")
    a("s_mul_i32 s35, s35, s27")
    a(f"s_mul_i32 s35, s35, {96*12288}")
    a("s_add_u32 s35, s35, s28")
    a("s_mul_i32 s27, s36, 384")
    a("s_add_u32 s35, s35, s27")
    a("v_lshrrev_b32 v4, 5, v1")
    a("v_bfe_u32 v5, v1, 3, 2")
    a("v_mad_u32_u24 v4, v4, s44, v5")
    a("v_mul_u32_u24 v4, 12288, v4")
    a("v_and_b32 v5, 2, v5")
    a("v_xor_b32 v5, v5, v1")
    a("v_and_b32 v5, 7, v5")
    a("v_lshl_add_u32 v6, v5, 4, v4")
    a("v_xad_u32 v7, v6, 64, s45")
    a("s_mov_b32 m0, s37")
    tn[0] = 0
    while tn[0] < 24:
        throttle(P["dV1"] if tn[0] < P["nV1"] else P["dV"])
        tile_dma(8, "s46", "uv", 12)
        if tn[0] == 20:
            flag_load(1)
    a("s_waitcnt lgkmcnt(0)")
    flag_check("H2", 1)
    a("v_mul_u32_u24 v4, 3072, v3")
    a("v_lshrrev_b32 v5, 2, v2")
    a("v_lshl_add_u32 v4, v5, 7, v4")
    a("v_and_b32 v5, 2, v5")
    a("v_and_b32 v12, 1, v3")
    a("v_lshl_or_b32 v5, v12, 2, v5")
    a("v_bfe_u32 v12, v1, 1, 1")
    a("v_or_b32 v5, v5, v12")
    a("v_lshl_add_u32 v4, v5, 4, v4")
    a("v_and_b32 v12, 1, v1")
    a("v_lshl_add_u32 v4, v12, 3, v4")
    a("v_add_u32 v8, s37, v4")
    a("v_xad_u32 v9, v4, 32, s37")
    a("v_xad_u32 v14, v4, 64, s37")
    a("v_xor_b32 v4, 64, v4")
    a("v_xad_u32 v15, v4, 32, s37")
    a("v_lshrrev_b32 v5, 3, v1")
    a("v_lshrrev_b32 v4, 1, v5")
    a("v_xor_b32 v4, v4, v1")
    a("v_and_b32 v4, 7, v4")
    a("v_lshlrev_b32 v4, 4, v4")
    a("v_mul_u32_u24 v5, 1536, v5")
    a("v_add_u32 v24, v4, v5")
    a("v_xor_b32 v4, 64, v4")
    a(f"v_add_u32 v4, {8*1536}, v4")
    a("v_add_u32 v25, v4, v5")
    a("s_mul_i32 s40, s36, 24576")
    a("s_lshl_b32 s27, s25, 7")
    a("s_add_u32 s40, s40, s27")
    a(f"s_add_u32 s40, s40, {XO}")
    a("s_lshl_b32 s41, s3, 11")
    a(f"s_add_u32 s41, s41, {R2+2048}")
    a("v_lshrrev_b32 v4, 1, v2")
    a("v_xor_b32 v4, v4, v3")
    a("v_lshlrev_b32 v4, 4, v4")
    a("v_lshl_add_u32 v5, v2, 7, s41")
    a("v_add_u32 v26, v4, v5")
    a("v_xad_u32 v27, v4, 64, v5")
    a("v_lshlrev_b32 v36, 10, v3")
    a("s_lshl_b32 s27, s25, 1")
    a("s_sub_u32 s27, s27, 16")
    a("s_cmp_lt_u32 s25, 8")
    a("s_cselect_b32 s27, s25, s27")
    a("s_cselect_b32 s89, 0, 128")
    a("s_lshl_b32 s42, s27, 12")
    a("s_lshl_b32 s28, s36, 3")
    a("s_add_u32 s42, s42, s28")
    a(f"s_add_u32 s42, s42, {XML}")
    a("s_lshl_b32 s28, s24, 3")
    a("s_add_u32 s27, s27, s28")
    a("s_lshl_b32 s27, s27, 7")
    a(f"s_add_u32 s27, s27, {XN3}")
    cnt_base(27)
    a("s_mul_i32 s43, s36, 12")
    a("s_add_u32 s43, s43, s25")
    a("s_lshl_b32 s43, s43, 10")
    a(f"s_add_u32 s43, s43, {XC}")
    a("v_mov_b32 v31, s26")
    tr_done = [0]

    def uv_ready():
        while tr_done[0] < 2 and ("uv", tr_done[0]) not in a.vm:
            st = tr_done[0]
            for T in range(12):
                for b in range(2):
                    q = (T * 2 + st) * 4 + 2 * b
                    a(f"ds_read_b64_tr_b16 a[{q}:{q+1}], v{(8, 9, 14, 15)[T&3]} offset:{st*12288+(T>>2)*1024+b*512}")
            tr_done[0] += 1

    uv_ready()
    while won < 15:
        throttle(P["dV"])
        wo_load(won)
        won += 1
    while tr_done[0] < 2:
        if ("uv", tr_done[0]) in a.vm:
            a.wait_vm(("uv", tr_done[0]))
        uv_ready()
    stamp(7)
    ML = 40
    OA = 48
    AC = 64

    def xml_loads():
        for r in range(4):
            a(f"buffer_load_dwordx2 v[{ML+2*r}:{ML+2*r+1}], v36, s[16:19], s42 offen offset:{r*256} sc1")

    def xml_chk(v):
        a(f"v_max3_u32 v{v}, v{ML+1}, v{ML+3}, v{ML+5}")
        a(f"v_max_u32 v{v}, v{v}, v{ML+7}")

    def weights():
        a(f"v_max3_f32 v4, v{ML}, v{ML+2}, v{ML+4}")
        a(f"v_max_f32 v4, v4, v{ML+6}")
        for sw in ("32", "16"):
            a("v_mov_b32 v5, v4")
            a(f"v_permlane{sw}_swap_b32 v4, v5")
            a("v_max_f32 v4, v4, v5")
        for r in range(4):
            a(f"v_sub_f32 v{16+r}, v{ML+2*r}, v4")
        for r in range(4):
            a(f"v_exp_f32 v{16+r}, v{16+r}")
        a(f"v_mul_f32 v4, v16, v{ML+1}")
        for r in range(1, 4):
            a(f"v_fmac_f32 v4, v{16+r}, v{ML+2*r+1}")
        for sw in ("32", "16"):
            a("v_mov_b32 v5, v4")
            a(f"v_permlane{sw}_swap_b32 v4, v5")
            a("v_add_f32 v4, v4, v5")
        a("v_rcp_f32 v4, v4")
        for r in range(4):
            a(f"v_mul_f32 v{16+r}, v{16+r}, v4")

    a("s_cmp_lg_u32 s3, 0")
    a("s_cbranch_scc1 L_H_n3_out")
    poll_cnt("H_n3", ["0", "s89"], 15, 0x100)
    a("s_barrier")
    stamp(10)
    a("s_mov_b32 s28, 0")
    a("L_H_x3:")
    a("s_mov_b32 m0, s41")
    a("s_add_u32 s28, s28, 1")
    a("buffer_load_dwordx4 v24, s[16:19], s40 offen sc1 lds")
    a("s_add_u32 m0, m0, 1024")
    a("s_add_u32 s29, s29, 0x1000000")
    a("buffer_load_dwordx4 v25, s[16:19], s40 offen sc1 lds")
    xml_loads()
    a("s_waitcnt vmcnt(4)")
    for st in range(2):
        a(f"ds_read_b128 v[{OA+4*st}:{OA+4*st+3}], v{26+st}")
    a("s_waitcnt vmcnt(0)")
    xml_chk(39)
    wl = cap(weights)
    for l in wl[:8]:
        a(l)
    wl = wl[8:]
    a("s_waitcnt lgkmcnt(0)")
    a(f"v_max3_u32 v39, v39, v{OA+1}, v{OA+3}")
    a(f"v_max3_u32 v39, v39, v{OA+5}, v{OA+7}")
    a("v_cmp_eq_u32 vcc, -1, v39")
    a("s_cbranch_vccnz L_H_x3_retry")
    a("L_H_x3_ok:")
    a.vm = []
    slow.append(f"""L_H_x3_retry:
        s_cmp_lt_u32 s28, {SPIN}
        s_cbranch_scc1 L_H_x3
        s_branch L_H_x3_ok""")
    stamp(8)
    fill = wl

    def post(T):
        o = [f"v_mul_f32 v{AC+4*T}, v16, v{AC+4*T}"]
        for r in range(1, 4):
            o.append(f"v_fmac_f32 v{AC+4*T}, v{16+r}, v{AC+4*T+r}")
        if T & 3 == 3:
            b = AC + 4 * (T - 3)
            o += [f"v_permlane32_swap_b32 v{b}, v{b+8}", f"v_permlane32_swap_b32 v{b+4}, v{b+12}",
                  f"v_add_f32 v{b}, v{b}, v{b+8}", f"v_add_f32 v{b+4}, v{b+4}, v{b+12}",
                  f"v_permlane16_swap_b32 v{b}, v{b+4}", f"v_add_f32 v{28+(T>>2)}, v{b}, v{b+4}"]
        return o

    LAG = 2
    for T in range(12):
        if T >= LAG:
            fill += post(T - LAG)
        for st in range(2):
            q = (T * 2 + st) * 4
            c = "0" if st == 0 else f"v[{AC+4*T}:{AC+4*T+3}]"
            a(f"v_mfma_f32_16x16x32_bf16 v[{AC+4*T}:{AC+4*T+3}], v[{OA+4*st}:{OA+4*st+3}], a[{q}:{q+3}], {c}")
            for k in range(2):
                if fill:
                    a(fill.pop(0))
    for T in range(12 - LAG, 12):
        fill += post(T)
    for l in fill:
        a(l)
    a(f"buffer_store_dwordx4 v[28:31], v10, s[16:19], s43 offen{LOC}")
    stamp(9)
    tail()
    dump_stamps()
    a("L_exit:")
    a("s_endpgm")

    a(".p2align 8")
    a("L_A:")
    role[0] = "A"
    a.vm = []
    common_ids()
    srd(4, 1280)
    srd(8, 7864320)
    a("v_lshrrev_b32 v2, 3, v1")
    a("v_and_b32 v5, 7, v1")
    a("v_mul_u32_u24 v6, 12288, v2")
    a("v_lshl_add_u32 v6, v5, 4, v6")
    a("s_and_b32 s46, s25, 3")
    a("s_lshl_b32 s46, s46, 2")
    a("s_add_u32 s46, s46, s3")
    a(f"s_mul_i32 s44, s46, {40*12288}")
    a("s_lshr_b32 s27, s25, 2")
    a("s_lshl_b32 s28, s24, 2")
    a("s_add_u32 s27, s27, s28")
    a("s_mul_i32 s27, s27, 384")
    a("s_add_u32 s44, s44, s27")
    a(f"s_mov_b32 s45, {8*12288}")
    a("s_waitcnt lgkmcnt(0)")
    x_loads()
    dQ = P["dQ"]
    wq = 0
    while wq < min(15, dQ + 1):
        tile40_load(wq, 0, 6, 8, "wq")
        wq += 1
    stamp(1)
    load_epoch()
    a("s_load_dwordx2 s[12:13], s[0:1], 8")
    a("s_load_dwordx2 s[84:85], s[0:1], 88")
    a("s_lshl_b32 s89, s24, 4")
    a("s_add_u32 s89, s89, s25")
    a("s_lshl_b32 s88, s89, 10")
    a(f"s_add_u32 s88, s88, {XQ}")
    sel_masks(152, 3)
    a("v_lshlrev_b32 v149, 4, v1")
    only_if(148, 3, 64, 149)
    a("v_lshrrev_b32 v3, 1, v2")
    a("v_xor_b32 v3, v3, v5")
    a("v_mul_u32_u24 v4, 1536, v2")
    a("v_lshl_add_u32 v62, v3, 4, v4")
    a("v_xor_b32 v63, 64, v62")
    a(f"v_add_u32 v63, {8*1536}, v63")
    a(f"s_mul_i32 s35, s89, {64*1536}")
    a("s_mul_i32 s28, s3, 384")
    a("s_add_u32 s35, s35, s28")
    for p in range(4):
        a(f"s_xor_b32 s28, s3, {p}")
        a(f"s_mul_i32 s28, s28, {16*1536}")
        a(f"s_add_u32 s{96+p}, s35, s28")
    a(f"s_mul_i32 s37, s3, {R1}")
    a("s_mov_b32 m0, s37")
    a("s_movk_i32 s100, 896")
    a("s_movk_i32 s101, 1280")
    a.wait_vm("x", " lgkmcnt(0)")
    make_tag()
    srd(12, 12582912)
    fill = cap(ln_part)
    rem = 15 - wq
    per = (len(fill) + rem) // (rem + 1) if rem else len(fill)
    while wq < 15:
        pop_n(fill, per)
        a.wait_vm_n(dQ)
        tile40_load(wq, 0, 6, 8, "wq")
        wq += 1
    for l in fill:
        a(l)
    a("s_load_dwordx2 s[8:9], s[0:1], 80")
    ck = [0]

    def ckv_dma():
        n = ck[0]
        p, par, t = n // 6, (n // 3) & 1, n % 3
        a.vmem(f"buffer_load_dwordx4 v{62+par}, s[12:15], s{96+p} offen offset:{t*128} lds", ("ck", n // 12))
        a(f"s_add_u32 m0, m0, s{101 if t == 2 else 100}")
        ck[0] += 1

    dck = lambda: P["dC1"] if ck[0] < P["nC1"] else P["dC"]
    tile40_finish("A_q", 0, "wq", ckv_dma, P["a_first"], dQ, 144, 88, LOC, lambda: stamp(2))
    if P["q_bar"]:
        a("s_barrier")
    stamp(3)
    for k in range(dck() + 1):
        throttle(dck())
        ckv_dma()
    a("s_lshl_b32 s27, s89, 2")
    a("s_add_u32 s27, s27, s3")
    a("s_lshl_b32 s42, s27, 10")
    a(f"s_add_u32 s42, s42, {XP}")
    a("s_lshl_b32 s43, s27, 7")
    a(f"s_add_u32 s43, s43, {XM}")
    a("v_lshrrev_b32 v3, 5, v1")
    a("v_lshlrev_b32 v32, 2, v1")
    a("v_lshl_or_b32 v32, v3, 29, v32")

    def a_setup():
        a("v_and_b32 v2, 31, v1")
        a("v_lshrrev_b32 v3, 5, v1")
        a("v_lshrrev_b32 v4, 3, v2")
        a("v_mul_u32_u24 v4, 3072, v4")
        a("v_lshl_add_u32 v4, v5, 7, v4")
        a("v_bfe_u32 v11, v2, 1, 3")
        a("v_xor_b32 v11, v11, v3")
        a("s_and_b32 s28, s25, 3" if P["qrot"] else "s_mov_b32 s28, 0")
        a("s_lshl_b32 s27, s28, 1")
        a("v_xor_b32 v11, s27, v11")
        a("v_lshl_add_u32 v4, v11, 4, v4")
        a("v_add_u32 v20, s37, v4")
        a("v_xad_u32 v21, v4, 32, s37")
        a("v_xad_u32 v22, v4, 64, s37")
        a("v_xor_b32 v4, 64, v4")
        a("v_xad_u32 v23, v4, 32, s37")
        a("v_lshrrev_b32 v4, 2, v2")
        a("v_lshlrev_b32 v4, 7, v4")
        a("v_lshl_add_u32 v4, v3, 6, v4")
        a("v_and_b32 v11, 3, v1")
        a("v_lshl_add_u32 v24, v11, 4, v4")
        for k in range(4):
            a(f"s_xor_b32 s27, s28, {k}")
            a(f"v_lshl_add_u32 v{224+k}, s27, 10, v24")
        a("s_mul_i32 s38, s3, 12288")
        a(f"s_add_u32 s38, s38, {XQA}")
        a("s_add_u32 s39, s38, 4096")
        a("s_add_u32 s40, s38, 8192")
        a("s_mov_b32 s27, 0x15555556")
        for m in range(3):
            a(f"v_add_u32 v4, {64*m}, v1")
            a("v_mul_hi_u32 v11, v4, s27")
            a(f"v_mul_u32_u24 v11, {1536-192}, v11")
            a(f"v_lshl_add_u32 v{25+m}, v4, 4, v11")
        a("s_lshr_b32 s27, s25, 3")
        a("s_lshl_b32 s35, s24, 1")
        a("s_add_u32 s35, s35, s27")
        a("s_and_b32 s36, s25, 7")
        a("s_lshl_b32 s27, s35, 2")
        a("s_add_u32 s27, s27, s3")
        a(f"s_mul_i32 s41, s27, {128*1536}")
        a("s_mul_i32 s27, s36, 192")
        a("s_add_u32 s41, s41, s27")
        a(f"s_movk_i32 s46, 1024")
        a(f"s_movk_i32 s47, {16*1536}")
        for p in range(1, 4):
            a(f"s_xor_b32 s27, s3, {p}")
            a("s_mul_i32 s27, s27, 6144")
            a(f"s_add_u32 s27, s27, {R2+(p-1)*2048}")
            a(f"v_add_u32 v{27+p}, s27, v10")
        a("s_mul_i32 s27, s3, 6144")
        a(f"s_add_u32 s27, s27, {R2}")
        a("v_add_u32 v31, s27, v10")
        a("v_and_b32 v18, 15, v1")
        a("v_lshrrev_b32 v19, 4, v1")
        a("v_lshlrev_b32 v4, 13, v19")
        a("v_lshl_add_u32 v33, v18, 4, v4")
        a("v_lshlrev_b32 v4, 10, v19")
        a("v_lshl_add_u32 v34, v18, 2, v4")
        for p in range(8):
            a(f"s_xor_b32 s27, s36, {p}" if P["rot"] else f"s_mov_b32 s27, {p}")
            a(f"v_lshl_add_u32 v{208+p}, s27, 10, v33")
            a(f"v_lshl_add_u32 v{216+p}, s27, 7, v34")
        a("s_lshr_b32 s27, s3, 1")
        a("s_and_b32 s28, s3, 1")
        a("s_lshl_b32 s44, s35, 15")
        a("s_lshl_b32 s20, s27, 8")
        a("s_add_u32 s44, s44, s20")
        a(f"s_add_u32 s44, s44, {XP}")
        a("s_lshl_b32 s20, s35, 12")
        a("s_lshl_b32 s21, s27, 6")
        a("s_add_u32 s20, s20, s21")
        a(f"s_add_u32 s20, s20, {XM}")
        a(f"v_mul_u32_u24 v4, {R1}, v19")
        a("v_lshrrev_b32 v11, 2, v18")
        a("v_mul_u32_u24 v11, 192, v11")
        a("v_add_u32 v4, v4, v11")
        a("v_and_b32 v11, 3, v1")
        a("v_lshl_add_u32 v4, v11, 3, v4")
        a("s_mul_i32 s21, s28, 96")
        a("v_add_u32 v35, s21, v4")
        a("v_lshl_add_u32 v36, v18, 2, v19")
        a("v_lshlrev_b32 v36, 2, v36")
        a("v_lshrrev_b32 v4, 2, v1")
        a("v_mul_u32_u24 v4, 24576, v4")
        a("v_lshl_add_u32 v37, v11, 4, v4")
        a("v_lshl_add_u32 v38, v11, 3, v4")
        a(f"s_mul_i32 s21, s27, {16*24576}")
        a("s_mul_i32 s22, s35, 1536")
        a("s_add_u32 s21, s21, s22")
        a(f"s_add_u32 s21, s21, {XO}")
        a("s_lshl_b32 s23, s36, 1")
        a("s_add_u32 s23, s23, s28")
        a("s_lshl_b32 s22, s23, 5")
        a("s_add_u32 s22, s22, s21")
        a("s_add_u32 s22, s22, 1024")
        a("s_lshl_b32 s28, s23, 6")
        a("s_add_u32 s21, s21, s28")
        a("s_lshl_b32 s35, s35, 8")
        a("s_lshl_b32 s27, s27, 7")
        a("s_add_u32 s35, s35, s27")
        a("s_lshl_b32 s27, s36, 12")
        a("s_add_u32 s35, s35, s27")
        a(f"s_add_u32 s35, s35, {XML}")
        for k in range(4):
            a(f"v_mov_b32 v{40+k}, 0x3f803f80")
        a("s_lshl_b32 s81, s36, 7")
        a(f"s_add_u32 s81, s81, {XN3}")
        a("v_mov_b32 v161, 1")
        a("v_lshlrev_b32 v4, 10, v1")
        only_if(162, 3, 8, 4)
        a("s_and_b32 s23, s3, 1")
        a("v_lshlrev_b32 v4, 3, v1")
        only_if(39, 23, 16, 4)
        a("s_lshr_b32 s27, s89, 2")
        a("s_lshl_b32 s27, s27, 9")
        a(f"s_add_u32 s27, s27, {XN2}")
        cnt_base(27)
        srd(8, 1280)
        srd(84, 1280)

    fill = cap(a_setup)
    rem = 24 - ck[0]
    per = (len(fill) + rem - 1) // rem
    while ck[0] < 24:
        pop_n(fill, per)
        throttle(dck())
        ckv_dma()
        if ck[0] == P["a_flag_at"]:
            flag_load(1)
    assert not fill
    stamp(4)
    if P["local"]:
        a.vmem("buffer_store_dwordx4 v[144:147], v148, s[16:19], s88 offen sc1", "re")
    CA = 160
    QA = 64
    SA = 112

    def ck_read(kt):
        for kk in range(12):
            q = CA + (kt * 12 + kk) * 4
            a(f"ds_read_b128 a[{q}:{q+3}], v{20+(kk&3)} offset:{kt*12288+(kk>>2)*1024}")

    def qa_load(kk):
        return f"buffer_load_dwordx4 v[{QA+4*kk}:{QA+4*kk+3}], v{224+(kk&3)}, s[16:19], s{38+(kk>>2)} offen sc1"

    def s_mfma(kk):
        for kt in range(2):
            q = CA + (kt * 12 + kk) * 4
            c = "0" if kk == 0 else f"v[{SA+16*kt}:{SA+16*kt+15}]"
            a(f"v_mfma_f32_32x32x16_bf16 v[{SA+16*kt}:{SA+16*kt+15}], a[{q}:{q+3}], v[{QA+4*kk}:{QA+4*kk+3}], {c}")

    l2 = [0]

    def l2_dma():
        n = l2[0]
        if n % 3 == 0:
            a(f"s_xor_b32 s45, s36, {n//3}" if P["rot"] else f"s_mov_b32 s45, {n//3}")
            a("s_mul_i32 s45, s45, s47")
            a("s_add_u32 s45, s45, s41")
        a.vmem(f"buffer_load_dwordx4 v{25+n%3}, s[12:15], s45 offen lds", ("l2", n // 12))
        a("s_add_u32 m0, m0, s46")
        l2[0] += 1

    trn = [0]

    def tr_read():
        n = trn[0]
        s, T, b = n // 6, (n // 2) % 3, n & 1
        q = (s * 3 + T) * 4 + 2 * b
        a(f"ds_read_b64_tr_b16 a[{q}:{q+1}], v35 offset:{(16*(s>>1)+4*(s&1)+8*b)*192+32*T}")
        trn[0] += 1

    a("s_waitcnt lgkmcnt(0)")
    flag_check("A", 1)
    if ("ck", 0) in a.vm:
        a.wait_vm(("ck", 0))
    ck_read(0)
    a("s_mov_b32 m0, s37")
    pre1 = False
    if P["l2_pre"]:
        a("s_waitcnt lgkmcnt(0)")
        while l2[0] < min(12, P["l2_pre"]):
            l2_dma()
        a.wait_vm(("ck", 1))
        ck_read(1)
        pre1 = True
        if P["l2_pre"] > 12:
            a("s_waitcnt lgkmcnt(0)")
            while l2[0] < P["l2_pre"]:
                l2_dma()
    throttle(P["a_x2_wait"])
    stamp(5)
    if P["n2"]:
        a("s_cmp_lg_u32 s3, 0")
        a("s_cbranch_scc1 L_A_n2_out")
        poll_cnt("A_n2", ["0", "128", "256", "384"], 23, 0)
    a("s_barrier")
    tr_ok = 48 if (l2[0] >= 12 and ("l2", 0) not in a.vm) else 0
    stamp(6)
    stamp(1, 2)
    for kk in range(12):
        a.vmem(qa_load(kk), ("qa", kk))
        for k in range(4):
            if trn[0] < tr_ok:
                tr_read()
        if P["rr"] and (kk + 1) % P["rr"] == 0 and kk < 11:
            a("s_barrier")
    stamp(2, 2)
    if not pre1:
        if ("ck", 1) in a.vm:
            a.wait_vm(("ck", 1))
        ck_read(1)
    a("v_mov_b32 v11, 0")
    for kk in range(12):
        a.wait_vm(("qa", kk), f" lgkmcnt({11-kk})" if not pre1 else (" lgkmcnt(0)" if kk == 0 else ""))
        if kk == 0:
            stamp(3, 2)
        s_mfma(kk)
        if kk & 1:
            a(f"v_max3_u32 v11, v11, v{QA+4*kk-1}, v{QA+4*kk+3}")
        if l2[0] < (24 if pre1 else 12):
            l2_dma()
    a("v_cmp_eq_u32 vcc, -1, v11")
    a("s_cbranch_vccnz L_A_x2_slow")
    a("L_A_x2_ok:")
    main = a.L
    a.L = []
    a("L_A_x2_slow:")
    a("s_mov_b32 s28, 0")
    a("L_A_x2_loop:")
    a("s_add_u32 s29, s29, 1")
    for kk in range(12):
        a(qa_load(kk))
    a("v_mov_b32 v11, 0")
    a("s_add_u32 s28, s28, 1")
    a("s_waitcnt vmcnt(0)")
    for kk in range(1, 12, 2):
        a(f"v_max3_u32 v11, v11, v{QA+4*kk-1}, v{QA+4*kk+3}")
    a("v_cmp_eq_u32 vcc, -1, v11")
    a("s_cbranch_vccz L_A_x2_redo")
    a(f"s_cmp_lt_u32 s28, {SPIN}")
    a("s_cbranch_scc1 L_A_x2_loop")
    a("L_A_x2_redo:")
    for kk in range(12):
        s_mfma(kk)
    a("s_branch L_A_x2_ok")
    slow.append("\n".join(a.L))
    a.L = main
    stamp(7)
    stamp(4, 2)
    nw_ = 0
    for p in range(1, 4):
        for k in range(2):
            r = SA + 8 * p + 4 * k
            a(f"ds_write_b128 v{27+p}, v[{r}:{r+3}] offset:{k*1024}")
        if nw_ < P["l2b_w"] and l2[0] < 24:
            l2_dma()
            nw_ += 1
    stamp(5, 2)
    if ("l2", 0) in a.vm:
        a.wait_vm(("l2", 0), " lgkmcnt(0)")
    else:
        a("s_waitcnt lgkmcnt(0)")
    stamp(6, 2)
    a("s_barrier")
    stamp(7, 2)
    for p in range(3):
        for k in range(2):
            r = QA + 8 * p + 4 * k
            a(f"ds_read_b128 v[{r}:{r+3}], v31 offset:{p*2048+k*1024}")
    for k in range(2):
        if l2[0] < 24:
            l2_dma()

    def softmax():
        for p in range(3):
            a(f"s_waitcnt lgkmcnt({4-2*p})")
            for k in range(0, 8, 2):
                a(f"v_pk_add_f32 v[{SA+k}:{SA+k+1}], v[{SA+k}:{SA+k+1}], v[{QA+8*p+k}:{QA+8*p+k+1}]")
        a(f"v_max3_f32 v4, v{SA}, v{SA+1}, v{SA+2}")
        a(f"v_max3_f32 v11, v{SA+3}, v{SA+4}, v{SA+5}")
        a(f"v_max3_f32 v4, v4, v{SA+6}, v{SA+7}")
        a("v_max_f32 v4, v4, v11")
        a("v_mov_b32 v11, v4")
        a("v_permlane32_swap_b32 v4, v11")
        a("v_max_f32 v4, v4, v11")
        a("v_ceil_f32 v4, v4")
        for e in range(8):
            a(f"v_sub_f32 v{SA+e}, v{SA+e}, v4")
        for e in range(8):
            a(f"v_exp_f32 v{SA+e}, v{SA+e}")
        a("v_min_u32 v4, -2, v4")
        for m in range(4):
            a(f"v_cvt_pk_bf16_f32 v{12+m}, v{SA+2*m}, v{SA+2*m+1}")
        a("v_min_u32 v15, -2, v15")

    sm = cap(softmax)
    nmid = P["l2b_mid"]
    step = len(sm) // (nmid + 1)
    for i, l in enumerate(sm):
        a(l)
        if (i + 1) % step == 0 and (i + 1) // step <= nmid and l2[0] < 24:
            l2_dma()
    def p_pub(fl):
        a.vmem(f"buffer_store_dwordx4 v[12:15], v10, s[16:19], s42 offen{fl}", "pub")
        a.vmem(f"buffer_store_dword v4, v32, s[16:19], s43 offen{fl}", "pub")

    stamp(8, 2)
    p_pub(LOC)
    if not P["local"]:
        a.wait_all()
    stamp(8)
    while l2[0] < 24:
        l2_dma()
        for k in range(4):
            if trn[0] < 48:
                tr_read()
    stamp(9)
    stamp(9, 2)
    MR = 44
    PR = 64
    PT = 128
    OC = 136

    def m_load(p):
        return f"buffer_load_dword v{MR+p}, v{216+p}, s[16:19], s20 offen sc1"

    def p_load(s):
        return f"buffer_load_dwordx4 v[{PR+4*s}:{PR+4*s+3}], v{208+(s>>1)}, s[16:19], s44 offen offset:{(s&1)*512} sc1"

    def m_check():
        a(f"v_max3_u32 v11, v{MR}, v{MR+1}, v{MR+2}")
        a(f"v_max3_u32 v11, v11, v{MR+3}, v{MR+4}")
        a(f"v_max3_u32 v11, v11, v{MR+5}, v{MR+6}")
        a(f"v_max_u32 v11, v11, v{MR+7}")

    def m_max():
        a(f"v_max3_f32 v60, v{MR}, v{MR+1}, v{MR+2}")
        a(f"v_max3_f32 v61, v{MR+3}, v{MR+4}, v{MR+5}")
        a(f"v_max3_f32 v60, v60, v{MR+6}, v{MR+7}")
        a("v_max_f32 v60, v60, v61")
        for sw in ("32", "16"):
            a("v_mov_b32 v61, v60")
            a(f"v_permlane{sw}_swap_b32 v60, v61")
            a("v_max_f32 v60, v60, v61")

    def delta(p):
        a(f"v_sub_f32 v{MR+8+p}, v60, v{MR+p}")
        a(f"v_min_f32 v{MR+8+p}, 0x437f0000, v{MR+8+p}")
        a(f"v_cvt_u32_f32 v{MR+8+p}, v{MR+8+p}")
        a(f"v_mul_u32_u24 v{MR+8+p}, 0x800080, v{MR+8+p}")

    def pv_adj(s):
        for d in (3, 0, 1, 2):
            a(f"v_pk_sub_u16 v{PR+4*s+d}, v{PR+4*s+d}, v{MR+8+(s>>1)} clamp")

    def pv_mfma(s, T):
        t = PR + 4 * s
        c = "0" if s == 0 else f"v[{OC+4*T}:{OC+4*T+3}]"
        q = (s * 3 + T) * 4
        A = f"a[{q}:{q+3}]" if T < 3 else "v[40:43]"
        a(f"v_mfma_f32_16x16x32_bf16 v[{OC+4*T}:{OC+4*T+3}], {A}, v[{t}:{t+3}], {c}")

    for p in range(8):
        a.vmem(m_load(p), "m")
    while trn[0] < 48:
        tr_read()
    stamp(10, 2)
    a.wait_all()
    stamp(11, 2)
    m_check()
    a("v_cmp_eq_u32 vcc, -1, v11")
    a("s_cbranch_vccnz L_A_m_slow")
    a("L_A_m_ok:")
    slow.append("\n".join(["L_A_m_slow:", "s_mov_b32 s28, 0", "L_A_m_loop:", "s_add_u32 s29, s29, 0x10",
                 f"s_cmp_lg_u32 s28, {P['a_looks']}", "s_cbranch_scc1 L_A_m_nore"] + cap(p_pub, " sc1") + ["L_A_m_nore:"] + [m_load(p) for p in range(8)] +
                ["s_add_u32 s28, s28, 1", f"s_cmp_ge_u32 s28, {SPIN}", "s_cbranch_scc1 L_A_m_ok", "s_waitcnt vmcnt(0)"] + cap(m_check) +
                ["v_cmp_eq_u32 vcc, -1, v11", "s_cbranch_vccnz L_A_m_loop", "s_branch L_A_m_ok"]))
    a.vm = []
    pl = [0]

    def p_issue():
        if pl[0] < 16:
            a.vmem(p_load(pl[0]), ("p", pl[0]))
            pl[0] += 1
            return True
        return False

    p_issue()
    a("s_barrier")
    stamp(10)
    stamp(12, 2)
    pre = cap(m_max)
    for k in range(4):
        for p in range(8):
            pre.append(cap(delta, p)[k])
    per = (len(pre) + P["p_ahead"] - 2) // (P["p_ahead"] - 1)
    while pl[0] < P["p_ahead"]:
        p_issue()
        for k in range(per):
            if pre:
                a(pre.pop(0))
    assert not pre
    a.wait_vm(("p", 0), " lgkmcnt(0)")
    stamp(13, 2)
    a(f"v_mov_b32 v11, v{PR+3}")
    pv_adj(0)
    for s in range(16):
        adj = ([f"v_max_u32 v11, v11, v{PR+4*s+7}"] + cap(pv_adj, s + 1)) if s < 15 else []
        pv_mfma(s, 0)
        if not p_issue():
            if s == max(P["n3_step"], 16 - P["p_ahead"]):
                notice(162, 81)
        if s < 15:
            lg = f" lgkmcnt({min(15, trn[0]-6*(s+2))})" if s >= 7 else ""
            a.wait_vm(("p", s + 1), lg)
        pv_mfma(s, 1)
        for l in adj[:2]:
            a(l)
        pv_mfma(s, 2)
        for l in adj[2:]:
            a(l)
        for k in range(P["tr_in"]):
            if trn[0] < 96:
                tr_read()
    assert trn[0] == 96
    a("v_cmp_eq_u32 vcc, -1, v11")
    a("s_cbranch_vccnz L_A_p_slow")
    a("L_A_p_ok:")
    main = a.L
    a.L = []
    a("L_A_p_slow:")
    vmk = list(a.vm)
    p_pub(" sc1")
    a.vm = vmk
    a("s_mov_b32 s28, 0")
    a("L_A_p_loop:")
    a("s_add_u32 s29, s29, 0x100")
    for p in range(8):
        a(m_load(p))
    for s in range(16):
        a(p_load(s))
    a("s_add_u32 s28, s28, 1")
    a("s_waitcnt vmcnt(0)")
    m_check()
    for s in range(1, 16, 2):
        a(f"v_max3_u32 v11, v11, v{PR+4*s-1}, v{PR+4*s+3}")
    a("v_cmp_eq_u32 vcc, -1, v11")
    a("s_cbranch_vccz L_A_p_redo")
    a(f"s_cmp_lt_u32 s28, {SPIN}")
    a("s_cbranch_scc1 L_A_p_loop")
    a("L_A_p_redo:")
    m_max()
    for s in range(16):
        if not s & 1:
            delta(s // 2)
        pv_adj(s)
        for T in range(3):
            pv_mfma(s, T)
    a("s_branch L_A_p_ok")
    slow.append("\n".join(a.L))
    a.L = main
    stamp(11)
    stamp(14, 2)
    epi = []
    for k in range(6):
        epi.append(f"v_cvt_pk_bf16_f32 v{OC+k}, v{OC+2*k}, v{OC+2*k+1}")
        if k & 1:
            epi.append(f"v_min_u32 v{OC+k}, -2, v{OC+k}")
        epi.append(f"ds_permute_b32 v{44+k}, v36, v{OC+k}")
    epi += [None, None, None, None, "s_waitcnt lgkmcnt(2)", "buffer_store_dwordx4 v[44:47], v37, s[16:19], s21 offen sc1",
            "s_waitcnt lgkmcnt(0)", "buffer_store_dwordx2 v[48:49], v38, s[16:19], s22 offen sc1"]
    for s in range(16):
        pv_mfma(s, 3)
        if s >= 2:
            for k in range(2):
                if epi:
                    l = epi.pop(0)
                    if l:
                        a(l)
    assert not epi
    if P["n3_step"] == 16:
        notice(162, 81)
    a(f"v_min_u32 v61, -2, v{OC+12}")
    a("buffer_store_dwordx2 v[60:61], v39, s[16:19], s35 offen sc1")
    stamp(12)
    a.wait_all()
    if RE:
        p_pub(" sc1")
    a("s_cmp_lg_u32 s3, 0")
    a("s_cbranch_scc1 L_A_end")
    a("s_cmp_ge_u32 s25, 5")
    a("s_cbranch_scc1 L_A_end")
    a("s_mul_i32 s35, s24, 5")
    a("s_add_u32 s35, s35, s25")
    a("v_and_b32 v5, 3, v1")
    a("v_lshlrev_b32 v3, 1, v19")
    a("v_lshl_add_u32 v48, v5, 3, v3")
    a("s_lshl_b32 s40, s35, 5")
    a("buffer_load_ushort v49, v48, s[4:7], s40 offen")
    a("buffer_load_ushort v50, v48, s[8:11], s40 offen")
    a("v_lshrrev_b32 v3, 2, v1")
    a("v_mul_u32_u24 v56, 2560, v3")
    a("v_lshl_add_u32 v56, v5, 4, v56")
    a("s_lshl_b32 s27, s24, 10")
    a(f"s_add_u32 s27, s27, {XN5}")
    cnt_base(27)

    def z_gather(name, base, n, cnt, last):
        a("s_lshl_b32 s41, s35, 6")
        a(f"s_add_u32 s41, s41, {base}")
        a("s_mov_b32 s28, 0")
        a(f"L_Z_{name}:")
        a("s_mov_b32 s27, s41")
        a(f"s_add_u32 s29, s29, {cnt}")
        for k in range(n):
            a(f"buffer_load_dwordx4 v[{64+4*k}:{67+4*k}], v{last if k == n - 1 else 56}, s[16:19], s27 offen sc1")
            if k < n - 1:
                a("s_add_u32 s27, s27, 40960")
        a("s_add_u32 s28, s28, 1")
        a(f"s_waitcnt vmcnt({n-2})")
        a("v_max_u32 v3, v67, v71")
        for kk in (0, 2):
            a(f"v_pk_add_f32 v[{60+kk}:{61+kk}], v[{64+kk}:{65+kk}], v[{68+kk}:{69+kk}]")
        for k in range(2, n):
            a(f"s_waitcnt vmcnt({n-1-k})")
            a(f"v_max_u32 v3, v3, v{67+4*k}")
            for kk in (0, 2):
                a(f"v_pk_add_f32 v[{60+kk}:{61+kk}], v[{60+kk}:{61+kk}], v[{64+4*k+kk}:{65+4*k+kk}]")
        a("v_cmp_eq_u32 vcc, -1, v3")
        a(f"s_cbranch_vccnz L_Z_{name}_r")
        a(f"L_Z_{name}_ok:")
        slow.append(f"""L_Z_{name}_r:
            s_cmp_lt_u32 s28, {SPIN}
            s_cbranch_scc1 L_Z_{name}
            s_branch L_Z_{name}_ok""")
        a("v_permlane32_swap_b32 v60, v62")
        a("v_permlane32_swap_b32 v61, v63")
        a("v_add_f32 v60, v60, v62")
        a("v_add_f32 v61, v61, v63")
        a("v_permlane16_swap_b32 v60, v61")
        a("v_add_f32 v60, v60, v61")
        a("v_add_f32 v60, v60, v60 row_ror:8 row_mask:0xf bank_mask:0xf")
        a("v_add_f32 v60, v60, v60 row_ror:4 row_mask:0xf bank_mask:0xf")
        rbf(60)

    z_gather("y", XY, 2, 0x100000, 56)
    a("v_lshlrev_b32 v50, 16, v50")
    a("v_add_f32 v50, v50, v60")
    rbf(50)
    a(f"v_mul_f32 v3, {f32(-math.log2(math.e))}, v50")
    a("v_exp_f32 v3, v3")
    a("v_add_f32 v3, 1.0, v3")
    a("v_rcp_f32 v3, v3")
    a("v_mul_f32 v50, v50, v3")
    rbf(50)
    a("v_lshlrev_b32 v49, 16, v49")
    stamp(13)
    if P["n5_pos"] >= 0:
        poll_cnt("Z_n5", [str(128 * k) for k in range(8)], 15, 0)
    stamp(14)
    z_gather("s", XS, 8, 0x1000000, 56)
    a("v_mul_f32 v60, v60, v50")
    rbf(60)
    a("v_add_f32 v60, v60, v49")
    a("v_cvt_pk_bf16_f32 v60, v60, v60")
    a("s_mov_b32 exec_lo, 0x000f000f")
    a("s_mov_b32 exec_hi, 0x000f000f")
    a("buffer_store_short v60, v48, s[84:87], s40 offen")
    a("s_cmp_lg_u32 s35, 0")
    a("s_cbranch_scc1 L_A_end")
    a("s_mov_b64 exec, 1")
    a("v_mov_b32 v3, s26")
    a(f"buffer_store_dword v3, off, s[16:19], 0 offset:{EPOCH} sc1")
    a("L_A_end:")
    dump_stamps()
    a("s_endpgm")

    a(".p2align 8")
    a("L_F:")
    role[0] = "F"
    a.vm = []
    common_ids()
    srd(4, 1280)
    a("s_sub_u32 s25, s25, 16")
    a("s_lshl_b32 s89, s24, 2")
    a("s_add_u32 s89, s89, s25")
    a("s_sub_u32 s89, s89, 12")
    a(f"s_mul_i32 s36, s89, {CLR_PER}")
    a(f"s_add_u32 s36, s36, {CLR0}")
    a(f"s_add_u32 s37, s36, {CLR_PER}")
    a("v_lshlrev_b32 v56, 4, v0")
    for k in range(4):
        a(f"v_mov_b32 v{60+k}, -1")
    a("v_lshrrev_b32 v2, 3, v1")
    a("v_and_b32 v5, 7, v1")
    a("s_and_b32 s46, s25, 3")
    a("s_lshl_b32 s46, s46, 2")
    a("s_add_u32 s46, s46, s3")
    a("v_min_u32 v6, 31, v0")
    a("v_lshlrev_b32 v6, 7, v6")
    a("s_lshl_b32 s27, s89, 12")
    a(f"s_add_u32 s27, s27, {XQ}")
    a("s_lshl_b32 s42, s89, 11")
    a(f"s_add_u32 s42, s42, {XQA}")
    a("s_mov_b32 s43, s27")
    only_if(57, 3, 64, 56)
    a("s_mov_b32 s82, 1")
    a("s_waitcnt lgkmcnt(0)")
    load_epoch()
    a.vmem("buffer_store_dwordx4 v[60:63], v57, s[16:19], s42 offen sc1", "c1")
    a.vmem("buffer_store_dwordx4 v[60:63], v57, s[16:19], s42 offen offset:1024 sc1", "c1")
    a.vmem("buffer_load_dword v18, v6, s[16:19], s43 offen sc1", "pt")
    x_loads()
    a("s_cmp_lg_u32 s3, 0")
    a("s_cbranch_scc1 L_F_noadd0")
    a(f"s_waitcnt vmcnt({a.vm_n('c1')}) lgkmcnt(0)")
    a("s_atomic_add s82, s[30:31], 0")
    a("L_F_noadd0:")
    a("s_load_dwordx2 s[12:13], s[0:1], 56")
    a("s_load_dwordx2 s[8:9], s[0:1], 72")
    a("s_load_dwordx2 s[96:97], s[0:1], 64")
    a("s_load_dwordx2 s[20:21], s[0:1], 40")
    a("L_F_clr:")
    a("buffer_store_dwordx4 v[60:63], v56, s[16:19], s36 offen sc1")
    a("s_add_u32 s36, s36, 4096")
    a("s_cmp_lt_u32 s36, s37")
    a("s_cbranch_scc1 L_F_clr")
    a.vm += ["clr"] * (CLR_PER // 4096)
    a("s_lshl_b32 s36, s89, 14")
    a(f"s_add_u32 s36, s36, {XP}")
    a("s_mov_b32 s27, s36")
    for k in range(4):
        a.vmem("buffer_store_dwordx4 v[60:63], v56, s[16:19], s27 offen sc1", "clr")
        a("s_add_u32 s27, s27, 4096")
    a("s_lshl_b32 s37, s89, 11")
    a(f"s_add_u32 s37, s37, {XM}")
    a("v_and_b32 v57, 0x7ff, v56")
    a.vmem("buffer_store_dwordx4 v[60:63], v57, s[16:19], s37 offen sc1", "clr")
    sel_masks(152, 3)
    a("v_mul_u32_u24 v6, 3072, v2")
    a("v_lshl_add_u32 v6, v5, 4, v6")
    a(f"s_mul_i32 s44, s46, {40*3072}")
    a("s_mul_i32 s27, s24, 384")
    a("s_add_u32 s44, s44, s27")
    a(f"s_movk_i32 s45, {8*3072}")
    a.wait_vm("x", " lgkmcnt(0)")
    make_tag()
    srd(12, 1966080)
    srd(20, 7864320)
    ln_part()
    fn = [0]

    def f_next():
        n = fn[0]
        if n < 15:
            tile40_load(n, 64, 6, 12, "w1")
        elif n < 30:
            q = 128 + 4 * (n - 15)
            a.vmem(f"buffer_load_dwordx4 a[{q}:{q+3}], v159, s[8:11], s{38+(n-15)//5} offen offset:{((n-15)%5)*256} {NT}", "w2")
        else:
            wo_load(n - 30)
        fn[0] += 1

    def f_flags():
        a("s_waitcnt lgkmcnt(0)")
        flag_check("F", 1)

    a("v_and_b32 v18, 15, v1")
    a("v_lshrrev_b32 v19, 4, v1")
    tail_setup(25, 18, 19, 3)
    a("v_mov_b32 v163, 0x20000000")
    srd(8, 1966080)
    srd(96, 3072)
    a("s_mul_i32 s27, s24, 48")
    a("s_add_u32 s27, s27, s46")
    a("s_mul_i32 s38, s27, 5120")
    a(f"s_add_u32 s39, s38, {64*1280}")
    a(f"s_add_u32 s40, s38, {128*1280}")
    a("s_lshl_b32 s47, s27, 3")
    a("s_lshl_b32 s41, s89, 10")
    a(f"s_add_u32 s41, s41, {XH}")
    a("s_mul_i32 s43, s89, 2560")
    a(f"s_add_u32 s43, s43, {XY}")
    a("s_lshl_b32 s42, s24, 12")
    a("s_lshl_b32 s27, s46, 6")
    a("s_add_u32 s42, s42, s27")
    a(f"s_add_u32 s42, s42, {XH}")
    a("v_and_b32 v3, 3, v1")
    a("v_lshlrev_b32 v3, 10, v3")
    a("v_lshl_add_u32 v59, v19, 4, v3")
    phase5_addrs(11, 0, 3)
    a.wait_all()
    a("s_barrier")
    stamp(1)
    a("s_cmp_lg_u32 s3, 0")
    a("s_cbranch_scc1 L_F_noadd")
    a("s_atomic_add s82, s[30:31], 128")
    a("L_F_noadd:")
    a("v_min_u32 v14, 127, v0")
    a("v_lshlrev_b32 v14, 7, v14")
    a.vmem("buffer_load_dword v15, v14, s[16:19], s36 offen sc1", "pt")
    a("v_and_b32 v14, 0x7ff, v14")
    a.vmem("buffer_load_dword v15, v14, s[16:19], s37 offen sc1", "pt")
    a("v_min_u32 v14, 95, v0")
    a("v_lshlrev_b32 v14, 7, v14")
    a("s_mul_i32 s27, s89, 12288")
    a(f"s_add_u32 s27, s27, {XC}")
    a.vmem("buffer_load_dword v15, v14, s[16:19], s27 offen sc1", "pt")
    a("v_lshlrev_b32 v3, 1, v19")
    for t in range(3):
        a.vmem(f"buffer_load_ushort v{56+t}, v3, s[96:99], s47 offen offset:{128*t}", "b1")
    while fn[0] < 15:
        throttle(P["dF"])
        f_next()
        if fn[0] == 13:
            flag_load(1)
    tile40_finish("F_h", 64, "w1", f_next, P["dF"] + 1, P["dF"], 140, 41, " sc1", f_flags)
    stamp(5)
    while fn[0] < 30:
        throttle(P["dF2"])
        f_next()
    XHL = "buffer_load_dwordx4 v[60:63], v59, s[16:19], s42 offen sc1"
    a.vmem(XHL, "xh")
    while "xh" in a.vm and fn[0] < 45:
        throttle(P["dF2"])
        if "xh" in a.vm:
            f_next()
    if "xh" in a.vm:
        a.wait_vm("xh")
    stamp(6)
    a("v_cmp_ne_u32 vcc, s26, v63")
    a("s_cbranch_vccnz L_F_xh_slow")
    a("L_F_xh_ok:")
    slow.append(f"""L_F_xh_slow:
        s_mov_b32 s28, 0
        L_F_xh_loop:
        s_add_u32 s29, s29, 1
        {XHL}
        s_add_u32 s28, s28, 1
        s_waitcnt vmcnt(0)
        v_cmp_ne_u32 vcc, s26, v63
        s_cbranch_vccz L_F_xh_ok
        s_cmp_lt_u32 s28, {SPIN}
        s_cbranch_scc1 L_F_xh_loop
        s_branch L_F_xh_ok""")

    def gelu_part():
        for m in ("quad_perm:[1,0,3,2]", "quad_perm:[2,3,0,1]"):
            for k in range(3):
                a(f"v_add_f32 v{60+k}, v{60+k}, v{60+k} {m} row_mask:0xf bank_mask:0xf")
        for k in range(3):
            v = 60 + k
            rbf(v)
            a(f"v_lshlrev_b32 v3, 16, v{56+k}")
            a(f"v_add_f32 v{v}, v{v}, v3")
            rbf(v)
            a(f"v_mul_f32 v3, v{v}, v{v}")
            a(f"v_mul_f32 v3, {f32(0.044715)}, v3")
            a("v_add_f32 v3, 1.0, v3")
            a(f"v_mul_f32 v3, v3, v{v}")
            a(f"v_mul_f32 v3, {f32(-2*math.sqrt(2/math.pi)*math.log2(math.e))}, v3")
            a("v_exp_f32 v3, v3")
            a("v_add_f32 v3, 1.0, v3")
            a("v_rcp_f32 v3, v3")
            a(f"v_mul_f32 v{v}, v{v}, v3")

    gl = cap(gelu_part)
    for i, l in enumerate(gl):
        a(l)
        if i % 16 == 15 and fn[0] < 45:
            f_next()

    def f_hook(pos):
        if fn[0] < 45 and pos <= 4:
            f_next()

    phase5(60, 152, 128, 72, 11, 43, ng=3, hook=f_hook)
    stamp(7)
    while fn[0] < 45:
        throttle(P["dF2"])
        f_next()
    a("s_branch L_T")
    for blk in slow:
        a(blk)
    a("L_codeend:")

    body = fix_hazards(a.L)
    hdr = open("recurrent_scan__compressed_kv_cla__dense_activation_gelu__decode.s.ref").read().split("; Override launch")[0] if P.get("hdr", 1) else ""
    out = hdr
    out += f"; @launch grid=(256,1,1) block=(256,1,1) lds={LDS_SIZE}\n"
    out += f""".amdgcn_target "amdgcn-amd-amdhsa--gfx950"
.text
.globl {KN}
.p2align 8
.type {KN},@function
{KN}:
"""
    out += "\n".join(("" if l.endswith(":") or l.startswith(".") else "    ") + l for l in body)
    out += f"""
s_endpgm
.section .rodata,"a"
.p2align 6
.amdhsa_kernel {KN}
  .amdhsa_next_free_vgpr 512
  .amdhsa_next_free_sgpr 102
  .amdhsa_accum_offset 256
  .amdhsa_group_segment_fixed_size 0
  .amdhsa_kernarg_size 112
  .amdhsa_user_sgpr_count 2
  .amdhsa_user_sgpr_kernarg_segment_ptr 1
  .amdhsa_system_sgpr_workgroup_id_x 1
  .amdhsa_float_denorm_mode_32 3
.end_amdhsa_kernel
"""
    return out


def parse(spec):
    kw = {}
    for p in spec.split(","):
        if "=" in p:
            k, v = p.split("=")
            kw[k] = int(v) if v.lstrip("-").isdigit() else v.replace("+", " ").replace("_", "")
    return kw


if __name__ == "__main__":
    out = sys.argv[1]
    kw = parse(sys.argv[2]) if len(sys.argv) > 2 else {}
    open(out, "w").write(gen(**kw))
```

```python
import sys, struct, math
from asmlib import Asm, fix_hazards

KN = "recurrent_scan__compressed_kv_cla__dense_activation_gelu__decode_kernel"


def f32(x):
    return hex(struct.unpack("<I", struct.pack("<f", x))[0])


EPOCH = 0
FLAGS = 0x4000
XH = 0x8000
XQ = 0x10000
XM = 0x30000
XP = 0x40000
XC = 0xC0000
XQA = 0x120000
XN2 = XQA + 49152
XI = XN2 + 16384
CLR0 = XQA + 32 * 3072
XN3 = CLR0
XN5 = XN3 + 8192
XML = XN5 + 8192
XO = XML + 32768
XS = XO + 786432
XY = XS + 128 * 2560
CLR_END = XY + 32 * 2560
CLR_PER = 40960
assert CLR_END <= CLR0 + 32 * CLR_PER
STAMP = 0x400000
WS_SIZE = 0x10000000

R1 = 24608
R2 = 4 * R1
LDS_SIZE = R2 + 24576 + 1024
SPIN = 200000

DEF = dict(stamps=0, wnt="nt", local=1, re=1,
           dQ=7, a_first=3, q_bar=1, dH1=7, nH1=0, dH=5, x1_wait=3, wo1=0, dV1=3, nV1=8, dV=7, n2=2,
           dC1=4, nC1=10, dC=7, a_flag_at=20, a_x2_wait=8, l2_pre=0, rr=2, l2b_w=0, l2b_mid=5, p_ahead=7, tr_in=4,
           n3_step=13, n5_pos=2, h_looks=10, a_looks=8, dF=4, dF2=7, qrot=1, l2_in_s=12, l2a_wait=1, l2b_r=2, q_looks=12, wo_late=0, xq_sc1=0, n2_at=21, ck_pf=0, ck_pf_early=0, nF0=0, n_pf=0, pf_step=0)


def gen(**kw):
    P = dict(DEF)
    P.update(kw)
    a = Asm()
    NT = P["wnt"]
    RE = P["local"] and P["re"]

    def stamp(i, fine=None):
        if not P["stamps"]:
            return
        if fine is None:
            if P["stamps"] != 1 and (role[0] == "A" or P["stamps"] == 3) and 0 < i < 15:
                return
        elif fine != P["stamps"]:
            return
        a(f"s_memrealtime s[{48+2*i}:{49+2*i}]")
        if fine is None and 0 < i < 15 and P.get("stop" + role[0]) == i:
            a("s_waitcnt vmcnt(0)")
            dump_stamps()
            a("s_endpgm")
            a(f"L_dead_{role[0]}:")

    role = ["H"]

    def dump_stamps():
        if not P["stamps"]:
            return
        stamp(15)
        a("s_waitcnt lgkmcnt(0)")
        a("s_mov_b64 exec, -1")
        a("v_mov_b32 v250, 0")
        for i in range(16):
            a(f"v_writelane_b32 v250, s{48+2*i}, {i}")
        a("v_writelane_b32 v250, s29, 16")
        a("s_lshl_b32 s27, s2, 2\ns_add_u32 s27, s27, s3\ns_lshl_b32 s27, s27, 7")
        a(f"s_add_u32 s27, s27, {STAMP}")
        a("v_lshlrev_b32 v251, 2, v1")
        a("s_mov_b32 exec_hi, 0")
        a("buffer_store_dword v250, v251, s[16:19], s27 offen sc1")

    def srd(reg, size):
        a(f"s_mov_b32 s{reg+2}, {size}")
        a(f"s_mov_b32 s{reg+3}, 0x20000")

    def common_ids():
        a("v_lshrrev_b32 v2, 6, v0")
        a("v_and_b32 v1, 63, v0")
        a("v_readfirstlane_b32 s3, v2")
        a("s_and_b32 s24, s2, 7")
        srd(16, WS_SIZE)
        a("s_mov_b32 s29, 0")
        if P.get("stop" + role[0]) == 0:
            a("s_waitcnt lgkmcnt(0)")
            for i in range(1, 16):
                a(f"s_mov_b64 s[{48+2*i}:{49+2*i}], 0")
            dump_stamps()
            a("s_endpgm")
            a(f"L_dead_{role[0]}:")
        if P["stamps"] and P["stamps"] != 3:
            for i in range(1, 16):
                a(f"s_mov_b64 s[{48+2*i}:{49+2*i}], 0")

    def load_epoch():
        a(f"s_load_dword s26, s[16:17], {EPOCH}")
        a("s_load_dwordx2 s[30:31], s[0:1], 96")

    def make_tag():
        a("s_mul_i32 s26, s26, 0x9e3779b1")
        a("s_add_u32 s26, s26, 0x7f4a7c15")

    def rbf(v, t=None):
        a(f"v_cvt_pk_bf16_f32 v{v}, v{v}, v{v}")
        a(f"v_and_b32 v{v}, 0xffff0000, v{v}")

    def wave_sum(v, s):
        for m in ("quad_perm:[1,0,3,2] row_mask:0xf", "quad_perm:[2,3,0,1] row_mask:0xf", "row_half_mirror row_mask:0xf",
                  "row_mirror row_mask:0xf", "row_bcast:15 row_mask:0xa", "row_bcast:31 row_mask:0xc"):
            a(f"v_add_f32 v{v}, v{v}, v{v} {m} bank_mask:0xf")
        a(f"v_readlane_b32 s{s}, v{v}, 63")

    def x_stats_loads(v):
        a("v_lshlrev_b32 v3, 4, v1")
        a("v_lshlrev_b32 v4, 2, v1")
        a.vmem(f"buffer_load_dwordx4 v[{v}:{v+3}], v3, s[4:7], 0 offen", "x")
        a.vmem(f"buffer_load_dword v{v+4}, v4, s[4:7], 0 offen offset:1024", "x")

    def ln_stats(v, t):
        for j in range(5):
            a(f"v_lshlrev_b32 v{t+2*j}, 16, v{v+j}")
            a(f"v_and_b32 v{t+2*j+1}, 0xffff0000, v{v+j}")
        a(f"v_add_f32 v{t+10}, v{t}, v{t+1}")
        for j in range(2, 10):
            a(f"v_add_f32 v{t+10}, v{t+10}, v{t+j}")
        wave_sum(t + 10, 32)
        a(f"v_mov_b32 v{t+10}, {f32(1/640)}")
        a(f"v_mul_f32 v{t+10}, s32, v{t+10}")
        for j in range(10):
            a(f"v_sub_f32 v{t+j}, v{t+j}, v{t+10}")
        a(f"v_mul_f32 v{t+11}, v{t}, v{t}")
        for j in range(1, 10):
            a(f"v_fmac_f32 v{t+11}, v{t+j}, v{t+j}")
        wave_sum(t + 11, 33)
        a(f"v_mov_b32 v{t+11}, {f32(1/640)}")
        a(f"v_mul_f32 v{t+11}, s33, v{t+11}")
        rbf(t + 10)
        rbf(t + 11)
        a(f"v_add_f32 v{t+11}, {f32(1e-5)}, v{t+11}")
        rbf(t + 11)
        a(f"v_sqrt_f32 v{t+11}, v{t+11}")
        a(f"v_readfirstlane_b32 s32, v{t+10}")
        rbf(t + 11)
        a(f"v_rcp_f32 v{t+10}, v{t+11}")
        a(f"v_readfirstlane_b32 s33, v{t+11}")
        a(f"v_readfirstlane_b32 s34, v{t+10}")

    def normalize(v, t):
        a(f"v_subrev_f32 v{v}, s32, v{v}")
        rbf(v)
        a(f"v_mul_f32 v{t}, s34, v{v}")
        a(f"v_fma_f32 v{v}, -v{t}, s33, v{v}")
        a(f"v_fmac_f32 v{t}, s34, v{v}")
        a(f"v_cvt_pk_bf16_f32 v{v}, v{t}, v{t}")

    def sel_masks(m, t):
        a(f"v_and_b32 v{t}, 1, v1")
        a(f"v_lshlrev_b32 v{t}, 4, v{t}")
        a(f"v_mov_b32 v{t+1}, 0xffff")
        a(f"v_lshlrev_b32 v{t}, v{t}, v{t+1}")
        a(f"v_bfe_u32 v{t+1}, v1, 1, 2")
        for d in range(4):
            a(f"v_cmp_eq_u32 vcc, {d}, v{t+1}")
            a(f"v_cndmask_b32 v{m+d}, 0, v{t}, vcc")

    def flag_load(lvl):
        a(f"s_load_dword s92, s[30:31], {128*lvl}")

    slow = []

    def cap(f, *args):
        main = a.L
        a.L = []
        f(*args)
        r = a.L
        a.L = main
        return r

    LOC = "" if P["local"] else " sc1"

    def only_if(vd, cond, nl, vsrc):
        a(f"s_cmp_eq_u32 s{cond}, 0")
        a(f"s_cselect_b32 s27, {nl}, 0")
        a("v_cmp_gt_u32 vcc, s27, v1")
        a(f"v_mov_b32 v{vd}, 0x20000000")
        a(f"v_cndmask_b32 v{vd}, v{vd}, v{vsrc}, vcc")

    def notice(va, soff):
        a.vmem(f"buffer_atomic_add v161, v{va}, s[16:19], s{soff} offen sc1", "note")

    def poll_cnt(name, offs, target, cnt, late=None):
        a("s_mov_b32 s28, 0")
        a(f"L_{name}:")
        if late:
            a(f"s_cmp_eq_u32 s28, {late[0]}")
            a(f"s_cbranch_scc1 L_{name}_late")
            a(f"L_{name}_go:")
            slow.append(f"L_{name}_late:\n{late[1]}\ns_branch L_{name}_go")
        for i, o in enumerate(offs):
            a(f"s_load_dword s{92+i}, s[90:91], {o} glc")
        a("s_add_u32 s28, s28, 1")
        if cnt:
            a(f"s_add_u32 s29, s29, {cnt}")
        a(f"s_cmp_ge_u32 s28, {SPIN}")
        a("s_waitcnt lgkmcnt(0)")
        a(f"s_cbranch_scc1 L_{name}_out")
        for i in range(1, len(offs)):
            a(f"s_min_i32 s92, s92, s{92+i}")
        a(f"s_cmp_lt_i32 s92, {target}")
        a(f"s_cbranch_scc1 L_{name}")
        a(f"L_{name}_out:")

    def same_add(name):
        a("s_getreg_b32 s80, hwreg(HW_REG_XCC_ID, 0, 4)")
        a("s_lshl_b32 s80, s80, 2")
        a("s_lshl_b32 s27, s24, 7")
        a("s_add_u32 s80, s80, s27")
        a(f"s_add_u32 s80, s80, {XI}")
        a("s_cmp_lg_u32 s3, 0")
        a(f"s_cbranch_scc1 L_{name}_nocensus")
        a("s_mov_b32 s93, 1")
        a("s_atomic_add s93, s[16:17], s80")
        a(f"L_{name}_nocensus:")

    def same_load():
        a("s_load_dword s80, s[16:17], s80")

    def unless_same(label):
        a("s_cmp_eq_u32 s80, 31")
        a(f"s_cbranch_scc1 {label}")

    def cnt_base(sreg):
        a(f"s_add_u32 s90, s16, s{sreg}")
        a("s_addc_u32 s91, s17, 0")

    def pop_n(fill, n):
        while fill and (n > 0 or fill[0].startswith(("s_cselect", "s_addc", "s_cbranch", "v_cndmask")) or
                        (len(fill) > 1 and fill[1].startswith("v_cndmask") and not fill[0].startswith("v_cmp"))):
            a(fill.pop(0))
            n -= 1

    def throttle(d):
        if len(a.vm) > d:
            a.wait_vm_n(d)

    def flag_check(name, lvl):
        a("s_cmp_lt_u32 s92, 32")
        a(f"s_cbranch_scc1 L_{name}_fslow")
        a(f"L_{name}_fok:")
        slow.append(f"""L_{name}_fslow:
            s_mov_b32 s28, 0
            v_mov_b32 v252, 0
            L_{name}_floop:
            s_add_u32 s29, s29, 0x10000
            global_load_dword v253, v252, s[30:31] offset:{128*lvl} sc1
            s_add_u32 s28, s28, 1
            s_waitcnt vmcnt(0)
            v_cmp_gt_u32 vcc, 32, v253
            s_cbranch_vccz L_{name}_fok
            s_cmp_lt_u32 s28, {SPIN}
            s_cbranch_scc1 L_{name}_floop
            s_branch L_{name}_fok""")

    def phase5(vin, vmask, wreg, vt, lds_s, s_out, ng=4, hook=None):
        acc = vt + 16
        for t in range(ng):
            a(f"v_cvt_pk_bf16_f32 v{vin+t}, v{vin+t}, v{vin+t}")
        for d in range(4):
            a(f"v_and_b32 v{vt+d}, v{vin}, v{vmask+d}")
        for t in range(ng):
            if hook:
                hook(t + 1)
            for b in range(5):
                q = wreg + 4 * (t * 5 + b)
                c = "0" if t == 0 else f"v[{acc+4*b}:{acc+4*b+3}]"
                a(f"v_mfma_f32_16x16x32_bf16 v[{acc+4*b}:{acc+4*b+3}], v[{vt+4*t}:{vt+4*t+3}], a[{q}:{q+3}], {c}")
                if t + 1 < ng and b < 2:
                    for d in (2 * b, 2 * b + 1):
                        a(f"v_and_b32 v{vt+4*(t+1)+d}, v{vin+t+1}, v{vmask+d}")
        if hook:
            hook(ng + 1)
        a("s_mov_b32 exec_hi, 0")
        for b in range(5):
            a(f"ds_write_b128 v{lds_s}, v[{acc+4*b}:{acc+4*b+3}] offset:{b*512}")
        a("s_mov_b32 exec_hi, 0xff")
        if hook:
            hook(ng + 2)
        a("s_waitcnt lgkmcnt(0)")
        a("s_barrier")
        for w in range(4):
            a(f"ds_read_b128 v[{vt+4*w}:{vt+4*w+3}], v{lds_s+1} offset:{w*2560}")
        a("s_waitcnt lgkmcnt(2)")
        for k in (0, 2):
            a(f"v_pk_add_f32 v[{vt+k}:{vt+k+1}], v[{vt+k}:{vt+k+1}], v[{vt+4+k}:{vt+5+k}]")
        a("s_waitcnt lgkmcnt(0)")
        for k in (0, 2):
            a(f"v_pk_add_f32 v[{vt+8+k}:{vt+9+k}], v[{vt+8+k}:{vt+9+k}], v[{vt+12+k}:{vt+13+k}]")
        for k in (2, 0):
            a(f"v_pk_add_f32 v[{vt+k}:{vt+k+1}], v[{vt+k}:{vt+k+1}], v[{vt+8+k}:{vt+9+k}]")
        a(f"v_min_u32 v{vt+3}, -2, v{vt+3}")
        a.vmem(f"buffer_store_dwordx4 v[{vt}:{vt+3}], v{lds_s+2}, s[16:19], s{s_out} offen sc1", "pub")
        a("s_mov_b64 exec, -1")

    def phase5_addrs(lds_s, base, t):
        a(f"v_and_b32 v{t}, 15, v1")
        a(f"v_lshlrev_b32 v{t}, 5, v{t}")
        a(f"v_and_b32 v{t+1}, 16, v1")
        a(f"s_mul_i32 s27, s3, 2560")
        a(f"s_add_u32 s27, s27, {base}")
        a(f"v_add3_u32 v{lds_s}, v{t}, v{t+1}, s27")
        a(f"s_mul_i32 s27, s3, 640")
        a(f"v_lshl_add_u32 v{lds_s+2}, v1, 4, s27")
        a(f"v_add_u32 v{lds_s+1}, {base}, v{lds_s+2}")

    def tail_setup(sn, vj, vg, vt):
        phase5_addrs(156, R2 + 14336, vt)
        a(f"v_mul_u32_u24 v{vt}, 1280, v{vg}")
        a(f"v_lshl_add_u32 v159, v{vj}, 4, v{vt}")
        a(f"v_lshlrev_b32 v{vt}, 10, v{vj}")
        a(f"v_lshl_add_u32 v160, v{vg}, 4, v{vt}")
        a(f"s_lshr_b32 s87, s{sn}, 2")
        a("s_lshl_b32 s27, s24, 2")
        a("s_add_u32 s87, s87, s27")
        a(f"s_and_b32 s27, s{sn}, 3")
        a("s_lshl_b32 s27, s27, 2")
        a("s_add_u32 s27, s27, s3")
        a("s_mul_i32 s84, s87, 48")
        a("s_add_u32 s84, s84, s27")
        a("s_mulk_i32 s84, 5120")
        a(f"s_add_u32 s85, s84, {64*1280}")
        a(f"s_add_u32 s86, s84, {128*1280}")
        a("s_mulk_i32 s87, 12288")
        a("s_lshl_b32 s27, s27, 6")
        a("s_add_u32 s87, s87, s27")
        a(f"s_add_u32 s87, s87, {XC}")
        a("s_lshl_b32 s88, s24, 4")
        a(f"s_add_u32 s88, s88, s{sn}")
        a("s_lshl_b32 s83, s24, 7")
        a(f"s_add_u32 s83, s83, {XN5}")
        a("s_mulk_i32 s88, 2560")
        a(f"s_add_u32 s88, s88, {XS}")
        for k in range(3):
            a(f"v_mov_b32 v{164+k}, 0")
        a("v_mov_b32 v161, 1")
        a(f"v_lshlrev_b32 v{vt}, 10, v1")
        only_if(162, 3, 8, vt)

    def wo_load(n):
        q = 192 + 4 * n
        a.vmem(f"buffer_load_dwordx4 a[{q}:{q+3}], v159, s[20:23], s{84+n//5} offen offset:{(n%5)*256} {NT}", "wo")

    def tail():
        re = "buffer_store_dwordx4 v[28:31], v163, s[16:19], s43 offen sc1"
        a("L_T:")
        a("s_mov_b32 exec_lo, 0x0fff0fff")
        a("s_mov_b32 exec_hi, 0x0fff0fff")
        a("s_mov_b32 s28, 0")
        stamp(13)
        a("L_T_x4:")
        a("buffer_load_dwordx4 v[164:167], v160, s[16:19], s87 offen sc1")
        a("s_add_u32 s28, s28, 1")
        a.wait_all()
        a("v_cmp_ne_u32 vcc, s26, v167")
        a("s_cbranch_vccnz L_T_x4_retry")
        a("L_T_x4_ok:")
        slow.append(f"""L_T_x4_retry:
            s_cmp_lg_u32 s28, {P['h_looks']}
            s_cbranch_scc1 L_T_x4_nore
            s_mov_b64 exec, -1
            {re}
            s_mov_b32 exec_lo, 0x0fff0fff
            s_mov_b32 exec_hi, 0x0fff0fff
            L_T_x4_nore:
            s_cmp_lt_u32 s28, {SPIN}
            s_cbranch_scc1 L_T_x4
            s_branch L_T_x4_ok""")
        a("s_mov_b64 exec, -1")
        stamp(14)

        def n5(pos):
            if pos == P["n5_pos"]:
                notice(162, 83)

        n5(0)
        for m in ("quad_perm:[1,0,3,2]", "quad_perm:[2,3,0,1]", "row_half_mirror", "row_mirror"):
            for k in range(3):
                a(f"v_add_f32 v{164+k}, v{164+k}, v{164+k} {m} row_mask:0xf bank_mask:0xf")
        phase5(164, 152, 192, 168, 156, 88, ng=3, hook=n5)
        if RE:
            unless_same("L_T_end")
            a(re)
            a("L_T_end:")

    def x_loads():
        a("v_lshlrev_b32 v7, 1, v2")
        a("s_mul_i32 s35, s46, 80")
        x_stats_loads(8)
        for g in range(5):
            a.vmem(f"buffer_load_ushort v{13+g}, v7, s[4:7], s35 offen offset:{16*g}", "x")

    def tile40_load(n, areg, va, srdr, tag):
        g, t = n // 3, n % 3
        q = areg + n * 4
        a.vmem(f"buffer_load_dwordx4 a[{q}:{q+3}], v{va}, s[{srdr}:{srdr+3}], s44 offen offset:{t*128} {NT}", (tag, g))
        if t == 2 and g < 4:
            a("s_add_u32 s44, s44, s45")

    def ln_part():
        ln_stats(8, 24)
        for g in range(5):
            a(f"v_lshlrev_b32 v{13+g}, 16, v{13+g}")
            normalize(13 + g, 3)
            for d in range(4):
                a(f"v_and_b32 v{24+4*g+d}, v{13+g}, v{152+d}")
        a("v_bfe_u32 v3, v1, 3, 1")
        a("v_mul_u32_u24 v3, 768, v3")
        a("v_lshl_add_u32 v3, v5, 5, v3")
        a("v_and_b32 v4, 16, v1")
        a("s_mul_i32 s28, s3, 1536")
        a(f"s_add_u32 s28, s28, {R2}")
        a("v_add3_u32 v22, v3, v4, s28")
        a("v_lshlrev_b32 v23, 2, v1")
        a(f"v_add_u32 v23, {R2}, v23")
        a("v_lshlrev_b32 v10, 4, v1")

    def tile40_finish(name, areg, tag, nxt, nfirst, depth, dst, slot, flags, before_bar=None):
        done = [0]

        def ready():
            while done[0] < 5 and (tag, done[0]) not in a.vm:
                g = done[0]
                for t in range(3):
                    q = areg + (g * 3 + t) * 4
                    c = "0" if g == 0 else f"v[{44+4*t}:{47+4*t}]"
                    a(f"v_mfma_f32_16x16x32_bf16 v[{44+4*t}:{47+4*t}], v[{24+4*g}:{27+4*g}], a[{q}:{q+3}], {c}")
                done[0] += 1

        ready()
        for k in range(nfirst):
            throttle(depth)
            nxt()
            ready()
        while done[0] < 5:
            a.wait_vm((tag, done[0]))
            ready()
        if before_bar:
            before_bar()
        a("s_mov_b32 exec_lo, 0x00ff00ff")
        a("s_mov_b32 exec_hi, 0xff00ff00")
        for t in range(3):
            a(f"ds_write_b128 v22, v[{44+4*t}:{47+4*t}] offset:{t*256}")
        a("s_mov_b64 exec, -1")
        a("s_waitcnt lgkmcnt(0)")
        a("s_barrier")
        a("s_cmp_lg_u32 s3, 0")
        a(f"s_cbranch_scc1 L_{name}_nopub")
        for k in range(12):
            a(f"ds_read2st64_b32 v[{64+2*k}:{65+2*k}], v23 offset0:{2*k} offset1:{2*k+1}")
        a(f"v_mov_b32 v{dst+3}, s26")
        a("s_waitcnt lgkmcnt(6)")
        for t in range(3):
            a(f"v_add_f32 v{dst+t}, v{64+t}, v{67+t}")
        for p in (2, 3):
            for t in range(3):
                a(f"v_add_f32 v{dst+t}, v{dst+t}, v{64+3*p+t}")
        a("s_waitcnt lgkmcnt(0)")
        for p in range(4, 8):
            for t in range(3):
                a(f"v_add_f32 v{dst+t}, v{dst+t}, v{64+3*p+t}")
        a(f"buffer_store_dwordx4 v[{dst}:{dst+3}], v10, s[16:19], s{slot} offen{flags}")
        a(f"L_{name}_nopub:")

    stamp(0)
    a("s_cmpk_ge_u32 s2, 256")
    a("s_cbranch_scc1 L_exit")
    a("s_load_dwordx2 s[4:5], s[0:1], 0")
    a("s_load_dwordx2 s[8:9], s[0:1], 16")
    a("s_load_dwordx2 s[12:13], s[0:1], 24")
    a("s_load_dwordx2 s[16:17], s[0:1], 104")
    a("s_getpc_b64 s[30:31]")
    a("L_pc:")
    a("v_lshlrev_b32 v5, 7, v0")
    a("v_min_u32 v5, L_codeend-L_pc-4, v5")
    a("global_load_dword v255, v5, s[30:31]")
    a("s_lshr_b32 s25, s2, 3")
    a("s_cmp_lt_u32 s25, 16")
    a("s_cbranch_scc1 L_A")
    a("s_cmp_ge_u32 s25, 28")
    a("s_cbranch_scc1 L_F")

    a.vm = []
    common_ids()
    srd(12, 0 if P.get("no_uk") else 9437184)
    a("s_sub_u32 s25, s25, 16")
    a("v_lshrrev_b32 v2, 3, v1")
    a("v_and_b32 v5, 7, v1")
    a("v_lshrrev_b32 v4, 5, v1")
    a("v_and_b32 v3, 3, v2")
    a("v_lshl_add_u32 v4, v4, 3, v3")
    a("v_mul_u32_u24 v4, 12288, v4")
    a("v_lshrrev_b32 v3, 1, v2")
    a("v_xor_b32 v3, v3, v5")
    a("v_lshl_add_u32 v6, v3, 4, v4")
    a("v_xor_b32 v7, 64, v6")
    a(f"v_add_u32 v7, {16*12288}, v7")
    a(f"s_mul_i32 s35, s25, {64*12288}")
    a("s_lshl_b32 s36, s24, 2")
    a("s_add_u32 s36, s36, s3")
    a("s_mul_i32 s27, s36, 384")
    a("s_add_u32 s35, s35, s27")
    a(f"s_mul_i32 s37, s3, {R1}")
    a("s_mov_b32 m0, s37")
    a("s_movk_i32 s38, 896")
    a("s_movk_i32 s39, 1280")
    a(f"s_mov_b32 s40, {4*12288}")
    a("s_waitcnt lgkmcnt(0)")
    tn = [0]

    def tile_dma(srdr, xor, tag, grp):
        n = tn[0]
        par, t = (n // 3) & 1, n % 3
        a.vmem(f"buffer_load_dwordx4 v{6+par}, s[{srdr}:{srdr+3}], s35 offen offset:{t*128} {NT} lds", (tag, n // grp))
        a(f"s_add_u32 m0, m0, s{39 if t == 2 else 38}")
        if n % 6 == 5 and n < 23:
            a("s_add_u32 s35, s35, s40")
            a(f"s_xor_b32 s40, s40, {xor}")
        tn[0] += 1

    XR = (4*12288) ^ (28*12288)
    uk = lambda: tile_dma(12, XR, "uk", 6)

    def h_setup():
        load_epoch()
        a("s_load_dwordx2 s[8:9], s[0:1], 32")
        a("s_load_dwordx2 s[20:21], s[0:1], 40")
        a("v_lshlrev_b32 v10, 4, v1")
        sel_masks(152, 3)
        a("v_and_b32 v2, 15, v1")
        a("v_lshrrev_b32 v3, 4, v1")
        a("v_lshrrev_b32 v4, 3, v2")
        a("v_mul_u32_u24 v4, 3072, v4")
        a("v_and_b32 v5, 7, v2")
        a("v_lshl_add_u32 v4, v5, 7, v4")
        a("v_lshrrev_b32 v5, 1, v2")
        a("v_xor_b32 v5, v5, v3")
        a("v_lshl_add_u32 v4, v5, 4, v4")
        a("v_add_u32 v8, s37, v4")
        a("v_xad_u32 v9, v4, 64, s37")
        a("s_lshl_b32 s41, s36, 12")
        a(f"s_add_u32 s41, s41, {XQ}")
        a("s_lshl_b32 s27, s3, 9")
        a(f"s_add_u32 s27, s27, {R2+12288}")
        a("v_lshl_add_u32 v11, v1, 1, s27")
        a("v_lshl_add_u32 v12, v3, 4, s27")
        a("v_lshrrev_b32 v4, 1, v3")
        a("v_lshl_add_u32 v4, v2, 1, v4")
        a("v_lshlrev_b32 v4, 10, v4")
        a("v_and_b32 v5, 1, v3")
        a("v_lshl_add_u32 v13, v5, 6, v4")
        a("s_lshl_b32 s42, s25, 12")
        a("s_lshl_b32 s27, s24, 7")
        a("s_add_u32 s42, s42, s27")
        a("s_lshl_b32 s27, s3, 4")
        a("s_add_u32 s42, s42, s27")
        a(f"s_add_u32 s42, s42, {XQA}")
        tail_setup(25, 2, 3, 4)
        a("v_mov_b32 v163, v10")
        a("v_lshlrev_b32 v4, 9, v1")
        only_if(150, 3, 32, 4)
        a("s_lshr_b32 s82, s24, 1")
        a("s_lshl_b32 s82, s82, 7")
        a(f"s_add_u32 s82, s82, {XN2}")
        a("s_waitcnt lgkmcnt(0)")
        make_tag()
        srd(8, 0 if P.get("no_uv") else 9437184)
        srd(20, 0 if P.get("no_wo") else 7864320)

    def uk_read(T):
        for kk in range(6):
            q = (T * 6 + kk) * 4
            a(f"ds_read_b128 a[{q}:{q+3}], v{8+(kk&1)} offset:{T*6144+(kk>>1)*1024}")

    def xq_loads(tag):
        for mq in range(4):
            t = f"buffer_load_dwordx4 v[{16+4*mq}:{19+4*mq}], v10, s[16:19], s41 offen offset:{mq*1024} sc1"
            if tag:
                a.vmem(t, tag)
            else:
                a(t)

    def xq_check():
        a("v_cmp_ne_u32 vcc, s26, v19")
        a("v_cmp_ne_u32 s[92:93], s26, v23")
        a("v_cmp_ne_u32 s[94:95], s26, v27")
        a("s_or_b64 s[92:93], s[92:93], vcc")
        a("v_cmp_ne_u32 vcc, s26, v31")
        a("s_or_b64 s[92:93], s[92:93], s[94:95]")
        a("s_or_b64 vcc, vcc, s[92:93]")

    first = True
    while tn[0] < 24:
        d = P["dH1"] if tn[0] < P["nH1"] else P["dH"]
        if first and len(a.vm) > d:
            h_setup()
            first = False
        throttle(d)
        uk()
    assert not first
    stamp(1)
    rd = [0]

    def uk_ready():
        while rd[0] < 4 and ("uk", rd[0]) not in a.vm:
            uk_read(rd[0])
            rd[0] += 1

    won = 0
    uk_ready()
    throttle(P["x1_wait"])
    xq_loads("xq")
    flag_load(0)
    stamp(2)
    while won < P["wo1"]:
        wo_load(won)
        won += 1
    uk_ready()
    while rd[0] < 4:
        a.wait_vm(("uk", rd[0]))
        uk_ready()
    a.wait_vm("xq", " lgkmcnt(0)")
    flag_check("H", 0)
    stamp(3)
    xq_check()
    a("s_cbranch_scc1 L_H_xq_slow")
    a("L_H_xq_ok:")
    stamp(4)
    if P["n2"] == 3:
        a("s_barrier")
        notice(150, 82)
    slow.append("\n".join(["L_H_xq_slow:", "s_mov_b32 s28, 0", "L_H_xq_loop:", "s_add_u32 s29, s29, 1",
                           ] + cap(xq_loads, None) +
                          ["s_add_u32 s28, s28, 1", "s_waitcnt vmcnt(0)"] + cap(xq_check) +
                          ["s_cbranch_scc0 L_H_xq_ok", f"s_cmp_lt_u32 s28, {SPIN}", "s_cbranch_scc1 L_H_xq_loop", "s_branch L_H_xq_ok"]))
    for k in range(3):
        a(f"v_add_f32 v{16+k}, v{16+k}, v{20+k}")
        a(f"v_add_f32 v{24+k}, v{24+k}, v{28+k}")
    for k in range(3):
        a(f"v_add_f32 v{16+k}, v{16+k}, v{24+k}")
    a("v_cvt_pk_bf16_f32 v16, v16, v17")
    a("v_cvt_pk_bf16_f32 v18, v18, v18")
    a("ds_write_b16 v11, v16")
    a("ds_write_b16_d16_hi v11, v16 offset:128")
    a("ds_write_b16 v11, v18 offset:256")
    for kk in range(6):
        a(f"ds_read_b128 v[{32+4*kk}:{35+4*kk}], v12 offset:{kk*64}")
    for kk in range(6):
        a(f"s_waitcnt lgkmcnt({5-kk})")
        for T in range(4):
            q = (T * 6 + kk) * 4
            c = "0" if kk == 0 else f"v[{16+4*T}:{19+4*T}]"
            a(f"v_mfma_f32_16x16x32_bf16 v[{16+4*T}:{19+4*T}], a[{q}:{q+3}], v[{32+4*kk}:{35+4*kk}], {c}")
    if P["n2"] == 2:
        a("s_barrier")
        notice(150, 82)
    a("v_cmp_eq_u32 vcc, 1, v2")
    a(f"s_mov_b32 s27, {f32(math.log2(math.e)/math.sqrt(192))}")
    a("s_mov_b32 exec_lo, 0x30003")
    a("s_mov_b32 exec_hi, 0x30003")
    for k in range(8):
        a(f"v_cndmask_b32 v{16+k}, v{16+k}, v{24+k}, vcc")
    for k in range(8):
        a(f"v_mul_f32 v{16+k}, s27, v{16+k}")
    for k in range(4):
        a(f"v_cvt_pk_bf16_f32 v{24+k}, v{16+2*k}, v{17+2*k}")
    a("v_min_u32 v27, -2, v27")
    a.vmem("buffer_store_dwordx4 v[24:27], v13, s[16:19], s42 offen sc1", "pub")
    a("s_mov_b64 exec, -1")
    stamp(5)
    a("s_barrier")
    if P["n2"] == 1:
        notice(150, 82)
    stamp(6)
    a("s_cmp_lt_u32 s25, 8")
    a("s_cselect_b32 s44, 16, 4")
    a("s_cselect_b32 s45, 4, 8")
    a("s_cselect_b32 s40, 8, 48")
    a(f"s_cselect_b32 s46, {(8*12288) ^ (40*12288)}, 0")
    a("s_cselect_b32 s27, 1, 2")
    a(f"s_cselect_b32 s28, 0, {32*12288}")
    a("s_mulk_i32 s45, 12288")
    a("s_mulk_i32 s40, 12288")
    a("s_and_b32 s35, s25, 7")
    a("s_mul_i32 s35, s35, s27")
    a(f"s_mul_i32 s35, s35, {96*12288}")
    a("s_add_u32 s35, s35, s28")
    a("s_mul_i32 s27, s36, 384")
    a("s_add_u32 s35, s35, s27")
    a("v_lshrrev_b32 v4, 5, v1")
    a("v_bfe_u32 v5, v1, 3, 2")
    a("v_mad_u32_u24 v4, v4, s44, v5")
    a("v_mul_u32_u24 v4, 12288, v4")
    a("v_and_b32 v5, 2, v5")
    a("v_xor_b32 v5, v5, v1")
    a("v_and_b32 v5, 7, v5")
    a("v_lshl_add_u32 v6, v5, 4, v4")
    a("v_xad_u32 v7, v6, 64, s45")
    a("s_mov_b32 m0, s37")
    same_add("H")
    tn[0] = 0
    while tn[0] < 24:
        throttle(P["dV1"] if tn[0] < P["nV1"] else P["dV"])
        tile_dma(8, "s46", "uv", 12)
        if tn[0] == 20:
            flag_load(1)
    a("s_waitcnt lgkmcnt(0)")
    flag_check("H2", 1)
    a("v_mul_u32_u24 v4, 3072, v3")
    a("v_lshrrev_b32 v5, 2, v2")
    a("v_lshl_add_u32 v4, v5, 7, v4")
    a("v_and_b32 v5, 2, v5")
    a("v_and_b32 v12, 1, v3")
    a("v_lshl_or_b32 v5, v12, 2, v5")
    a("v_bfe_u32 v12, v1, 1, 1")
    a("v_or_b32 v5, v5, v12")
    a("v_lshl_add_u32 v4, v5, 4, v4")
    a("v_and_b32 v12, 1, v1")
    a("v_lshl_add_u32 v4, v12, 3, v4")
    a("v_add_u32 v8, s37, v4")
    a("v_xad_u32 v9, v4, 32, s37")
    a("v_xad_u32 v14, v4, 64, s37")
    a("v_xor_b32 v4, 64, v4")
    a("v_xad_u32 v15, v4, 32, s37")
    a("v_lshrrev_b32 v5, 3, v1")
    a("v_lshrrev_b32 v4, 1, v5")
    a("v_xor_b32 v4, v4, v1")
    a("v_and_b32 v4, 7, v4")
    a("v_lshlrev_b32 v4, 4, v4")
    a("v_mul_u32_u24 v5, 1536, v5")
    a("v_add_u32 v24, v4, v5")
    a("v_xor_b32 v4, 64, v4")
    a(f"v_add_u32 v4, {8*1536}, v4")
    a("v_add_u32 v25, v4, v5")
    a("s_mul_i32 s40, s36, 24576")
    a("s_lshl_b32 s27, s25, 7")
    a("s_add_u32 s40, s40, s27")
    a(f"s_add_u32 s40, s40, {XO}")
    a("s_lshl_b32 s41, s3, 11")
    a(f"s_add_u32 s41, s41, {R2+2048}")
    a("v_lshrrev_b32 v4, 1, v2")
    a("v_xor_b32 v4, v4, v3")
    a("v_lshlrev_b32 v4, 4, v4")
    a("v_lshl_add_u32 v5, v2, 7, s41")
    a("v_add_u32 v26, v4, v5")
    a("v_xad_u32 v27, v4, 64, v5")
    a("v_lshrrev_b32 v36, 2, v1")
    a("v_lshlrev_b32 v36, 8, v36")
    a("s_lshl_b32 s27, s25, 1")
    a("s_sub_u32 s27, s27, 16")
    a("s_cmp_lt_u32 s25, 8")
    a("s_cselect_b32 s27, s25, s27")
    a("s_cselect_b32 s89, 0, 128")
    a("s_lshl_b32 s42, s27, 12")
    a("s_lshl_b32 s28, s36, 3")
    a("s_add_u32 s42, s42, s28")
    a(f"s_add_u32 s42, s42, {XML}")
    a("s_lshl_b32 s28, s24, 3")
    a("s_add_u32 s27, s27, s28")
    a("s_lshl_b32 s27, s27, 7")
    a(f"s_add_u32 s27, s27, {XN3}")
    cnt_base(27)
    a("s_mul_i32 s43, s36, 12")
    a("s_add_u32 s43, s43, s25")
    a("s_lshl_b32 s43, s43, 10")
    a(f"s_add_u32 s43, s43, {XC}")
    a("v_mov_b32 v31, s26")
    tr_done = [0]

    def uv_ready():
        while tr_done[0] < 2 and ("uv", tr_done[0]) not in a.vm:
            st = tr_done[0]
            for T in range(12):
                for b in range(2):
                    q = (T * 2 + st) * 4 + 2 * b
                    a(f"ds_read_b64_tr_b16 a[{q}:{q+1}], v{(8, 9, 14, 15)[T&3]} offset:{st*12288+(T>>2)*1024+b*512}")
            tr_done[0] += 1

    uv_ready()
    while won < 15 - P["wo_late"]:
        throttle(P["dV"])
        wo_load(won)
        won += 1
    while tr_done[0] < 2:
        if ("uv", tr_done[0]) in a.vm:
            a.wait_vm(("uv", tr_done[0]))
        uv_ready()
    stamp(7)
    OA = 48
    AC = 64
    D = " row_mask:0xf bank_mask:0xf"

    def allred(op, v):
        a(f"{op} v{v}, v{v}, v{v} row_ror:8{D}")
        for sw in ("32", "16"):
            a(f"v_mov_b32 v5, v{v}")
            a(f"v_permlane{sw}_swap_b32 v{v}, v5")
            a(f"{op} v{v}, v{v}, v5")

    def weights():
        a(f"v_max_f32 v4, v40, v40 row_ror:4{D}")
        allred("v_max_f32", 4)
        a("v_sub_f32 v16, v40, v4")
        a("v_exp_f32 v16, v16")

    def norm():
        a("v_mul_f32 v17, v16, v41")
        a(f"v_add_f32 v17, v17, v17 row_ror:4{D}")
        allred("v_add_f32", 17)
        a("v_rcp_f32 v17, v17")

    same_load()
    a("s_cmp_lg_u32 s3, 0")
    a("s_cbranch_scc1 L_H_n3_out")
    poll_cnt("H_n3", ["0", "s89"], 15, 0x100)
    a("s_barrier")
    stamp(10)
    a("s_mov_b32 s28, 0")

    def x3_loads():
        a("s_mov_b32 m0, s41")
        a("s_add_u32 s28, s28, 1")
        a("buffer_load_dwordx4 v24, s[16:19], s40 offen sc1 lds")
        a("s_add_u32 m0, m0, 1024")
        a("s_add_u32 s29, s29, 0x1000000")
        a("buffer_load_dwordx4 v25, s[16:19], s40 offen sc1 lds")
        a("buffer_load_dwordx2 v[40:41], v36, s[16:19], s42 offen sc1")

    x3_loads()
    nl8 = P["wo_late"]
    if nl8:
        a("s_barrier")
    while won < 15:
        wo_load(won)
        won += 1
    a(f"s_waitcnt vmcnt({1+nl8})")
    a("L_H_x3:")
    for st in range(2):
        a(f"ds_read_b128 v[{OA+4*st}:{OA+4*st+3}], v{26+st}")
    a(f"s_waitcnt vmcnt({nl8})")
    weights()
    a("s_waitcnt lgkmcnt(0)")
    a.vm = []
    slow.append("\n".join(["L_H_x3_retry:", f"s_cmp_ge_u32 s28, {SPIN}", "s_cbranch_scc1 L_H_x3_ok"] + cap(x3_loads) +
                           ["s_waitcnt vmcnt(0)", "s_branch L_H_x3"]))
    stamp(8)
    fill = [f"v_max3_u32 v39, v41, v{OA+1}, v{OA+3}", f"v_max3_u32 v39, v39, v{OA+5}, v{OA+7}",
            "v_cmp_eq_u32 vcc, -1, v39", "s_cbranch_vccnz L_H_x3_retry\nL_H_x3_ok:"]
    nl = cap(norm)

    def post(T):
        o = [f"v_mul_f32 v{AC+4*T}, v16, v{AC+4*T} row_newbcast:0{D}"]
        for r in range(1, 4):
            o.append(f"v_fmac_f32 v{112+T}, v16, v{AC+4*T+r} row_newbcast:{4*r}{D}")
        o[0] = f"v_mul_f32 v{112+T}, v16, v{AC+4*T} row_newbcast:0{D}"
        return o

    def fold(Q):
        b = 112 + 4 * Q
        return [f"v_permlane32_swap_b32 v{b}, v{b+2}", f"v_permlane32_swap_b32 v{b+1}, v{b+3}",
                f"v_add_f32 v{b}, v{b}, v{b+2}", f"v_add_f32 v{b+1}, v{b+1}, v{b+3}",
                f"v_permlane16_swap_b32 v{b}, v{b+1}", f"v_add_f32 v{b}, v{b}, v{b+1}", f"v_mul_f32 v{28+Q}, v{b}, v17"]

    def mix(*lists):
        o = []
        lists = [list(l) for l in lists]
        while any(lists):
            for l in lists:
                if l:
                    o.append(l.pop(0))
        return o

    for T in range(12):
        if T in (1, 2):
            fill += nl[:4] if T == 1 else []
        if T >= 3 and T & 1:
            fill += mix(post(T - 3), post(T - 2))
        for st in range(2):
            q = (T * 2 + st) * 4
            c = "0" if st == 0 else f"v[{AC+4*T}:{AC+4*T+3}]"
            a(f"v_mfma_f32_16x16x32_bf16 v[{AC+4*T}:{AC+4*T+3}], v[{OA+4*st}:{OA+4*st+3}], a[{q}:{q+3}], {c}")
            for k in range(2):
                if fill:
                    a(fill.pop(0))
    for l in mix(fill, nl[4:]) + mix(fold(0)[:6], fold(1)[:6], mix(post(10), post(11))) + mix(fold(2), fold(0)[6:] + fold(1)[6:]):
        a(l)
    a(f"buffer_store_dwordx4 v[28:31], v10, s[16:19], s43 offen{LOC}")
    stamp(9)
    tail()
    dump_stamps()
    a("L_exit:")
    a("s_endpgm")

    a(".p2align 8")
    a("L_A:")
    role[0] = "A"
    a.vm = []
    common_ids()
    srd(4, 1280)
    srd(8, 0 if P.get("no_wq") else 7864320)
    a("v_lshrrev_b32 v2, 3, v1")
    a("v_and_b32 v5, 7, v1")
    a("v_mul_u32_u24 v6, 12288, v2")
    a("v_lshl_add_u32 v6, v5, 4, v6")
    a("s_and_b32 s46, s25, 3")
    a("s_lshl_b32 s46, s46, 2")
    a("s_add_u32 s46, s46, s3")
    a(f"s_mul_i32 s44, s46, {40*12288}")
    a("s_lshr_b32 s27, s25, 2")
    a("s_lshl_b32 s28, s24, 2")
    a("s_add_u32 s27, s27, s28")
    a("s_mul_i32 s27, s27, 384")
    a("s_add_u32 s44, s44, s27")
    a(f"s_mov_b32 s45, {8*12288}")
    a("s_waitcnt lgkmcnt(0)")
    x_loads()
    dQ = P["dQ"]
    wq = 0
    while wq < min(15, dQ + 1):
        tile40_load(wq, 0, 6, 8, "wq")
        wq += 1
    stamp(1)
    load_epoch()
    a("s_load_dwordx2 s[12:13], s[0:1], 8")
    a("s_load_dwordx2 s[84:85], s[0:1], 88")
    a("s_lshl_b32 s89, s24, 4")
    a("s_add_u32 s89, s89, s25")
    a("s_lshl_b32 s88, s89, 10")
    a(f"s_add_u32 s88, s88, {XQ}")
    sel_masks(152, 3)
    a("v_lshlrev_b32 v149, 4, v1")
    only_if(148, 3, 64, 149)
    a("v_lshrrev_b32 v3, 1, v2")
    a("v_xor_b32 v3, v3, v5")
    a("v_mul_u32_u24 v4, 1536, v2")
    a("v_lshl_add_u32 v62, v3, 4, v4")
    a("v_xor_b32 v63, 64, v62")
    a(f"v_add_u32 v63, {8*1536}, v63")
    a(f"s_mul_i32 s35, s89, {64*1536}")
    a("s_mul_i32 s28, s3, 384")
    a("s_add_u32 s35, s35, s28")
    for p in range(4):
        a(f"s_xor_b32 s28, s3, {p}")
        a(f"s_mul_i32 s28, s28, {16*1536}")
        a(f"s_add_u32 s{96+p}, s35, s28")
    a(f"s_mul_i32 s37, s3, {R1}")
    a("s_mov_b32 m0, s37")
    a("s_movk_i32 s100, 896")
    a("s_movk_i32 s101, 1280")
    a.wait_vm("x", " lgkmcnt(0)")
    make_tag()
    srd(12, 0 if P.get("no_ck") else 12582912)
    fill = cap(ln_part)
    rem = 15 - wq
    per = (len(fill) + rem) // (rem + 1) if rem else len(fill)
    while wq < 15:
        pop_n(fill, per)
        a.wait_vm_n(dQ)
        tile40_load(wq, 0, 6, 8, "wq")
        wq += 1
    for l in fill:
        a(l)
    a("s_load_dwordx2 s[8:9], s[0:1], 80")
    ck = [0]

    def ckv_dma():
        n = ck[0]
        p, par, t = n // 6, (n // 3) & 1, n % 3
        a.vmem(f"buffer_load_dwordx4 v{62+par}, s[12:15], s{96+p} offen offset:{t*128} lds", ("ck", n // 12))
        a(f"s_add_u32 m0, m0, s{101 if t == 2 else 100}")
        ck[0] += 1

    dck = lambda: P["dC1"] if ck[0] < P["nC1"] else P["dC"]
    tile40_finish("A_q", 0, "wq", ckv_dma, P["a_first"], dQ, 144, 88, " sc1" if P["xq_sc1"] else LOC, lambda: stamp(2))
    if P["q_bar"]:
        a("s_barrier")
    stamp(3)
    for k in range(dck() + 1):
        throttle(dck())
        ckv_dma()
    flag_load(0)
    a("s_lshl_b32 s27, s89, 2")
    a("s_add_u32 s27, s27, s3")
    a("s_lshl_b32 s42, s27, 10")
    a(f"s_add_u32 s42, s42, {XP}")
    a("s_lshl_b32 s43, s89, 9")
    a("s_lshl_b32 s27, s3, 2")
    a("s_add_u32 s43, s43, s27")
    a(f"s_add_u32 s43, s43, {XM}")
    a("v_lshrrev_b32 v3, 5, v1")
    a("v_lshl_or_b32 v32, v3, 29, v10")

    def a_setup():
        a("v_and_b32 v2, 31, v1")
        a("v_lshrrev_b32 v3, 5, v1")
        a("v_lshrrev_b32 v4, 3, v2")
        a("v_mul_u32_u24 v4, 3072, v4")
        a("v_lshl_add_u32 v4, v5, 7, v4")
        a("v_bfe_u32 v11, v2, 1, 3")
        a("v_xor_b32 v11, v11, v3")
        a("s_and_b32 s28, s25, 3" if P["qrot"] else "s_mov_b32 s28, 0")
        a("s_lshl_b32 s27, s28, 1")
        a("v_xor_b32 v11, s27, v11")
        a("v_lshl_add_u32 v4, v11, 4, v4")
        a("v_add_u32 v20, s37, v4")
        a("v_xad_u32 v21, v4, 32, s37")
        a("v_xad_u32 v22, v4, 64, s37")
        a("v_xor_b32 v4, 64, v4")
        a("v_xad_u32 v23, v4, 32, s37")
        a("v_lshrrev_b32 v4, 2, v2")
        a("v_lshlrev_b32 v4, 7, v4")
        a("v_lshl_add_u32 v4, v3, 6, v4")
        a("v_and_b32 v11, 3, v1")
        a("v_lshl_add_u32 v24, v11, 4, v4")
        for k in range(4):
            a(f"s_xor_b32 s27, s28, {k}")
            a(f"v_lshl_add_u32 v{224+k}, s27, 10, v24")
        a("s_mul_i32 s38, s3, 12288")
        a(f"s_add_u32 s38, s38, {XQA}")
        a("s_add_u32 s39, s38, 4096")
        a("s_add_u32 s40, s38, 8192")
        a("s_mov_b32 s27, 0x15555556")
        for m in range(3):
            a(f"v_add_u32 v4, {64*m}, v1")
            a("v_mul_hi_u32 v11, v4, s27")
            a(f"v_mul_u32_u24 v11, {1536-192}, v11")
            a(f"v_lshl_add_u32 v{25+m}, v4, 4, v11")
        a("s_lshr_b32 s27, s25, 3")
        a("s_lshl_b32 s35, s24, 1")
        a("s_add_u32 s35, s35, s27")
        a("s_and_b32 s36, s25, 7")
        a("s_lshl_b32 s27, s35, 2")
        a("s_add_u32 s27, s27, s3")
        a(f"s_mul_i32 s41, s27, {128*1536}")
        a("s_mul_i32 s27, s36, 192")
        a("s_add_u32 s41, s41, s27")
        a(f"s_movk_i32 s46, 1024")
        a(f"s_movk_i32 s47, {16*1536}")
        for p in range(1, 4):
            a(f"s_xor_b32 s27, s3, {p}")
            a("s_mul_i32 s27, s27, 6144")
            a(f"s_add_u32 s27, s27, {R2+(p-1)*2048}")
            a(f"v_add_u32 v{27+p}, s27, v10")
        a("s_mul_i32 s27, s3, 6144")
        a(f"s_add_u32 s27, s27, {R2}")
        a("v_add_u32 v31, s27, v10")
        a("v_and_b32 v18, 15, v1")
        a("v_lshrrev_b32 v19, 4, v1")
        a("v_lshlrev_b32 v4, 13, v19")
        a("v_lshl_add_u32 v33, v18, 4, v4")
        a("v_lshlrev_b32 v4, 10, v19")
        a("v_lshl_add_u32 v34, v18, 4, v4")
        a("s_lshr_b32 s27, s3, 1")
        a("s_and_b32 s28, s3, 1")
        a("s_lshl_b32 s44, s35, 15")
        a("s_lshl_b32 s20, s27, 8")
        a("s_add_u32 s44, s44, s20")
        a(f"s_add_u32 s44, s44, {XP}")
        a("s_add_u32 s45, s44, 4096")
        a("s_lshl_b32 s20, s35, 12")
        a("s_lshl_b32 s21, s27, 8")
        a("s_add_u32 s20, s20, s21")
        a(f"s_add_u32 s20, s20, {XM}")
        a(f"v_mul_u32_u24 v4, {R1}, v19")
        a("v_lshrrev_b32 v11, 2, v18")
        a("v_mul_u32_u24 v11, 192, v11")
        a("v_add_u32 v4, v4, v11")
        a("v_and_b32 v11, 3, v1")
        a("v_lshl_add_u32 v4, v11, 3, v4")
        a("s_mul_i32 s21, s28, 96")
        a("v_add_u32 v35, s21, v4")
        a("v_lshl_add_u32 v36, v18, 2, v19")
        a("v_lshlrev_b32 v36, 2, v36")
        a("v_lshrrev_b32 v4, 2, v1")
        a("v_mul_u32_u24 v4, 24576, v4")
        a("v_lshl_add_u32 v37, v11, 4, v4")
        a("v_lshl_add_u32 v38, v11, 3, v4")
        a(f"s_mul_i32 s21, s27, {16*24576}")
        a("s_mul_i32 s22, s35, 1536")
        a("s_add_u32 s21, s21, s22")
        a(f"s_add_u32 s21, s21, {XO}")
        a("s_lshl_b32 s23, s36, 1")
        a("s_add_u32 s23, s23, s28")
        a("s_lshl_b32 s22, s23, 5")
        a("s_add_u32 s22, s22, s21")
        a("s_add_u32 s22, s22, 1024")
        a("s_lshl_b32 s28, s23, 6")
        a("s_add_u32 s21, s21, s28")
        a("s_lshl_b32 s35, s35, 8")
        a("s_lshl_b32 s27, s27, 7")
        a("s_add_u32 s35, s35, s27")
        a("s_lshl_b32 s27, s36, 12")
        a("s_add_u32 s35, s35, s27")
        a(f"s_add_u32 s35, s35, {XML}")
        for k in range(4):
            a(f"v_mov_b32 v{40+k}, 0x3f803f80")
        a("s_lshl_b32 s81, s36, 7")
        a(f"s_add_u32 s81, s81, {XN3}")
        a("v_mov_b32 v161, 1")
        a("v_lshlrev_b32 v4, 10, v1")
        only_if(162, 3, 8, 4)
        a("s_and_b32 s23, s3, 1")
        a("v_lshlrev_b32 v4, 3, v1")
        only_if(39, 23, 16, 4)
        a("s_lshr_b32 s27, s89, 2")
        a("s_lshl_b32 s27, s27, 9")
        a(f"s_add_u32 s27, s27, {XN2}")
        cnt_base(27)
        srd(8, 1280)
        srd(84, 1280)
        if P["n_pf"]:
            n = P["n_pf"]
            a("s_lshl_b32 s27, s25, 2")
            a("s_add_u32 s27, s27, s3")
            a(f"s_mulk_i32 s27, {30*n}")
            a(f"v_min_u32 v4, {30*n-1}, v1")
            a("v_add_u32 v4, s27, v4")
            a(f"s_mov_b32 s27, {(1 << 32) // (640*n) + 1}")
            a("v_mul_hi_u32 v11, v4, s27")
            a(f"v_mul_u32_u24 v11, {1920-640*n}, v11")
            a("v_add_lshl_u32 v208, v4, v11, 7")
            a("s_mul_i32 s82, s24, 983040")
            a(f"s_add_u32 s82, s82, {(3-n)*81920}")

    fill = cap(a_setup)
    rem = 24 - ck[0]
    per = (len(fill) + rem - 1) // rem
    while ck[0] < 24:
        pop_n(fill, per)
        throttle(dck())
        ckv_dma()
        if ck[0] == 17:
            a("s_mov_b32 s83, s27")
            a("s_mov_b32 s94, s28")
            a("s_waitcnt lgkmcnt(0)")
            flag_check("A0", 0)
            same_add("A")
            a("s_mov_b32 s27, s83")
            a("s_mov_b32 s28, s94")
        if ck[0] == P["a_flag_at"]:
            flag_load(1)
        if ck[0] == P["n2_at"]:
            pop_n(fill, 999)
            a("s_cmp_lg_u32 s3, 0")
            a("s_cbranch_scc1 L_A_nolook")
            for k in range(4):
                a(f"s_load_dword s{(93, 94, 95, 83)[k]}, s[90:91], {128*k} glc")
            a("L_A_nolook:")
    assert not fill
    stamp(4)
    XQRE = "buffer_store_dwordx4 v[144:147], v148, s[16:19], s88 offen sc1"
    if P["local"] and (not P["n2"] or P.get("xq_re")):
        a.vmem(XQRE, "re")
    CA = 160
    QA = 64
    SA = 112

    def ck_read(kt):
        for kk in range(12):
            q = CA + (kt * 12 + kk) * 4
            a(f"ds_read_b128 a[{q}:{q+3}], v{20+(kk&3)} offset:{kt*12288+(kk>>2)*1024}")

    def qa_load(kk):
        return f"buffer_load_dwordx4 v[{QA+4*kk}:{QA+4*kk+3}], v{224+(kk&3)}, s[16:19], s{38+(kk>>2)} offen sc1"

    def s_mfma(kk):
        for kt in range(2):
            q = CA + (kt * 12 + kk) * 4
            c = "0" if kk == 0 else f"v[{SA+16*kt}:{SA+16*kt+15}]"
            a(f"v_mfma_f32_32x32x16_bf16 v[{SA+16*kt}:{SA+16*kt+15}], a[{q}:{q+3}], v[{QA+4*kk}:{QA+4*kk+3}], {c}")

    l2 = [0]

    def l2_dma():
        n = l2[0]
        if not P.get("no_l2"):
            a.vmem(f"buffer_load_dwordx4 v{25+n%3}, s[12:15], s41 offen lds", ("l2", n // 12))
        a("s_add_u32 m0, m0, s46")
        if n % 3 == 2:
            a("s_add_u32 s41, s41, s47")
        l2[0] += 1

    trn = [0]

    def tr_read():
        n = trn[0]
        s, T, b = n // 6, (n // 2) % 3, n & 1
        q = (s * 3 + T) * 4 + 2 * b
        a(f"ds_read_b64_tr_b16 a[{q}:{q+1}], v35 offset:{(16*(s>>1)+4*(s&1)+8*b)*192+32*T}")
        trn[0] += 1

    a("s_waitcnt lgkmcnt(0)")
    flag_check("A", 1)
    if ("ck", 0) in a.vm:
        a.wait_vm(("ck", 0))
    ck_read(0)
    a("s_mov_b32 m0, s37")
    pre1 = False
    if P["l2_pre"]:
        a("s_waitcnt lgkmcnt(0)")
        while l2[0] < min(12, P["l2_pre"]):
            l2_dma()
        a.wait_vm(("ck", 1))
        ck_read(1)
        pre1 = True
        if P["l2_pre"] > 12:
            a("s_waitcnt lgkmcnt(0)")
            while l2[0] < P["l2_pre"]:
                l2_dma()
    if P["n_pf"]:
        a("s_load_dwordx2 s[96:97], s[0:1], 40")
        srd(96, 7864320)
    throttle(P["a_x2_wait"])
    stamp(5)
    if P["n2"]:
        a("s_cmp_lg_u32 s3, 0")
        a("s_cbranch_scc1 L_A_n2_out")
        if P["n2_at"]:
            a("s_min_i32 s93, s93, s94")
            a("s_min_i32 s95, s95, s83")
            a("s_min_i32 s93, s93, s95")
            a("s_cmp_ge_i32 s93, 23")
            a("s_cbranch_scc1 L_A_n2_out")
        poll_cnt("A_n2", ["0", "128", "256", "384"], 23, 0, (P["q_looks"], XQRE) if P["local"] else None)
    a("s_barrier")
    tr_ok = 48 if (l2[0] >= 12 and ("l2", 0) not in a.vm) else 0
    stamp(6)
    stamp(1, 2)
    for kk in range(12):
        a.vmem(qa_load(kk), ("qa", kk))
        for k in range(4):
            if trn[0] < tr_ok:
                tr_read()
        if P["rr"] and (kk + 1) % P["rr"] == 0 and kk < 11:
            a("s_barrier")
    stamp(2, 2)
    if not pre1:
        if ("ck", 1) in a.vm:
            a.wait_vm(("ck", 1))
        ck_read(1)
    a("v_mov_b32 v11, 0")
    for kk in range(12):
        a.wait_vm(("qa", kk), f" lgkmcnt({11-kk})" if not pre1 else (" lgkmcnt(0)" if kk == 0 else ""))
        if kk == 0:
            stamp(3, 2)
        s_mfma(kk)
        if kk & 1:
            a(f"v_max3_u32 v11, v11, v{QA+4*kk-1}, v{QA+4*kk+3}")
        if l2[0] < (24 if pre1 else 12) and (kk + 1) * P["l2_in_s"] // 12 > kk * P["l2_in_s"] // 12:
            l2_dma()
    a("v_cmp_eq_u32 vcc, -1, v11")
    a("s_cbranch_vccnz L_A_x2_slow")
    a("L_A_x2_ok:")
    main = a.L
    a.L = []
    a("L_A_x2_slow:")
    a("s_mov_b32 s28, 0")
    a("L_A_x2_loop:")
    a("s_add_u32 s29, s29, 1")
    for kk in range(12):
        a(qa_load(kk))
    a("v_mov_b32 v11, 0")
    a("s_add_u32 s28, s28, 1")
    a("s_waitcnt vmcnt(0)")
    for kk in range(1, 12, 2):
        a(f"v_max3_u32 v11, v11, v{QA+4*kk-1}, v{QA+4*kk+3}")
    a("v_cmp_eq_u32 vcc, -1, v11")
    a("s_cbranch_vccz L_A_x2_redo")
    a(f"s_cmp_lt_u32 s28, {SPIN}")
    a("s_cbranch_scc1 L_A_x2_loop")
    a("L_A_x2_redo:")
    for kk in range(12):
        s_mfma(kk)
    a("s_branch L_A_x2_ok")
    slow.append("\n".join(a.L))
    a.L = main
    stamp(7)
    stamp(4, 2)
    nw_ = 0
    for p in range(1, 4):
        for k in range(2):
            r = SA + 8 * p + 4 * k
            a(f"ds_write_b128 v{27+p}, v[{r}:{r+3}] offset:{k*1024}")
        if nw_ < P["l2b_w"] and l2[0] < 24:
            l2_dma()
            nw_ += 1
    stamp(5, 2)
    if l2[0] >= 12 and ("l2", 0) in a.vm and P["l2a_wait"]:
        a.wait_vm(("l2", 0), " lgkmcnt(0)")
    else:
        a("s_waitcnt lgkmcnt(0)")
    if l2[0] >= 12 and ("l2", 0) not in a.vm:
        tr_ok = 48
    stamp(6, 2)
    a("s_barrier")
    stamp(7, 2)
    for p in range(3):
        for k in range(2):
            r = QA + 8 * p + 4 * k
            a(f"ds_read_b128 v[{r}:{r+3}], v31 offset:{p*2048+k*1024}")
    for k in range(P["l2b_r"]):
        if l2[0] < 24:
            l2_dma()

    def softmax():
        for p in range(3):
            a(f"s_waitcnt lgkmcnt({4-2*p})")
            for k in range(0, 8, 2):
                a(f"v_pk_add_f32 v[{SA+k}:{SA+k+1}], v[{SA+k}:{SA+k+1}], v[{QA+8*p+k}:{QA+8*p+k+1}]")
        a(f"v_max3_f32 v4, v{SA}, v{SA+1}, v{SA+2}")
        a(f"v_max3_f32 v11, v{SA+3}, v{SA+4}, v{SA+5}")
        a(f"v_max3_f32 v4, v4, v{SA+6}, v{SA+7}")
        a("v_max_f32 v4, v4, v11")
        a("v_mov_b32 v11, v4")
        a("v_permlane32_swap_b32 v4, v11")
        a("v_max_f32 v4, v4, v11")
        a("v_ceil_f32 v4, v4")
        for e in range(8):
            a(f"v_sub_f32 v{SA+e}, v{SA+e}, v4")
        for e in range(8):
            a(f"v_exp_f32 v{SA+e}, v{SA+e}")
        a("v_min_u32 v4, -2, v4")
        for m in range(4):
            a(f"v_cvt_pk_bf16_f32 v{12+m}, v{SA+2*m}, v{SA+2*m+1}")
        a("v_min_u32 v15, -2, v15")

    sm = cap(softmax)
    nmid = P["l2b_mid"]
    step = len(sm) // (nmid + 1)
    for i, l in enumerate(sm):
        a(l)
        if (i + 1) % step == 0 and (i + 1) // step <= nmid and l2[0] < 24:
            l2_dma()
    def p_pub(fl):
        a.vmem(f"buffer_store_dwordx4 v[12:15], v10, s[16:19], s42 offen{fl}", "pub")
        a.vmem(f"buffer_store_dword v4, v32, s[16:19], s43 offen{fl}", "pub")

    stamp(8, 2)
    p_pub(LOC)
    if not P["local"]:
        a.wait_all()
    stamp(8)
    while l2[0] < 24:
        l2_dma()
        for k in range(4):
            if trn[0] < tr_ok:
                tr_read()
    stamp(9)
    stamp(9, 2)
    MR = 44
    PR = 64
    PT = 128
    OC = 136

    def m_load(p):
        return f"buffer_load_dwordx4 v[{MR+4*p}:{MR+4*p+3}], v34, s[16:19], s20 offen offset:{p*512} sc1"

    def p_load(s):
        return f"buffer_load_dwordx4 v[{PR+4*s}:{PR+4*s+3}], v33, s[16:19], s{44+(s>>3)} offen offset:{(s&7)*512} sc1"

    def m_check():
        a(f"v_max3_u32 v11, v{MR}, v{MR+1}, v{MR+2}")
        a(f"v_max3_u32 v11, v11, v{MR+3}, v{MR+4}")
        a(f"v_max3_u32 v11, v11, v{MR+5}, v{MR+6}")
        a(f"v_max_u32 v11, v11, v{MR+7}")

    def m_max():
        a(f"v_max3_f32 v60, v{MR}, v{MR+1}, v{MR+2}")
        a(f"v_max3_f32 v61, v{MR+3}, v{MR+4}, v{MR+5}")
        a(f"v_max3_f32 v60, v60, v{MR+6}, v{MR+7}")
        a("v_max_f32 v60, v60, v61")
        for sw in ("32", "16"):
            a("v_mov_b32 v61, v60")
            a(f"v_permlane{sw}_swap_b32 v60, v61")
            a("v_max_f32 v60, v60, v61")

    def delta(p):
        a(f"v_sub_f32 v{MR+8+p}, v60, v{MR+p}")
        a(f"v_cvt_pk_u8_f32 v{MR+8+p}, v{MR+8+p}, 0, 0")
        a(f"v_mul_u32_u24 v{MR+8+p}, 0x800080, v{MR+8+p}")

    def pv_adj(s):
        for d in (3, 0, 1, 2):
            a(f"v_pk_sub_u16 v{PR+4*s+d}, v{PR+4*s+d}, v{MR+8+(s>>1)} clamp")

    def pv_mfma(s, T):
        t = PR + 4 * s
        c = "0" if s == 0 else f"v[{OC+4*T}:{OC+4*T+3}]"
        q = (s * 3 + T) * 4
        A = f"a[{q}:{q+3}]" if T < 3 else "v[40:43]"
        a(f"v_mfma_f32_16x16x32_bf16 v[{OC+4*T}:{OC+4*T+3}], {A}, v[{t}:{t+3}], {c}")

    for p in range(2):
        a.vmem(m_load(p), "m")
    while trn[0] < tr_ok:
        tr_read()
    stamp(10, 2)
    a.wait_all()
    stamp(11, 2)
    m_check()
    a("v_cmp_eq_u32 vcc, -1, v11")
    a("s_cbranch_vccnz L_A_m_slow")
    a("L_A_m_ok:")
    slow.append("\n".join(["L_A_m_slow:", "s_mov_b32 s28, 0", "L_A_m_loop:", "s_add_u32 s29, s29, 0x10",
                 f"s_cmp_lg_u32 s28, {P['a_looks']}", "s_cbranch_scc1 L_A_m_nore"] + cap(p_pub, " sc1") + ["L_A_m_nore:"] + [m_load(p) for p in range(2)] +
                ["s_add_u32 s28, s28, 1", f"s_cmp_ge_u32 s28, {SPIN}", "s_cbranch_scc1 L_A_m_ok", "s_waitcnt vmcnt(0)"] + cap(m_check) +
                ["v_cmp_eq_u32 vcc, -1, v11", "s_cbranch_vccnz L_A_m_loop", "s_branch L_A_m_ok"]))
    a.vm = []
    pl = [0]

    def p_issue():
        if pl[0] < 16:
            a.vmem(p_load(pl[0]), ("p", pl[0]))
            pl[0] += 1
            return True
        return False

    p_issue()
    a("s_barrier")
    stamp(10)
    stamp(12, 2)
    pre = cap(m_max)
    for k in range(3):
        for p in range(8):
            pre.append(cap(delta, p)[k])
    tr_in = P["tr_in"] if tr_ok else 6
    if not tr_ok:
        pre = mix(pre, [cap(tr_read)[0] for k in range(18)])
    per = (len(pre) + P["p_ahead"] - 2) // (P["p_ahead"] - 1)
    while pl[0] < P["p_ahead"]:
        p_issue()
        for k in range(per):
            if pre:
                a(pre.pop(0))
    assert not pre
    a.wait_vm(("p", 0), " lgkmcnt(0)")
    stamp(13, 2)
    tr0 = trn[0]
    a(f"v_mov_b32 v11, v{PR+3}")
    pv_adj(0)
    for s in range(16):
        adj = ([f"v_max_u32 v11, v11, v{PR+4*s+7}"] + cap(pv_adj, s + 1)) if s < 15 else []
        pv_mfma(s, 0)
        if not p_issue():
            if s == max(P["n3_step"], 16 - P["p_ahead"]):
                notice(162, 81)
            if s == max(P["pf_step"], 16 - P["p_ahead"]) and P["n_pf"]:
                a.vmem("buffer_load_dword v209, v208, s[96:99], s82 offen", "pf")
        if s < 15:
            assert trn[0] >= 6 * (s + 2)
            lg = f" lgkmcnt({min(15, trn[0]-6*(s+2))})" if 6 * (s + 2) > tr0 else ""
            a.wait_vm(("p", s + 1), lg)
        pv_mfma(s, 1)
        for l in adj[:2]:
            a(l)
        pv_mfma(s, 2)
        for l in adj[2:]:
            a(l)
        for k in range(tr_in):
            if trn[0] < 96:
                tr_read()
    assert trn[0] == 96
    a("v_cmp_eq_u32 vcc, -1, v11")
    a("s_cbranch_vccnz L_A_p_slow")
    a("L_A_p_ok:")
    main = a.L
    a.L = []
    a("L_A_p_slow:")
    vmk = list(a.vm)
    p_pub(" sc1")
    a.vm = vmk
    a("s_mov_b32 s28, 0")
    a("L_A_p_loop:")
    a("s_add_u32 s29, s29, 0x100")
    for p in range(2):
        a(m_load(p))
    for s in range(16):
        a(p_load(s))
    a("s_add_u32 s28, s28, 1")
    a("s_waitcnt vmcnt(0)")
    m_check()
    for s in range(1, 16, 2):
        a(f"v_max3_u32 v11, v11, v{PR+4*s-1}, v{PR+4*s+3}")
    a("v_cmp_eq_u32 vcc, -1, v11")
    a("s_cbranch_vccz L_A_p_redo")
    a(f"s_cmp_lt_u32 s28, {SPIN}")
    a("s_cbranch_scc1 L_A_p_loop")
    a("L_A_p_redo:")
    m_max()
    for s in range(16):
        if not s & 1:
            delta(s // 2)
        pv_adj(s)
        for T in range(3):
            pv_mfma(s, T)
    a("s_branch L_A_p_ok")
    slow.append("\n".join(a.L))
    a.L = main
    stamp(11)
    stamp(14, 2)
    epi = []
    for k in range(6):
        epi.append(f"v_cvt_pk_bf16_f32 v{OC+k}, v{OC+2*k}, v{OC+2*k+1}")
        if k & 1:
            epi.append(f"v_min_u32 v{OC+k}, -2, v{OC+k}")
        epi.append(f"ds_permute_b32 v{44+k}, v36, v{OC+k}")
    epi += [None, None, None, None, "s_waitcnt lgkmcnt(2)", "buffer_store_dwordx4 v[44:47], v37, s[16:19], s21 offen sc1",
            "s_waitcnt lgkmcnt(0)", "buffer_store_dwordx2 v[48:49], v38, s[16:19], s22 offen sc1"]
    for s in range(16):
        pv_mfma(s, 3)
        if s >= 2:
            for k in range(2):
                if epi:
                    l = epi.pop(0)
                    if l:
                        a(l)
    assert not epi
    if P["n3_step"] == 16:
        notice(162, 81)
    a(f"v_min_u32 v61, -2, v{OC+12}")
    a("buffer_store_dwordx2 v[60:61], v39, s[16:19], s35 offen sc1")
    stamp(12)
    if RE:
        same_load()
        a("s_waitcnt lgkmcnt(0)")
        unless_same("L_A_nore")
        a.wait_all()
        p_pub(" sc1")
        a("L_A_nore:")
    a("s_cmp_lg_u32 s3, 0")
    a("s_cbranch_scc1 L_A_end")
    a("s_cmp_ge_u32 s25, 5")
    a("s_cbranch_scc1 L_A_end")
    a("s_mul_i32 s35, s24, 5")
    a("s_add_u32 s35, s35, s25")
    a("v_and_b32 v5, 3, v1")
    a("v_lshlrev_b32 v3, 1, v19")
    a("v_lshl_add_u32 v48, v5, 3, v3")
    a("s_lshl_b32 s40, s35, 5")
    a("buffer_load_ushort v49, v48, s[4:7], s40 offen")
    a("buffer_load_ushort v50, v48, s[8:11], s40 offen")
    a("v_lshrrev_b32 v3, 2, v1")
    a("v_mul_u32_u24 v56, 2560, v3")
    a("v_lshl_add_u32 v56, v5, 4, v56")
    a("s_lshl_b32 s27, s24, 10")
    a(f"s_add_u32 s27, s27, {XN5}")
    cnt_base(27)

    def z_gather(name, base, n, cnt, last):
        a("s_lshl_b32 s41, s35, 6")
        a(f"s_add_u32 s41, s41, {base}")
        a("s_mov_b32 s28, 0")
        a(f"L_Z_{name}:")
        a("s_mov_b32 s27, s41")
        a(f"s_add_u32 s29, s29, {cnt}")
        for k in range(n):
            a(f"buffer_load_dwordx4 v[{64+4*k}:{67+4*k}], v{last if k == n - 1 else 56}, s[16:19], s27 offen sc1")
            if k < n - 1:
                a("s_add_u32 s27, s27, 40960")
        a("s_add_u32 s28, s28, 1")
        a(f"s_waitcnt vmcnt({n-2})")
        a("v_max_u32 v3, v67, v71")
        for kk in (0, 2):
            a(f"v_pk_add_f32 v[{60+kk}:{61+kk}], v[{64+kk}:{65+kk}], v[{68+kk}:{69+kk}]")
        for k in range(2, n):
            a(f"s_waitcnt vmcnt({n-1-k})")
            a(f"v_max_u32 v3, v3, v{67+4*k}")
            for kk in (0, 2):
                a(f"v_pk_add_f32 v[{60+kk}:{61+kk}], v[{60+kk}:{61+kk}], v[{64+4*k+kk}:{65+4*k+kk}]")
        a("v_cmp_eq_u32 vcc, -1, v3")
        a(f"s_cbranch_vccnz L_Z_{name}_r")
        a(f"L_Z_{name}_ok:")
        slow.append(f"""L_Z_{name}_r:
            s_cmp_lt_u32 s28, {SPIN}
            s_cbranch_scc1 L_Z_{name}
            s_branch L_Z_{name}_ok""")
        a("v_permlane32_swap_b32 v60, v62")
        a("v_permlane32_swap_b32 v61, v63")
        a("v_add_f32 v60, v60, v62")
        a("v_add_f32 v61, v61, v63")
        a("v_permlane16_swap_b32 v60, v61")
        a("v_add_f32 v60, v60, v61")
        a("v_add_f32 v60, v60, v60 row_ror:8 row_mask:0xf bank_mask:0xf")
        a("v_add_f32 v60, v60, v60 row_ror:4 row_mask:0xf bank_mask:0xf")
        rbf(60)

    z_gather("y", XY, 2, 0x100000, 56)
    a("v_lshlrev_b32 v50, 16, v50")
    a("v_add_f32 v50, v50, v60")
    rbf(50)
    a(f"v_mul_f32 v3, {f32(-math.log2(math.e))}, v50")
    a("v_exp_f32 v3, v3")
    a("v_add_f32 v3, 1.0, v3")
    a("v_rcp_f32 v3, v3")
    a("v_mul_f32 v50, v50, v3")
    rbf(50)
    a("v_lshlrev_b32 v49, 16, v49")
    stamp(13)
    if P["n5_pos"] >= 0:
        poll_cnt("Z_n5", [str(128 * k) for k in range(8)], 15, 0)
    stamp(14)
    z_gather("s", XS, 8, 0x1000000, 56)
    a("v_mul_f32 v60, v60, v50")
    rbf(60)
    a("v_add_f32 v60, v60, v49")
    a("v_cvt_pk_bf16_f32 v60, v60, v60")
    a("s_mov_b32 exec_lo, 0x000f000f")
    a("s_mov_b32 exec_hi, 0x000f000f")
    a("buffer_store_short v60, v48, s[84:87], s40 offen")
    a("s_cmp_lg_u32 s35, 0")
    a("s_cbranch_scc1 L_A_end")
    a("s_mov_b64 exec, 1")
    a("v_mov_b32 v3, s26")
    a(f"buffer_store_dword v3, off, s[16:19], 0 offset:{EPOCH} sc1")
    a("L_A_end:")
    dump_stamps()
    a("s_endpgm")

    a(".p2align 8")
    a("L_F:")
    role[0] = "F"
    a.vm = []
    common_ids()
    srd(4, 1280)
    a("s_sub_u32 s25, s25, 16")
    a("s_lshl_b32 s89, s24, 2")
    a("s_add_u32 s89, s89, s25")
    a("s_sub_u32 s89, s89, 12")
    a(f"s_mul_i32 s36, s89, {CLR_PER}")
    a(f"s_add_u32 s36, s36, {CLR0}")
    a(f"s_add_u32 s37, s36, {CLR_PER}")
    a("v_lshlrev_b32 v56, 4, v0")
    for k in range(4):
        a(f"v_mov_b32 v{60+k}, -1")
    a("v_lshrrev_b32 v2, 3, v1")
    a("v_and_b32 v5, 7, v1")
    a("s_and_b32 s46, s25, 3")
    a("s_lshl_b32 s46, s46, 2")
    a("s_add_u32 s46, s46, s3")
    a("v_min_u32 v6, 31, v0")
    a("v_lshlrev_b32 v6, 7, v6")
    a("s_lshl_b32 s27, s89, 12")
    a(f"s_add_u32 s27, s27, {XQ}")
    a("s_mul_i32 s42, s89, 3072")
    a(f"s_add_u32 s42, s42, {XQA}")
    a("s_mov_b32 s43, s27")
    only_if(57, 3, 64, 56)
    a("s_mov_b32 s82, 1")
    a("s_waitcnt lgkmcnt(0)")
    load_epoch()
    a.vmem("buffer_store_dwordx4 v[60:63], v57, s[16:19], s42 offen sc1", "c1")
    a.vmem("buffer_store_dwordx4 v[60:63], v57, s[16:19], s42 offen offset:1024 sc1", "c1")
    a.vmem("buffer_store_dwordx4 v[60:63], v57, s[16:19], s42 offen offset:2048 sc1", "c1")
    if P["xq_sc1"] != 1:
        a.vmem("buffer_load_dword v18, v6, s[16:19], s43 offen sc1", "pt")
    x_loads()
    a("s_cmp_lg_u32 s3, 0")
    a("s_cbranch_scc1 L_F_noadd0")
    a(f"s_waitcnt vmcnt({a.vm_n('c1')}) lgkmcnt(0)")
    a("s_atomic_add s82, s[30:31], 0")
    a("L_F_noadd0:")
    a("s_load_dwordx2 s[12:13], s[0:1], 56")
    a("s_load_dwordx2 s[8:9], s[0:1], 72")
    a("s_load_dwordx2 s[96:97], s[0:1], 64")
    a("s_load_dwordx2 s[20:21], s[0:1], 40")
    if P.get("no_clr"):
        a("v_mov_b32 v56, 0x20000000")
    a("L_F_clr:")
    a("buffer_store_dwordx4 v[60:63], v56, s[16:19], s36 offen sc1")
    a("s_add_u32 s36, s36, 4096")
    a("s_cmp_lt_u32 s36, s37")
    a("s_cbranch_scc1 L_F_clr")
    a.vm += ["clr"] * (CLR_PER // 4096)
    a("s_lshl_b32 s36, s89, 14")
    a(f"s_add_u32 s36, s36, {XP}")
    a("s_mov_b32 s27, s36")
    for k in range(4):
        a.vmem("buffer_store_dwordx4 v[60:63], v56, s[16:19], s27 offen sc1", "clr")
        a("s_add_u32 s27, s27, 4096")
    a("s_lshl_b32 s37, s89, 11")
    a(f"s_add_u32 s37, s37, {XM}")
    a("v_and_b32 v57, 0x7ff, v56")
    a.vmem("buffer_store_dwordx4 v[60:63], v57, s[16:19], s37 offen sc1", "clr")
    sel_masks(152, 3)
    a("v_mul_u32_u24 v6, 3072, v2")
    a("v_lshl_add_u32 v6, v5, 4, v6")
    a(f"s_mul_i32 s44, s46, {40*3072}")
    a("s_mul_i32 s27, s24, 384")
    a("s_add_u32 s44, s44, s27")
    a(f"s_movk_i32 s45, {8*3072}")
    a.wait_vm("x", " lgkmcnt(0)")
    make_tag()
    srd(12, 0 if P.get("no_f") else 1966080)
    srd(20, 0 if P.get("no_f") else 7864320)
    ln_part()
    fn = [0]

    def f_next():
        n = fn[0]
        if n < 15:
            tile40_load(n, 64, 6, 12, "w1")
        elif n < 30:
            q = 128 + 4 * (n - 15)
            a.vmem(f"buffer_load_dwordx4 a[{q}:{q+3}], v159, s[8:11], s{38+(n-15)//5} offen offset:{((n-15)%5)*256} {NT}", "w2")
        else:
            wo_load(n - 30)
        fn[0] += 1

    def f_flags():
        a("s_waitcnt lgkmcnt(0)")
        flag_check("F", 1)
        same_add("F")

    a("v_and_b32 v18, 15, v1")
    a("v_lshrrev_b32 v19, 4, v1")
    tail_setup(25, 18, 19, 3)
    a("v_mov_b32 v163, 0x20000000")
    srd(8, 0 if P.get("no_f") else 1966080)
    srd(96, 3072)
    a("s_mul_i32 s27, s24, 48")
    a("s_add_u32 s27, s27, s46")
    a("s_mul_i32 s38, s27, 5120")
    a(f"s_add_u32 s39, s38, {64*1280}")
    a(f"s_add_u32 s40, s38, {128*1280}")
    a("s_lshl_b32 s47, s27, 3")
    a("s_lshl_b32 s41, s89, 10")
    a(f"s_add_u32 s41, s41, {XH}")
    a("s_mul_i32 s43, s89, 2560")
    a(f"s_add_u32 s43, s43, {XY}")
    a("s_lshl_b32 s42, s24, 12")
    a("s_lshl_b32 s27, s46, 6")
    a("s_add_u32 s42, s42, s27")
    a(f"s_add_u32 s42, s42, {XH}")
    a("v_and_b32 v3, 3, v1")
    a("v_lshlrev_b32 v3, 10, v3")
    a("v_lshl_add_u32 v59, v19, 4, v3")
    phase5_addrs(11, 0, 3)

    def ck_pf():
        a("v_xor_b32 v3, 3, v19")
        a("v_lshl_add_u32 v3, v3, 4, v18")
        a("v_mul_u32_u24 v3, 1536, v3")
        a("v_mul_u32_u24 v4, 384, v19")
        a("v_add_u32 v16, v3, v4")
        a("s_lshl_b32 s27, s24, 4")
        a("s_add_u32 s27, s27, s46")
        a(f"s_mul_i32 s27, s27, {64*1536}")
        for t in range(3 - P["ck_pf"], 3):
            a.vmem(f"buffer_load_dword v17, v16, s[4:7], s27 offen offset:{t*128}", "pf")

    if P["ck_pf"]:
        a("s_load_dwordx2 s[4:5], s[0:1], 8")
        srd(4, 12582912)
        a("s_waitcnt lgkmcnt(0)")
        if P["ck_pf_early"]:
            ck_pf()
    a.wait_vm("clr")
    a("s_barrier")
    stamp(1)
    a("s_cmp_lg_u32 s3, 0")
    a("s_cbranch_scc1 L_F_noadd")
    a("s_atomic_add s82, s[30:31], 128")
    a("L_F_noadd:")
    a("v_min_u32 v14, 127, v0")
    a("v_lshlrev_b32 v14, 7, v14")
    a.vmem("buffer_load_dword v15, v14, s[16:19], s36 offen sc1", "pt")
    a("v_and_b32 v14, 0x7ff, v14")
    a.vmem("buffer_load_dword v15, v14, s[16:19], s37 offen sc1", "pt")
    a("v_lshlrev_b32 v3, 1, v19")
    for t in range(3):
        a.vmem(f"buffer_load_ushort v{56+t}, v3, s[96:99], s47 offen offset:{128*t}", "b1")
    if P["ck_pf"] and not P["ck_pf_early"]:
        ck_pf()
    a("v_min_u32 v14, 95, v0")
    a("v_lshlrev_b32 v14, 7, v14")
    a("s_mul_i32 s27, s89, 12288")
    a(f"s_add_u32 s27, s27, {XC}")
    a.vmem("buffer_load_dword v15, v14, s[16:19], s27 offen sc1", "pt")
    while fn[0] < 15:
        throttle(P["dF"] if fn[0] >= P["nF0"] else 0)
        f_next()
        if fn[0] == 13:
            flag_load(1)
    tile40_finish("F_h", 64, "w1", f_next, P["dF"] + 1, P["dF"], 140, 41, " sc1", f_flags)
    stamp(5)
    while fn[0] < 30:
        throttle(P["dF2"])
        f_next()
    XHL = "buffer_load_dwordx4 v[60:63], v59, s[16:19], s42 offen sc1"
    a.vmem(XHL, "xh")
    while "xh" in a.vm and fn[0] < 45:
        throttle(P["dF2"])
        if "xh" in a.vm:
            f_next()
    if "xh" in a.vm:
        a.wait_vm("xh")
    stamp(6)
    a("v_cmp_ne_u32 vcc, s26, v63")
    a("s_cbranch_vccnz L_F_xh_slow")
    a("L_F_xh_ok:")
    slow.append(f"""L_F_xh_slow:
        s_mov_b32 s28, 0
        L_F_xh_loop:
        s_add_u32 s29, s29, 1
        {XHL}
        s_add_u32 s28, s28, 1
        s_waitcnt vmcnt(0)
        v_cmp_ne_u32 vcc, s26, v63
        s_cbranch_vccz L_F_xh_ok
        s_cmp_lt_u32 s28, {SPIN}
        s_cbranch_scc1 L_F_xh_loop
        s_branch L_F_xh_ok""")

    def gelu_part():
        for m in ("quad_perm:[1,0,3,2]", "quad_perm:[2,3,0,1]"):
            for k in range(3):
                a(f"v_add_f32 v{60+k}, v{60+k}, v{60+k} {m} row_mask:0xf bank_mask:0xf")
        for k in range(3):
            v = 60 + k
            rbf(v)
            a(f"v_lshlrev_b32 v3, 16, v{56+k}")
            a(f"v_add_f32 v{v}, v{v}, v3")
            rbf(v)
            a(f"v_mul_f32 v3, v{v}, v{v}")
            a(f"v_mul_f32 v3, {f32(0.044715)}, v3")
            a("v_add_f32 v3, 1.0, v3")
            a(f"v_mul_f32 v3, v3, v{v}")
            a(f"v_mul_f32 v3, {f32(-2*math.sqrt(2/math.pi)*math.log2(math.e))}, v3")
            a("v_exp_f32 v3, v3")
            a("v_add_f32 v3, 1.0, v3")
            a("v_rcp_f32 v3, v3")
            a(f"v_mul_f32 v{v}, v{v}, v3")

    gl = cap(gelu_part)
    for i, l in enumerate(gl):
        a(l)
        if i % 16 == 15 and fn[0] < 45:
            f_next()

    def f_hook(pos):
        if fn[0] < 45 and pos <= 4:
            f_next()

    phase5(60, 152, 128, 72, 11, 43, ng=3, hook=f_hook)
    stamp(7)
    while fn[0] < 45:
        throttle(P["dF2"])
        f_next()
    a("s_mov_b32 s80, 31")
    a("s_branch L_T")
    for blk in slow:
        a(blk)
    a("L_codeend:")

    body = fix_hazards(a.L)
    hdr = open("recurrent_scan__compressed_kv_cla__dense_activation_gelu__decode.s.ref").read().split("; Override launch")[0] if P.get("hdr", 1) else ""
    out = hdr
    out += f"; @launch grid=(256,1,1) block=(256,1,1) lds={LDS_SIZE}\n"
    out += f""".amdgcn_target "amdgcn-amd-amdhsa--gfx950"
.text
.globl {KN}
.p2align 8
.type {KN},@function
{KN}:
"""
    out += "\n".join(("" if l.endswith(":") or l.startswith(".") else "    ") + l for l in body)
    out += f"""
s_endpgm
.section .rodata,"a"
.p2align 6
.amdhsa_kernel {KN}
  .amdhsa_next_free_vgpr 512
  .amdhsa_next_free_sgpr 102
  .amdhsa_accum_offset 256
  .amdhsa_group_segment_fixed_size 0
  .amdhsa_kernarg_size 112
  .amdhsa_user_sgpr_count 2
  .amdhsa_user_sgpr_kernarg_segment_ptr 1
  .amdhsa_system_sgpr_workgroup_id_x 1
  .amdhsa_float_denorm_mode_32 3
.end_amdhsa_kernel
"""
    return out


def parse(spec):
    kw = {}
    for p in spec.split(","):
        if "=" in p:
            k, v = p.split("=")
            kw[k] = int(v) if v.lstrip("-").isdigit() else v.replace("+", " ").replace("_", "")
    return kw


if __name__ == "__main__":
    out = sys.argv[1]
    kw = parse(sys.argv[2]) if len(sys.argv) > 2 else {}
    open(out, "w").write(gen(**kw))
```

```python
import sys, importlib, os
import gen_base as gb
G = importlib.import_module(os.environ.get("GEN", "gen"))
def amp(word, AMP, j0, j1, kind):
    L = []; a = L.append
    a("s_cmp_ge_u32 s2, 1"); a("s_cbranch_scc1 L_amp_end")
    gb.srd(a, 8, "ws"); gb.srd(a, 12, "dbg"); a("s_waitcnt lgkmcnt(0)")
    a("v_lshlrev_b32 v1, 7, v0"); a(f"s_mov_b32 s16, {G.STAMP}")
    for j in range(16):
        a(f"buffer_load_dword v{10+j}, v1, s[8:11], s16 offen"); a(f"buffer_load_dword v{30+j}, v1, s[8:11], s16 offen offset:{4*word}"); a("s_add_u32 s16, s16, 8192")
    a("s_waitcnt vmcnt(0)")
    a("v_mov_b32 v2, -1"); a("v_mov_b32 v4, 0")
    for j in range(16): a(f"v_min_u32 v2, v2, v{10+j}")
    gb.wave_reduce(a, 2, 3, "v_min_u32")
    for j in range(j0, j1):
        a(f"v_sub_u32 v5, v{30+j}, v2")
        a("v_max_i32 v4, v4, v5" if kind == "max" else "v_add_u32 v4, v4, v5")
    gb.wave_reduce(a, 4, 3, "v_max_i32" if kind == "max" else "v_add_u32")
    if kind != "max":
        a("v_cvt_f32_u32 v4, v4"); a(f"v_mul_f32 v4, {G.f32(1.0/(64*(j1-j0)))}, v4"); a("v_cvt_u32_f32 v4, v4")
    a("v_min_u32 v4, 5000, v4")
    a("s_nop 1"); a("v_readfirstlane_b32 s20, v4"); a(f"s_mul_i32 s20, s20, {AMP}")
    a("s_memrealtime s[22:23]"); a("s_waitcnt lgkmcnt(0)")
    a("L_amp_spin:"); a("s_memrealtime s[24:25]"); a("s_waitcnt lgkmcnt(0)"); a("s_sub_u32 s24, s24, s22"); a("s_cmp_lt_u32 s24, s20"); a("s_cbranch_scc1 L_amp_spin")
    a("L_amp_end:")
    return L
def wrap(spec, item, AMP):
    src = G.gen(hdr=0, **G.parse(spec))
    kind = "max" if item[0].isupper() else "mean"
    j0, j1 = {"A": (0, 8), "H": (8, 14), "F": (14, 16)}[item[0].upper()]
    L = amp(int(item[1:]), AMP, j0, j1, kind)
    head = f"; @launch kernel={G.KN} grid=(256,1,1) block=(256,1,1) lds={G.LDS_SIZE}\n; @launch kernel=amp_kernel grid=(1,1,1) block=(64,1,1) lds=0\n"
    src = head + src.split("\n", 1)[1]
    code = ".globl amp_kernel\n.p2align 8\n.type amp_kernel,@function\namp_kernel:\n" + "\n".join(L) + "\ns_endpgm\n"
    src = src.replace('.section .rodata,"a"', code + '.section .rodata,"a"')
    src += """.p2align 6
.amdhsa_kernel amp_kernel
  .amdhsa_next_free_vgpr 64
  .amdhsa_next_free_sgpr 96
  .amdhsa_accum_offset 64
  .amdhsa_group_segment_fixed_size 0
  .amdhsa_kernarg_size 112
  .amdhsa_user_sgpr_count 2
  .amdhsa_user_sgpr_kernarg_segment_ptr 1
  .amdhsa_system_sgpr_workgroup_id_x 1
.end_amdhsa_kernel
"""
    return src
if __name__ == "__main__":
    for i, item in enumerate(sys.argv[2:]):
        open(f"amp{i}.s", "w").write(wrap(sys.argv[1], item, 100))
```

```python
import sys, struct, math
from asmlib import Asm, fix_hazards

KN = "recurrent_scan__compressed_kv_cla__dense_activation_gelu__decode_kernel"


def f32(x):
    return hex(struct.unpack("<I", struct.pack("<f", x))[0])


EPOCH = 0
XH = 0x8000
XQ = 0x10000
XP = 0x40000
XM = XP + 65536
PM = 73728
XC = 0xD0000
XQA = 0x130000
XN2 = XQA + 49152
XI = XN2 + 16384
CLR0 = XQA + 98304
XN3 = CLR0
XN5 = XN3 + 8192
XML = XN5 + 8192
XO = XML + 32768
XS = XO + 786432
XY = XS + 128 * 2560
CLR_END = XY + 32 * 2560
CLR_PER = 40960
assert CLR_END <= CLR0 + 32 * CLR_PER
STAMP = 0x400000
WS_SIZE = 0x10000000

R1 = 24608
R2 = 4 * R1
LDS_SIZE = R2 + 24576 + 1024
SPIN = 200000

DEF = dict(stamps=0, wnt="nt", local=1, re=1, cpf=1,
           dQ=7, x_at=7, a_first=2, q_bar=1, dH1=7, nH1=0, dH=5, x1_wait=3, x1_at=99, wo_late=0, qa_lines=0, p5w=1, outf='', out_pt=0,
           dV1=3, nV1=5, dV=7, c0_alone=1, a_lvl=1, h1_early=0, dClr=63, n2=2, n2_at=23, n2_tgt=22,
           q_looks=12, dC1=4, nC1=0, dC=7, a_flag_at=18, a_x2_wait=8, rr=2, qrot=1,
           l2_in_s=12, l2_after1=0, l2b_w=0, l2b_r=2, l2b_mid=3, l2a_wait=1, tr_pre=60, p_ahead=6, tr_in=4, tr_pro=0,
           n3_step=13, n5_priv=4, n5_who=3, n5_pos=2, h_looks=10, a_looks=8, nF0=0, dF=4, dF2=5)


def gen(**kw):
    P = dict(DEF)
    P.update(kw)
    a = Asm()
    NT = P["wnt"]
    RE = P["local"] and P["re"]

    def stamp(i, fine=None):
        if not P["stamps"]:
            return
        if fine is None:
            if P["stamps"] != 1 and (role[0] == "A" or P["stamps"] == 3) and 0 < i < 15:
                return
        elif fine != P["stamps"]:
            return
        a(f"s_memrealtime s[{48+2*i}:{49+2*i}]")
        if fine is None and 0 < i < 15 and P.get("stop" + role[0]) == i:
            a("s_waitcnt vmcnt(0)")
            dump_stamps()
            a("s_endpgm")
            a(f"L_dead_{role[0]}:")

    role = ["H"]

    def dump_stamps():
        if not P["stamps"]:
            return
        stamp(15)
        if P.get("clk"):
            a("s_memtime s[76:77]")
        a("s_waitcnt lgkmcnt(0)")
        a("s_mov_b64 exec, -1")
        a("v_mov_b32 v250, 0")
        for i in range(16):
            a(f"v_writelane_b32 v250, s{48+2*i}, {i}")
        a("v_writelane_b32 v250, s29, 16")
        a("s_lshl_b32 s27, s2, 2\ns_add_u32 s27, s27, s3\ns_lshl_b32 s27, s27, 7")
        a(f"s_add_u32 s27, s27, {STAMP}")
        a("v_lshlrev_b32 v251, 2, v1")
        a("s_mov_b32 exec_hi, 0")
        a("buffer_store_dword v250, v251, s[16:19], s27 offen sc1")

    def srd(reg, size):
        a(f"s_mov_b32 s{reg+2}, {size}")
        a(f"s_mov_b32 s{reg+3}, 0x20000")

    def common_ids():
        a("v_lshrrev_b32 v2, 6, v0")
        a("v_and_b32 v1, 63, v0")
        a("v_readfirstlane_b32 s3, v2")
        a("s_and_b32 s24, s2, 7")
        srd(16, WS_SIZE)
        a("s_mov_b32 s29, 0")
        if P.get("stop" + role[0]) == 0:
            a("s_waitcnt lgkmcnt(0)")
            for i in range(1, 16):
                a(f"s_mov_b64 s[{48+2*i}:{49+2*i}], 0")
            dump_stamps()
            a("s_endpgm")
            a(f"L_dead_{role[0]}:")
        if P["stamps"] and P["stamps"] != 3:
            for i in range(1, 16):
                a(f"s_mov_b64 s[{48+2*i}:{49+2*i}], 0")

    def load_epoch():
        a(f"s_load_dword s26, s[16:17], {EPOCH}")
        a("s_load_dwordx2 s[30:31], s[0:1], 96")

    def make_tag():
        a("s_mul_i32 s26, s26, 0x9e3779b1")
        a("s_add_u32 s26, s26, 0x7f4a7c15")

    def rbf(v, t=None):
        a(f"v_cvt_pk_bf16_f32 v{v}, v{v}, v{v}")
        a(f"v_and_b32 v{v}, 0xffff0000, v{v}")

    def wave_sum(v, s):
        for m in ("quad_perm:[1,0,3,2] row_mask:0xf", "quad_perm:[2,3,0,1] row_mask:0xf", "row_half_mirror row_mask:0xf",
                  "row_mirror row_mask:0xf", "row_bcast:15 row_mask:0xa", "row_bcast:31 row_mask:0xc"):
            a(f"v_add_f32 v{v}, v{v}, v{v} {m} bank_mask:0xf")
        a(f"v_readlane_b32 s{s}, v{v}, 63")

    def x_stats_loads(v):
        a("v_lshlrev_b32 v3, 4, v1")
        a("v_lshlrev_b32 v4, 2, v1")
        a.vmem(f"buffer_load_dwordx4 v[{v}:{v+3}], v3, s[4:7], 0 offen", "x")
        a.vmem(f"buffer_load_dword v{v+4}, v4, s[4:7], 0 offen offset:1024", "x")

    def ln_stats(v, t):
        for j in range(5):
            a(f"v_lshlrev_b32 v{t+2*j}, 16, v{v+j}")
            a(f"v_and_b32 v{t+2*j+1}, 0xffff0000, v{v+j}")
        a(f"v_add_f32 v{t+10}, v{t}, v{t+1}")
        for j in range(2, 10):
            a(f"v_add_f32 v{t+10}, v{t+10}, v{t+j}")
        wave_sum(t + 10, 32)
        a(f"v_mov_b32 v{t+10}, {f32(1/640)}")
        a(f"v_mul_f32 v{t+10}, s32, v{t+10}")
        for j in range(10):
            a(f"v_sub_f32 v{t+j}, v{t+j}, v{t+10}")
        a(f"v_mul_f32 v{t+11}, v{t}, v{t}")
        for j in range(1, 10):
            a(f"v_fmac_f32 v{t+11}, v{t+j}, v{t+j}")
        wave_sum(t + 11, 33)
        a(f"v_mov_b32 v{t+11}, {f32(1/640)}")
        a(f"v_mul_f32 v{t+11}, s33, v{t+11}")
        rbf(t + 10)
        rbf(t + 11)
        a(f"v_add_f32 v{t+11}, {f32(1e-5)}, v{t+11}")
        rbf(t + 11)
        a(f"v_sqrt_f32 v{t+11}, v{t+11}")
        a(f"v_readfirstlane_b32 s32, v{t+10}")
        rbf(t + 11)
        a(f"v_rcp_f32 v{t+10}, v{t+11}")
        a(f"v_readfirstlane_b32 s33, v{t+11}")
        a(f"v_readfirstlane_b32 s34, v{t+10}")

    def normalize(v, t):
        a(f"v_subrev_f32 v{v}, s32, v{v}")
        rbf(v)
        a(f"v_mul_f32 v{t}, s34, v{v}")
        a(f"v_fma_f32 v{v}, -v{t}, s33, v{v}")
        a(f"v_fmac_f32 v{t}, s34, v{v}")
        a(f"v_cvt_pk_bf16_f32 v{v}, v{t}, v{t}")

    def sel_masks(m, t):
        a(f"v_and_b32 v{t}, 1, v1")
        a(f"v_lshlrev_b32 v{t}, 4, v{t}")
        a(f"v_mov_b32 v{t+1}, 0xffff")
        a(f"v_lshlrev_b32 v{t}, v{t}, v{t+1}")
        a(f"v_bfe_u32 v{t+1}, v1, 1, 2")
        for d in range(4):
            a(f"v_cmp_eq_u32 vcc, {d}, v{t+1}")
            a(f"v_cndmask_b32 v{m+d}, 0, v{t}, vcc")

    LVL = {0: (0, 0, 32), 1: (128, 128, 32)}

    def flag_load(lvl):
        o0, o1, n = LVL[lvl]
        a(f"s_load_dword s92, s[30:31], {o0}")
        if o1 != o0:
            a(f"s_load_dword s95, s[30:31], {o1}")

    def flag_add(name, off):
        a("s_mov_b32 s94, 1")
        a("s_cmp_lg_u32 s3, 0")
        a(f"s_cbranch_scc1 L_{name}_noadd")
        a(f"s_atomic_add s94, s[30:31], {off}")
        a(f"L_{name}_noadd:")

    slow = []

    def cap(f, *args):
        main = a.L
        a.L = []
        f(*args)
        r = a.L
        a.L = main
        return r

    LOC = "" if P["local"] else " sc1"

    def only_if(vd, cond, nl, vsrc):
        a(f"s_cmp_eq_u32 s{cond}, 0")
        a(f"s_cselect_b32 s27, {nl}, 0")
        a("v_cmp_gt_u32 vcc, s27, v1")
        a(f"v_mov_b32 v{vd}, 0x20000000")
        a(f"v_cndmask_b32 v{vd}, v{vd}, v{vsrc}, vcc")

    def notice(va, soff):
        a.vmem(f"buffer_atomic_add v161, v{va}, s[16:19], s{soff} offen sc1", "note")

    def poll_cnt(name, offs, target, cnt, late=None):
        a("s_mov_b32 s28, 0")
        a(f"L_{name}:")
        if late:
            a(f"s_cmp_eq_u32 s28, {late[0]}")
            a(f"s_cbranch_scc1 L_{name}_late")
            a(f"L_{name}_go:")
            slow.append(f"L_{name}_late:\n{late[1]}\ns_branch L_{name}_go")
        for i, o in enumerate(offs):
            a(f"s_load_dword s{92+i}, s[90:91], {o} glc")
        a("s_add_u32 s28, s28, 1")
        if cnt:
            a(f"s_add_u32 s29, s29, {cnt}")
        a(f"s_cmp_ge_u32 s28, {SPIN}")
        a("s_waitcnt lgkmcnt(0)")
        a(f"s_cbranch_scc1 L_{name}_out")
        for i in range(1, len(offs)):
            a(f"s_min_i32 s92, s92, s{92+i}")
        a(f"s_cmp_lt_i32 s92, {target}")
        a(f"s_cbranch_scc1 L_{name}")
        a(f"L_{name}_out:")

    def same_add(name):
        a("s_getreg_b32 s80, hwreg(HW_REG_XCC_ID, 0, 4)")
        a("s_lshl_b32 s80, s80, 2")
        a("s_lshl_b32 s93, s24, 7")
        a("s_add_u32 s80, s80, s93")
        a(f"s_add_u32 s80, s80, {XI}")
        a("s_cmp_lg_u32 s3, 0")
        a(f"s_cbranch_scc1 L_{name}_nocensus")
        a("s_mov_b32 s93, 1")
        a("s_atomic_add s93, s[16:17], s80")
        a(f"L_{name}_nocensus:")

    def same_load():
        a("s_load_dword s80, s[16:17], s80")

    def unless_same(label):
        a("s_cmp_eq_u32 s80, 31")
        a(f"s_cbranch_scc1 {label}")

    def cnt_base(sreg):
        a(f"s_add_u32 s90, s16, s{sreg}")
        a("s_addc_u32 s91, s17, 0")

    def pop_n(fill, n):
        while fill and (n > 0 or fill[0].startswith(("s_cselect", "s_addc", "s_cbranch", "v_cndmask")) or
                        (len(fill) > 1 and fill[1].startswith("v_cndmask") and not fill[0].startswith("v_cmp"))):
            a(fill.pop(0))
            n -= 1

    def throttle(d):
        if len(a.vm) > d:
            a.wait_vm_n(d)

    def flag_check(name, lvl):
        o0, o1, n = LVL[lvl]
        if o1 != o0:
            a("s_min_u32 s92, s92, s95")
        a(f"s_cmp_lt_u32 s92, {n}")
        a(f"s_cbranch_scc1 L_{name}_fslow")
        a(f"L_{name}_fok:")
        slow.append(f"""L_{name}_fslow:
            s_mov_b32 s92, 0
            v_and_b32 v252, 1, v1
            v_mul_u32_u24 v252, {o1-o0}, v252
            L_{name}_floop:
            s_add_u32 s29, s29, 0x10000
            s_sleep 8
            global_load_dword v253, v252, s[30:31] offset:{o0} sc1
            s_add_u32 s92, s92, 1
            s_waitcnt vmcnt(0)
            v_cmp_gt_u32 vcc, {n}, v253
            s_cbranch_vccz L_{name}_fok
            s_cmp_lt_u32 s92, {SPIN}
            s_cbranch_scc1 L_{name}_floop
            s_branch L_{name}_fok""")

    def phase5(vin, vmask, wreg, vt, lds_s, s_out, ng=4, hook=None):
        acc = vt + 16
        for t in range(ng):
            a(f"v_cvt_pk_bf16_f32 v{vin+t}, v{vin+t}, v{vin+t}")
        for d in range(4):
            a(f"v_and_b32 v{vt+d}, v{vin}, v{vmask+d}")
        assert ng == 3
        seq = [(0, 0), (0, 1), (0, 2), (1, 0), (1, 1), (2, 0), (2, 1), (1, 2), (2, 2)] + [(t, b) for b in (3, 4) for t in range(3)]
        wr = lambda b: a(f"ds_write_b128 v{lds_s}, v[{acc+4*b}:{acc+4*b+3}] offset:{b*512}")
        for i, (t, b) in enumerate(seq):
            if hook and i % 5 == 0:
                hook(i // 5 + 1)
            q = wreg + 4 * (t * 5 + b)
            c = "0" if t == 0 else f"v[{acc+4*b}:{acc+4*b+3}]"
            a(f"v_mfma_f32_16x16x32_bf16 v[{acc+4*b}:{acc+4*b+3}], v[{vt+4*t}:{vt+4*t+3}], a[{q}:{q+3}], {c}")
            if i < 4:
                for d in (2 * (i & 1), 2 * (i & 1) + 1):
                    a(f"v_and_b32 v{vt+4*(i//2+1)+d}, v{vin+i//2+1}, v{vmask+d}")
            if P["p5w"] == 2 and i == 4:
                a("s_mov_b32 exec_hi, 0xff")
            if P["p5w"] and i in (8, 9, 11, 14):
                wr({8: 0, 9: 1, 11: 2, 14: 3}[i])
                if i < 14:
                    a("s_nop 0")
            elif P["p5w"] and i >= 5:
                a("s_nop 1")
        if hook:
            hook(ng + 1)
        if not P["p5w"]:
            a("s_mov_b32 exec_hi, 0")
        for b in range(4 if P["p5w"] else 0, 5):
            wr(b)
        a("s_mov_b32 exec_hi, 0xff")
        if hook:
            hook(ng + 2)
        a("s_waitcnt lgkmcnt(0)")
        a("s_barrier")
        for w in range(4):
            a(f"ds_read_b128 v[{vt+4*w}:{vt+4*w+3}], v{lds_s+1} offset:{w*2560}")
        a("s_waitcnt lgkmcnt(2)")
        for k in (0, 2):
            a(f"v_pk_add_f32 v[{vt+k}:{vt+k+1}], v[{vt+k}:{vt+k+1}], v[{vt+4+k}:{vt+5+k}]")
        a("s_waitcnt lgkmcnt(0)")
        for k in (0, 2):
            a(f"v_pk_add_f32 v[{vt+8+k}:{vt+9+k}], v[{vt+8+k}:{vt+9+k}], v[{vt+12+k}:{vt+13+k}]")
        for k in (2, 0):
            a(f"v_pk_add_f32 v[{vt+k}:{vt+k+1}], v[{vt+k}:{vt+k+1}], v[{vt+8+k}:{vt+9+k}]")
        a(f"v_min_u32 v{vt+3}, -2, v{vt+3}")
        a.vmem(f"buffer_store_dwordx4 v[{vt}:{vt+3}], v{lds_s+2}, s[16:19], s{s_out} offen sc1", "pub")
        a("s_mov_b64 exec, -1")

    def phase5_addrs(lds_s, base, t):
        a(f"v_and_b32 v{t}, 15, v1")
        a(f"v_lshlrev_b32 v{t}, 5, v{t}")
        a(f"v_and_b32 v{t+1}, 16, v1")
        a(f"s_mul_i32 s27, s3, 2560")
        a(f"s_add_u32 s27, s27, {base}")
        a(f"v_add3_u32 v{lds_s}, v{t}, v{t+1}, s27")
        a(f"s_mul_i32 s27, s3, 640")
        a(f"v_lshl_add_u32 v{lds_s+2}, v1, 4, s27")
        a(f"v_add_u32 v{lds_s+1}, {base}, v{lds_s+2}")

    def tail_setup(sn, vj, vg, vt):
        phase5_addrs(156, R2 + 14336, vt)
        a(f"v_mul_u32_u24 v{vt}, 1280, v{vg}")
        a(f"v_lshl_add_u32 v159, v{vj}, 4, v{vt}")
        a(f"v_lshlrev_b32 v{vt}, 10, v{vj}")
        a(f"v_lshl_add_u32 v160, v{vg}, 4, v{vt}")
        a(f"s_lshr_b32 s87, s{sn}, 2")
        a("s_lshl_b32 s27, s24, 2")
        a("s_add_u32 s87, s87, s27")
        a(f"s_and_b32 s27, s{sn}, 3")
        a("s_lshl_b32 s27, s27, 2")
        a("s_add_u32 s27, s27, s3")
        a("s_mul_i32 s84, s87, 48")
        a("s_add_u32 s84, s84, s27")
        a("s_mulk_i32 s84, 5120")
        a(f"s_add_u32 s85, s84, {64*1280}")
        a(f"s_add_u32 s86, s84, {128*1280}")
        a("s_mulk_i32 s87, 12288")
        a("s_lshl_b32 s27, s27, 6")
        a("s_add_u32 s87, s87, s27")
        a(f"s_add_u32 s87, s87, {XC}")
        a("s_lshl_b32 s88, s24, 4")
        a(f"s_add_u32 s88, s88, s{sn}")
        if P["n5_priv"]:
            a(f"s_mov_b32 s83, {XN5}")
        else:
            a("s_lshl_b32 s83, s24, 7")
            a(f"s_add_u32 s83, s83, {XN5}")
        a("s_mulk_i32 s88, 2560")
        a(f"s_add_u32 s88, s88, {XS}")
        for k in range(3):
            a(f"v_mov_b32 v{164+k}, 0")
        a("v_mov_b32 v161, 1")
        if P["n5_priv"]:
            a(f"s_and_b32 s28, s{sn}, {16 // P['n5_priv'] - 1}")
            a(f"s_xor_b32 s28, s28, {P['n5_who'] & (16 // P['n5_priv'] - 1)}")
            a("s_or_b32 s28, s28, s3")
            a(f"v_lshlrev_b32 v{vt}, 7, v1")
            only_if(162, 28, 40, vt)
        else:
            a(f"v_lshlrev_b32 v{vt}, 10, v1")
            only_if(162, 3, 8, vt)

    def wo_load(n):
        q = 192 + 4 * n
        a.vmem(f"buffer_load_dwordx4 a[{q}:{q+3}], v159, s[20:23], s{84+n//5} offen offset:{(n%5)*256} {NT}", "wo")

    def tail():
        re = "buffer_store_dwordx4 v[28:31], v163, s[16:19], s43 offen sc1"
        a("L_T:")
        a("s_mov_b32 exec_lo, 0x0fff0fff")
        a("s_mov_b32 exec_hi, 0x0fff0fff")
        a("s_mov_b32 s28, 0")
        stamp(13)
        a("L_T_x4:")
        a("buffer_load_dwordx4 v[164:167], v160, s[16:19], s87 offen sc1")
        a("s_add_u32 s28, s28, 1")
        a(f"s_cmp_ge_u32 s28, {P['h_looks']}")
        a("s_cbranch_scc1 L_T_x4_long")
        a("L_T_x4_chk:")
        a.wait_all()
        a("v_cmp_ne_u32 vcc, s26, v167")
        a("s_cbranch_vccnz L_T_x4")
        a("L_T_x4_ok:")
        slow.append(f"""L_T_x4_long:
            s_cmp_lg_u32 s28, {P['h_looks']}
            s_cbranch_scc1 L_T_x4_nore
            s_mov_b64 exec, -1
            {re}
            s_mov_b32 exec_lo, 0x0fff0fff
            s_mov_b32 exec_hi, 0x0fff0fff
            L_T_x4_nore:
            s_cmp_lt_u32 s28, {SPIN}
            s_cbranch_scc1 L_T_x4_chk
            s_waitcnt vmcnt(0)
            s_branch L_T_x4_ok""")
        a("s_mov_b64 exec, -1")
        stamp(14)

        def n5(pos):
            if pos == P["n5_pos"]:
                notice(162, 83)

        n5(0)
        for m in ("quad_perm:[1,0,3,2]", "quad_perm:[2,3,0,1]", "row_half_mirror", "row_mirror"):
            for k in range(3):
                a(f"v_add_f32 v{164+k}, v{164+k}, v{164+k} {m} row_mask:0xf bank_mask:0xf")
        phase5(164, 152, 192, 168, 156, 88, ng=3, hook=n5)
        if RE:
            unless_same("L_T_end")
            a(re)
            a("L_T_end:")

    def x_rows(vd, sreg, ng):
        for g in range(ng):
            a.vmem(f"buffer_load_ushort v{vd+g}, v7, s[4:7], s{sreg} offen offset:{16*g}", "x")

    def rows_load(n, ng, areg, va, srdr, tag):
        g, t = n // 3, n % 3
        q = areg + n * 4
        a.vmem(f"buffer_load_dwordx4 a[{q}:{q+3}], v{va}, s[{srdr}:{srdr+3}], s44 offen offset:{t*128} {NT}", (tag, g))
        if t == 2 and g < ng - 1:
            a("s_add_u32 s44, s44, s45")

    def sel_ops(vx, vop, ng):
        for g in range(ng):
            a(f"v_lshlrev_b32 v{vx+g}, 16, v{vx+g}")
            normalize(vx + g, 3)
            for d in range(4):
                a(f"v_and_b32 v{vop+4*g+d}, v{vx+g}, v{152+d}")

    def red_addrs():
        a("v_bfe_u32 v3, v1, 3, 1")
        a("v_mul_u32_u24 v3, 768, v3")
        a("v_lshl_add_u32 v3, v5, 5, v3")
        a("v_and_b32 v4, 16, v1")
        a("s_mul_i32 s28, s3, 1536")
        a(f"s_add_u32 s28, s28, {R2}")
        a("v_add3_u32 v22, v3, v4, s28")
        a("v_lshlrev_b32 v23, 2, v1")
        a(f"v_add_u32 v23, {R2}, v23")
        a("v_lshlrev_b32 v10, 4, v1")

    def rows_finish(name, ng, vop, areg, tag, nxt, nfirst, depth, dst, slot, flags, before_bar=None, allw=False):
        done = [0]

        def ready():
            while done[0] < ng and (tag, done[0]) not in a.vm:
                g = done[0]
                for t in range(3):
                    q = areg + (g * 3 + t) * 4
                    c = "0" if g == 0 else f"v[{44+4*t}:{47+4*t}]"
                    a(f"v_mfma_f32_16x16x32_bf16 v[{44+4*t}:{47+4*t}], v[{vop+4*g}:{vop+4*g+3}], a[{q}:{q+3}], {c}")
                done[0] += 1

        ready()
        for k in range(nfirst):
            throttle(depth)
            nxt()
            ready()
        while done[0] < ng:
            a.wait_vm((tag, done[0]))
            ready()
        if before_bar:
            before_bar()
        a("s_mov_b32 exec_lo, 0x00ff00ff")
        a("s_mov_b32 exec_hi, 0xff00ff00")
        for t in range(3):
            a(f"ds_write_b128 v22, v[{44+4*t}:{47+4*t}] offset:{t*256}")
        a("s_mov_b64 exec, -1")
        a("s_waitcnt lgkmcnt(0)")
        a("s_barrier")
        if not allw:
            a("s_cmp_lg_u32 s3, 0")
            a(f"s_cbranch_scc1 L_{name}_nopub")
        for k in range(12):
            a(f"ds_read2st64_b32 v[{64+2*k}:{65+2*k}], v23 offset0:{2*k} offset1:{2*k+1}")
        a(f"v_mov_b32 v{dst+3}, s26")
        a("s_waitcnt lgkmcnt(6)")
        for t in range(3):
            a(f"v_add_f32 v{dst+t}, v{64+t}, v{67+t}")
        for p in (2, 3):
            for t in range(3):
                a(f"v_add_f32 v{dst+t}, v{dst+t}, v{64+3*p+t}")
        a("s_waitcnt lgkmcnt(0)")
        for p in range(4, 8):
            for t in range(3):
                a(f"v_add_f32 v{dst+t}, v{dst+t}, v{64+3*p+t}")
        if allw:
            a.vmem(f"buffer_store_dwordx4 v[{dst}:{dst+3}], v148, s[16:19], s{slot} offen{flags}", "pub")
        else:
            a(f"buffer_store_dwordx4 v[{dst}:{dst+3}], v10, s[16:19], s{slot} offen{flags}")
            a(f"L_{name}_nopub:")

    gA = 5
    NQ = 4

    stamp(0)
    if P.get("clk"):
        a("s_memtime s[74:75]")
    a("s_cmpk_ge_u32 s2, 256")
    a("s_cbranch_scc1 L_exit")
    a("s_load_dwordx2 s[4:5], s[0:1], 0")
    a("s_load_dwordx2 s[8:9], s[0:1], 16")
    a("s_load_dwordx2 s[12:13], s[0:1], 24")
    a("s_load_dwordx2 s[16:17], s[0:1], 104")
    a("s_getpc_b64 s[30:31]")
    a("L_pc:")
    a("s_lshr_b32 s25, s2, 3")
    if P["cpf"] == 1:
        a("v_lshlrev_b32 v5, 7, v0")
    elif P["cpf"] == 2:
        a("v_and_b32 v5, 7, v0")
        a("v_lshl_add_u32 v5, s25, 3, v5")
        a("v_lshlrev_b32 v5, 7, v5")
    if P["cpf"]:
        a("v_min_u32 v5, L_codeend-L_pc-4, v5")
        a("global_load_dword v255, v5, s[30:31]")
    a("s_cmp_lt_u32 s25, 16")
    a("s_cbranch_scc1 L_A")
    a("s_cmp_ge_u32 s25, 28")
    a("s_cbranch_scc1 L_F")

    a.vm = []
    common_ids()
    srd(12, 0 if P.get("no_uk") else 9437184)
    a("s_sub_u32 s25, s25, 16")
    a("v_lshrrev_b32 v2, 3, v1")
    a("v_and_b32 v5, 7, v1")
    a("v_lshrrev_b32 v4, 5, v1")
    a("v_and_b32 v3, 3, v2")
    a("v_lshl_add_u32 v4, v4, 3, v3")
    a("v_mul_u32_u24 v4, 12288, v4")
    a("v_lshrrev_b32 v3, 1, v2")
    a("v_xor_b32 v3, v3, v5")
    a("v_lshl_add_u32 v6, v3, 4, v4")
    a("v_xor_b32 v7, 64, v6")
    a(f"v_add_u32 v7, {16*12288}, v7")
    a(f"s_mul_i32 s35, s25, {64*12288}")
    a("s_lshl_b32 s36, s24, 2")
    a("s_add_u32 s36, s36, s3")
    a("s_mul_i32 s27, s36, 384")
    a("s_add_u32 s35, s35, s27")
    a(f"s_mul_i32 s37, s3, {R1}")
    a("s_mov_b32 m0, s37")
    a("s_movk_i32 s38, 896")
    a("s_movk_i32 s39, 1280")
    a(f"s_mov_b32 s40, {4*12288}")
    a("s_lshl_b32 s27, s25, 4")
    a("v_lshrrev_b32 v8, 4, v0")
    a("v_add_u32 v8, s27, v8")
    a("v_min_u32 v8, 159, v8")
    a("v_lshlrev_b32 v8, 7, v8")
    a("s_mul_i32 s42, s24, 20480")
    a(f"s_add_u32 s42, s42, {XQ}")
    a("s_waitcnt lgkmcnt(0)")
    tn = [0]

    def tile_dma(srdr, xor, tag, grp):
        n = tn[0]
        par, t = (n // 3) & 1, n % 3
        a.vmem(f"buffer_load_dwordx4 v{6+par}, s[{srdr}:{srdr+3}], s35 offen offset:{t*128} {NT} lds", (tag, n // grp))
        a(f"s_add_u32 m0, m0, s{39 if t == 2 else 38}")
        if n % 6 == 5 and n < 23:
            a("s_add_u32 s35, s35, s40")
            a(f"s_xor_b32 s40, s40, {xor}")
        tn[0] += 1

    XR = (4*12288) ^ (28*12288)
    uk = lambda: tile_dma(12, XR, "uk", 6)

    def h_setup():
        load_epoch()
        a("s_load_dwordx2 s[8:9], s[0:1], 32")
        a("s_load_dwordx2 s[20:21], s[0:1], 40")
        a("v_lshlrev_b32 v10, 4, v1")
        sel_masks(152, 3)
        a("v_and_b32 v2, 15, v1")
        a("v_lshrrev_b32 v3, 4, v1")
        a("v_lshrrev_b32 v4, 3, v2")
        a("v_mul_u32_u24 v4, 3072, v4")
        a("v_and_b32 v5, 7, v2")
        a("v_lshl_add_u32 v4, v5, 7, v4")
        a("v_lshrrev_b32 v5, 1, v2")
        a("v_xor_b32 v5, v5, v3")
        a("v_lshl_add_u32 v4, v5, 4, v4")
        a("v_add_u32 v8, s37, v4")
        a("v_xad_u32 v9, v4, 64, s37")
        a("s_mul_i32 s41, s36, 5120")
        a(f"s_add_u32 s41, s41, {XQ}")
        a("s_add_u32 s45, s41, 4096")
        a("s_lshl_b32 s27, s3, 9")
        a(f"s_add_u32 s27, s27, {R2+12288}")
        a("v_lshl_add_u32 v11, v1, 1, s27")
        a("v_lshl_add_u32 v12, v3, 4, s27")
        a("v_lshrrev_b32 v4, 1, v3")
        a("v_lshl_add_u32 v4, v2, 1, v4")
        a("v_lshlrev_b32 v4, 10, v4")
        a("v_and_b32 v5, 1, v3")
        a("v_lshl_add_u32 v13, v5, 6, v4")
        a("s_lshl_b32 s42, s25, 12")
        a("s_lshl_b32 s27, s24, 7")
        a("s_add_u32 s42, s42, s27")
        a(f"s_lshl_b32 s27, s3, {10 if P['qa_lines'] else 4}")
        a("s_add_u32 s42, s42, s27")
        a(f"s_add_u32 s42, s42, {XQA}")
        if P["qa_lines"]:
            a("v_lshl_add_u32 v4, v2, 2, v3")
            a("s_lshl_b32 s27, s3, 4")
            a(f"s_add_u32 s27, s27, {R2+11264}")
            a("v_lshl_add_u32 v14, v4, 6, s27")
            a("s_lshl_b32 s27, s3, 7")
            a(f"s_add_u32 s27, s27, {R2+11264}")
            a("v_add_u32 v15, s27, v10")
        tail_setup(25, 2, 3, 4)
        a("v_mov_b32 v163, v10")
        a("v_lshlrev_b32 v4, 9, v1")
        only_if(150, 3, 32, 4)
        a("s_lshr_b32 s82, s24, 1")
        a("s_lshl_b32 s82, s82, 7")
        a(f"s_add_u32 s82, s82, {XN2}")
        a("s_waitcnt lgkmcnt(0)")
        make_tag()
        srd(8, 0 if P.get("no_uv") else 9437184)
        srd(20, 0 if P.get("no_wo") else 7864320)

    def uk_read(T):
        for kk in range(6):
            q = (T * 6 + kk) * 4
            a(f"ds_read_b128 a[{q}:{q+3}], v{8+(kk&1)} offset:{T*6144+(kk>>1)*1024}")

    def xq_loads(tag):
        for mq in range(NQ):
            t = f"buffer_load_dwordx4 v[{16+4*mq}:{19+4*mq}], v10, s[16:19], s{41 if mq < 4 else 45} offen offset:{(mq&3)*1024} sc1"
            if tag:
                a.vmem(t, tag)
            else:
                a(t)

    def xq_check():
        a("v_xor_b32 v4, s26, v19")
        for mq in range(1, NQ):
            a(f"v_xor_b32 v5, s26, v{19+4*mq}")
            a("v_or_b32 v4, v4, v5")
        a("v_cmp_ne_u32 vcc, 0, v4")

    dh = lambda: P["dH1"] if tn[0] < P["nH1"] else P["dH"]
    uk()
    uk()
    a.vmem("buffer_load_dword v17, v8, s[16:19], s42 offen sc1", "pt")
    while tn[0] <= dh():
        uk()
    h_setup()
    while tn[0] < 24:
        throttle(dh() + (sum(t == "xq" for t in a.vm[-(dh()+NQ):])))
        uk()
        if tn[0] == P["x1_at"]:
            xq_loads("xq")
            flag_load(0)
    stamp(1)
    rd = [0]

    def uk_ready():
        while rd[0] < 4 and ("uk", rd[0]) not in a.vm:
            uk_read(rd[0])
            rd[0] += 1

    won = 0
    uk_ready()
    if P["x1_at"] > 24:
        throttle(P["x1_wait"])
        xq_loads("xq")
        flag_load(0)
    stamp(2)
    uk_ready()
    while rd[0] < 4 and "xq" in a.vm and a.vm_n(("uk", rd[0])) > a.vm_n("xq"):
        a.wait_vm(("uk", rd[0]))
        uk_ready()
    if "xq" in a.vm:
        a.wait_vm("xq", " lgkmcnt(0)")
    else:
        a("s_waitcnt lgkmcnt(0)")
    flag_check("H", 0)
    stamp(3)
    xq_check()
    a("s_cbranch_vccnz L_H_xq_slow")
    a("L_H_xq_ok:")
    stamp(4)
    if P["n2"] == 3:
        notice(150, 82)
    slow.append("\n".join(["L_H_xq_slow:", "s_mov_b32 s28, 0", "L_H_xq_loop:", "s_add_u32 s29, s29, 1",
                           ] + cap(xq_loads, None) +
                          ["s_add_u32 s28, s28, 1", "s_waitcnt vmcnt(0)"] + cap(xq_check) +
                          ["s_cbranch_vccz L_H_xq_ok", f"s_cmp_lt_u32 s28, {SPIN}", "s_cbranch_scc1 L_H_xq_loop", "s_branch L_H_xq_ok"]))
    for k in range(3):
        a(f"v_add_f32 v{16+k}, v{16+k}, v{20+k}")
        a(f"v_add_f32 v{24+k}, v{24+k}, v{28+k}")
    if NQ == 5:
        for k in range(3):
            a(f"v_add_f32 v{16+k}, v{16+k}, v{32+k}")
    for k in range(3):
        a(f"v_add_f32 v{16+k}, v{16+k}, v{24+k}")
    a("v_cvt_pk_bf16_f32 v16, v16, v17")
    a("v_cvt_pk_bf16_f32 v18, v18, v18")
    a("ds_write_b16 v11, v16")
    a("ds_write_b16_d16_hi v11, v16 offset:128")
    a("ds_write_b16 v11, v18 offset:256")
    for kk in range(6):
        a(f"ds_read_b128 v[{32+4*kk}:{35+4*kk}], v12 offset:{kk*64}")

    def qa_mfma(T, kk):
        q = (T * 6 + kk) * 4
        c = "0" if kk == 0 else f"v[{16+4*T}:{19+4*T}]"
        a(f"v_mfma_f32_16x16x32_bf16 v[{16+4*T}:{19+4*T}], a[{q}:{q+3}], v[{32+4*kk}:{35+4*kk}], {c}")

    have = rd[0]
    for kk in range(6):
        a(f"s_waitcnt lgkmcnt({5-kk})")
        for T in range(have):
            qa_mfma(T, kk)
    while rd[0] < 4:
        T = rd[0]
        if ("uk", T) in a.vm:
            a.wait_vm(("uk", T))
        uk_read(T)
        rd[0] += 1
        for kk in range(6):
            a(f"s_waitcnt lgkmcnt({5-kk})")
            qa_mfma(T, kk)
    if P["n2"] == 2:
        a("s_barrier")
        notice(150, 82)
    a("v_cmp_eq_u32 vcc, 1, v2")
    a(f"s_mov_b32 s27, {f32(math.log2(math.e)/math.sqrt(192))}")
    a("s_mov_b32 exec_lo, 0x30003")
    a("s_mov_b32 exec_hi, 0x30003")
    for k in range(8):
        a(f"v_cndmask_b32 v{16+k}, v{16+k}, v{24+k}, vcc")
    for k in range(8):
        a(f"v_mul_f32 v{16+k}, s27, v{16+k}")
    for k in range(4):
        a(f"v_cvt_pk_bf16_f32 v{24+k}, v{16+2*k}, v{17+2*k}")
    a("v_min_u32 v27, -2, v27")
    if P["qa_lines"]:
        a("ds_write_b128 v14, v[24:27]")
        a("s_mov_b64 exec, 0xff")
        a("s_waitcnt lgkmcnt(0)")
        a("s_barrier")
        a("ds_read_b128 v[24:27], v15")
        if P["n2"] == 4:
            a("s_mov_b64 exec, -1")
            notice(150, 82)
            a("s_mov_b64 exec, 0xff")
        a("s_waitcnt lgkmcnt(0)")
        a.vmem("buffer_store_dwordx4 v[24:27], v10, s[16:19], s42 offen sc1", "pub")
    else:
        a.vmem("buffer_store_dwordx4 v[24:27], v13, s[16:19], s42 offen sc1", "pub")
    a("s_mov_b64 exec, -1")
    stamp(5)
    a("s_barrier")
    if P["n2"] == 1:
        notice(150, 82)
    stamp(6)
    a("s_cmp_lt_u32 s25, 8")
    a("s_cselect_b32 s44, 16, 4")
    a("s_cselect_b32 s45, 4, 8")
    a("s_cselect_b32 s40, 8, 48")
    a(f"s_cselect_b32 s46, {(8*12288) ^ (40*12288)}, 0")
    a("s_cselect_b32 s27, 1, 2")
    a(f"s_cselect_b32 s28, 0, {32*12288}")
    a("s_mulk_i32 s45, 12288")
    a("s_mulk_i32 s40, 12288")
    a("s_and_b32 s35, s25, 7")
    a("s_mul_i32 s35, s35, s27")
    a(f"s_mul_i32 s35, s35, {96*12288}")
    a("s_add_u32 s35, s35, s28")
    a("s_mul_i32 s27, s36, 384")
    a("s_add_u32 s35, s35, s27")
    a("v_lshrrev_b32 v4, 5, v1")
    a("v_bfe_u32 v5, v1, 3, 2")
    a("v_mad_u32_u24 v4, v4, s44, v5")
    a("v_mul_u32_u24 v4, 12288, v4")
    a("v_and_b32 v5, 2, v5")
    a("v_xor_b32 v5, v5, v1")
    a("v_and_b32 v5, 7, v5")
    a("v_lshl_add_u32 v6, v5, 4, v4")
    a("v_xad_u32 v7, v6, 64, s45")
    a("s_mov_b32 m0, s37")
    same_add("H")
    tn[0] = 0
    while tn[0] < 24:
        throttle(P["dV1"] if tn[0] < P["nV1"] else P["dV"])
        tile_dma(8, "s46", "uv", 12)
    a("v_mul_u32_u24 v4, 3072, v3")
    a("v_lshrrev_b32 v5, 2, v2")
    a("v_lshl_add_u32 v4, v5, 7, v4")
    a("v_and_b32 v5, 2, v5")
    a("v_and_b32 v12, 1, v3")
    a("v_lshl_or_b32 v5, v12, 2, v5")
    a("v_bfe_u32 v12, v1, 1, 1")
    a("v_or_b32 v5, v5, v12")
    a("v_lshl_add_u32 v4, v5, 4, v4")
    a("v_and_b32 v12, 1, v1")
    a("v_lshl_add_u32 v4, v12, 3, v4")
    a("v_add_u32 v8, s37, v4")
    a("v_xad_u32 v9, v4, 32, s37")
    a("v_xad_u32 v14, v4, 64, s37")
    a("v_xor_b32 v4, 64, v4")
    a("v_xad_u32 v15, v4, 32, s37")
    a("v_lshrrev_b32 v5, 3, v1")
    a("v_lshrrev_b32 v4, 1, v5")
    a("v_xor_b32 v4, v4, v1")
    a("v_and_b32 v4, 7, v4")
    a("v_lshlrev_b32 v4, 4, v4")
    a("v_mul_u32_u24 v5, 1536, v5")
    a("v_add_u32 v24, v4, v5")
    a("v_xor_b32 v4, 64, v4")
    a(f"v_add_u32 v4, {8*1536}, v4")
    a("v_add_u32 v25, v4, v5")
    a("s_mul_i32 s40, s36, 24576")
    a("s_lshl_b32 s27, s25, 7")
    a("s_add_u32 s40, s40, s27")
    a(f"s_add_u32 s40, s40, {XO}")
    a("s_lshl_b32 s41, s3, 11")
    a(f"s_add_u32 s41, s41, {R2+2048}")
    a("v_lshrrev_b32 v4, 1, v2")
    a("v_xor_b32 v4, v4, v3")
    a("v_lshlrev_b32 v4, 4, v4")
    a("v_lshl_add_u32 v5, v2, 7, s41")
    a("v_add_u32 v26, v4, v5")
    a("v_xad_u32 v27, v4, 64, v5")
    a("v_lshrrev_b32 v36, 2, v1")
    a("v_lshlrev_b32 v36, 8, v36")
    a("s_lshl_b32 s27, s25, 1")
    a("s_sub_u32 s27, s27, 16")
    a("s_cmp_lt_u32 s25, 8")
    a("s_cselect_b32 s27, s25, s27")
    a("s_cselect_b32 s89, 0, 128")
    a("s_lshl_b32 s42, s27, 12")
    a("s_lshl_b32 s28, s36, 3")
    a("s_add_u32 s42, s42, s28")
    a(f"s_add_u32 s42, s42, {XML}")
    a("s_lshl_b32 s28, s24, 3")
    a("s_add_u32 s27, s27, s28")
    a("s_lshl_b32 s27, s27, 7")
    a(f"s_add_u32 s27, s27, {XN3}")
    cnt_base(27)
    a("s_mul_i32 s43, s36, 12")
    a("s_add_u32 s43, s43, s25")
    a("s_lshl_b32 s43, s43, 10")
    a(f"s_add_u32 s43, s43, {XC}")
    a("v_mov_b32 v31, s26")
    tr_done = [0]

    def uv_ready():
        while tr_done[0] < 2 and ("uv", tr_done[0]) not in a.vm:
            st = tr_done[0]
            for T in range(12):
                for b in range(2):
                    q = (T * 2 + st) * 4 + 2 * b
                    a(f"ds_read_b64_tr_b16 a[{q}:{q+1}], v{(8, 9, 14, 15)[T&3]} offset:{st*12288+(T>>2)*1024+b*512}")
            tr_done[0] += 1

    uv_ready()
    if P["h1_early"]:
        same_load()
        flag_load(1)
    while won < 15 - P["wo_late"]:
        throttle(P["dV"])
        wo_load(won)
        won += 1
    if not P["h1_early"]:
        same_load()
        flag_load(1)
    while tr_done[0] < 2:
        if ("uv", tr_done[0]) in a.vm:
            a.wait_vm(("uv", tr_done[0]))
        uv_ready()
    stamp(7)
    OA = 48
    AC = 64
    D = " row_mask:0xf bank_mask:0xf"

    def allred(op, v):
        a(f"{op} v{v}, v{v}, v{v} row_ror:8{D}")
        for sw in ("32", "16"):
            a(f"v_mov_b32 v5, v{v}")
            a(f"v_permlane{sw}_swap_b32 v{v}, v5")
            a(f"{op} v{v}, v{v}, v5")

    def weights():
        a(f"v_max_f32 v4, v40, v40 row_ror:4{D}")
        allred("v_max_f32", 4)
        a("v_sub_f32 v16, v40, v4")
        a("v_exp_f32 v16, v16")

    def norm():
        a("v_mul_f32 v17, v16, v41")
        a(f"v_add_f32 v17, v17, v17 row_ror:4{D}")
        allred("v_add_f32", 17)
        a("v_rcp_f32 v17, v17")

    a("s_waitcnt lgkmcnt(0)")
    flag_check("H1", 1)
    a("s_cmp_lg_u32 s3, 0")
    a("s_cbranch_scc1 L_H_n3_out")
    poll_cnt("H_n3", ["0", "s89"], 15, 0x100)
    a("s_barrier")
    stamp(10)
    a("s_mov_b32 s28, 0")

    def x3_loads():
        a("s_mov_b32 m0, s41")
        a("s_add_u32 s28, s28, 1")
        a("buffer_load_dwordx4 v24, s[16:19], s40 offen sc1 lds")
        a("s_add_u32 m0, m0, 1024")
        a("s_add_u32 s29, s29, 0x1000000")
        a("buffer_load_dwordx4 v25, s[16:19], s40 offen sc1 lds")
        a("buffer_load_dwordx2 v[40:41], v36, s[16:19], s42 offen sc1")

    x3_loads()
    nl8 = P["wo_late"]
    if nl8:
        a("s_barrier")
    while won < 15:
        wo_load(won)
        won += 1
    a(f"s_waitcnt vmcnt({1+nl8})")
    a("L_H_x3:")
    for st in range(2):
        a(f"ds_read_b128 v[{OA+4*st}:{OA+4*st+3}], v{26+st}")
    a(f"s_waitcnt vmcnt({nl8})")
    weights()
    a("s_waitcnt lgkmcnt(0)")
    a.vm = []
    slow.append("\n".join(["L_H_x3_retry:", f"s_cmp_ge_u32 s28, {SPIN}", "s_cbranch_scc1 L_H_x3_ok"] + cap(x3_loads) +
                           ["s_waitcnt vmcnt(0)", "s_branch L_H_x3"]))
    stamp(8)
    fill = [f"v_max3_u32 v39, v41, v{OA+1}, v{OA+3}", f"v_max3_u32 v39, v39, v{OA+5}, v{OA+7}",
            "v_cmp_eq_u32 vcc, -1, v39", "s_cbranch_vccnz L_H_x3_retry\nL_H_x3_ok:"]
    nl = cap(norm)

    def post(T):
        o = [f"v_mul_f32 v{AC+4*T}, v16, v{AC+4*T} row_newbcast:0{D}"]
        for r in range(1, 4):
            o.append(f"v_fmac_f32 v{112+T}, v16, v{AC+4*T+r} row_newbcast:{4*r}{D}")
        o[0] = f"v_mul_f32 v{112+T}, v16, v{AC+4*T} row_newbcast:0{D}"
        return o

    def fold(Q):
        b = 112 + 4 * Q
        return [f"v_permlane32_swap_b32 v{b}, v{b+2}", f"v_permlane32_swap_b32 v{b+1}, v{b+3}",
                f"v_add_f32 v{b}, v{b}, v{b+2}", f"v_add_f32 v{b+1}, v{b+1}, v{b+3}",
                f"v_permlane16_swap_b32 v{b}, v{b+1}", f"v_add_f32 v{b}, v{b}, v{b+1}", f"v_mul_f32 v{28+Q}, v{b}, v17"]

    def mix(*lists):
        o = []
        lists = [list(l) for l in lists]
        while any(lists):
            for l in lists:
                if l:
                    o.append(l.pop(0))
        return o

    for T in range(12):
        if T in (1, 2):
            fill += nl[:4] if T == 1 else []
        if T >= 3 and T & 1:
            fill += mix(post(T - 3), post(T - 2))
        for st in range(2):
            q = (T * 2 + st) * 4
            c = "0" if st == 0 else f"v[{AC+4*T}:{AC+4*T+3}]"
            a(f"v_mfma_f32_16x16x32_bf16 v[{AC+4*T}:{AC+4*T+3}], v[{OA+4*st}:{OA+4*st+3}], a[{q}:{q+3}], {c}")
            for k in range(2):
                if fill:
                    a(fill.pop(0))
    for l in mix(fill, nl[4:]) + mix(fold(0)[:6], fold(1)[:6], mix(post(10), post(11))) + mix(fold(2), fold(0)[6:] + fold(1)[6:]):
        a(l)
    a(f"buffer_store_dwordx4 v[28:31], v10, s[16:19], s43 offen{LOC}")
    stamp(9)
    tail()
    dump_stamps()
    a("L_exit:")
    a("s_endpgm")

    a(".p2align 8")
    a("L_A:")
    role[0] = "A"
    a.vm = []
    common_ids()
    srd(4, 1280)
    srd(8, 0 if P.get("no_wq") else 7864320)
    a("v_lshrrev_b32 v2, 3, v1")
    a("v_and_b32 v5, 7, v1")
    a("v_mul_u32_u24 v6, 12288, v2")
    a("v_lshl_add_u32 v6, v5, 4, v6")
    a("s_and_b32 s46, s25, 3")
    a("s_lshl_b32 s46, s46, 2")
    a("s_add_u32 s46, s46, s3")
    a(f"s_mul_i32 s44, s46, {8*gA*12288}")
    a(f"s_mul_i32 s35, s46, {16*gA}")
    a("v_lshlrev_b32 v7, 1, v2")
    a("s_lshr_b32 s27, s25, 2")
    a("s_lshl_b32 s28, s24, 2")
    a("s_add_u32 s88, s27, s28")
    a("s_mul_i32 s27, s88, 384")
    a("s_add_u32 s44, s44, s27")
    a(f"s_mov_b32 s45, {8*12288}")
    a("s_waitcnt lgkmcnt(0)")
    dQ = P["dQ"]
    wq = 0
    while wq < min(3 * gA, dQ + 1):
        if wq == P["x_at"]:
            x_stats_loads(8)
            x_rows(13, 35, gA)
        rows_load(wq, gA, 0, 6, 8, "wq")
        wq += 1
    stamp(1)
    load_epoch()
    a("s_load_dwordx2 s[12:13], s[0:1], 8")
    a("s_load_dwordx2 s[84:85], s[0:1], 88")
    a("s_lshl_b32 s89, s24, 4")
    a("s_add_u32 s89, s89, s25")
    a("s_add_u32 s88, s88, s89")
    a("s_lshl_b32 s88, s88, 10")
    a(f"s_add_u32 s88, s88, {XQ}")
    sel_masks(152, 3)
    a("v_lshlrev_b32 v149, 4, v1")
    only_if(148, 3, 64, 149)
    a("v_lshrrev_b32 v3, 1, v2")
    a("v_xor_b32 v3, v3, v5")
    a("v_mul_u32_u24 v4, 1536, v2")
    a("v_lshl_add_u32 v62, v3, 4, v4")
    a("v_xor_b32 v63, 64, v62")
    a(f"v_add_u32 v63, {8*1536}, v63")
    a(f"s_mul_i32 s35, s89, {64*1536}")
    a("s_mul_i32 s28, s3, 384")
    a("s_add_u32 s35, s35, s28")
    for p in range(4):
        a(f"s_xor_b32 s28, s3, {p}")
        a(f"s_mul_i32 s28, s28, {16*1536}")
        a(f"s_add_u32 s{96+p}, s35, s28")
    a(f"s_mul_i32 s37, s3, {R1}")
    a("s_mov_b32 m0, s37")
    a("s_movk_i32 s100, 896")
    a("s_movk_i32 s101, 1280")
    a.wait_vm("x", " lgkmcnt(0)")
    make_tag()
    srd(12, 0 if P.get("no_ck") else 12582912)
    fill = cap(ln_stats, 8, 24) + cap(sel_ops, 13, 24, gA) + cap(red_addrs)
    while wq < 3 * gA and len(a.vm) <= dQ:
        rows_load(wq, gA, 0, 6, 8, "wq")
        wq += 1
    rem = 3 * gA - wq
    per = (len(fill) + rem) // (rem + 1) if rem else len(fill)
    while wq < 3 * gA:
        pop_n(fill, per)
        a.wait_vm_n(dQ)
        rows_load(wq, gA, 0, 6, 8, "wq")
        wq += 1
    for l in fill:
        a(l)
    a("s_load_dwordx2 s[8:9], s[0:1], 80")
    ck = [0]

    def ckv_dma():
        n = ck[0]
        p, par, t = n // 6, (n // 3) & 1, n % 3
        a.vmem(f"buffer_load_dwordx4 v{62+par}, s[12:15], s{96+p} offen offset:{t*128} lds", ("ck", n // 12))
        a(f"s_add_u32 m0, m0, s{101 if t == 2 else 100}")
        ck[0] += 1

    dck = lambda: P["dC1"] if ck[0] < P["nC1"] else P["dC"]
    rows_finish("A_q", gA, 24, 0, "wq", ckv_dma, P["a_first"], dQ, 144, 88, LOC, lambda: stamp(2), allw=True)
    if P["q_bar"]:
        a("s_barrier")
    stamp(3)
    checked = False
    for k in range(dck() + 1):
        throttle(dck())
        ckv_dma()
    a("s_lshl_b32 s27, s25, 2")
    a("s_add_u32 s27, s27, s3")
    a("s_lshl_b32 s42, s27, 10")
    a(f"s_mul_i32 s28, s24, {PM}")
    a("s_add_u32 s42, s42, s28")
    a(f"s_add_u32 s42, s42, {XP}")
    a("s_lshl_b32 s43, s25, 9")
    a("s_add_u32 s43, s43, s28")
    a("s_lshl_b32 s27, s3, 2")
    a("s_add_u32 s43, s43, s27")
    a(f"s_add_u32 s43, s43, {XM}")
    a("v_lshrrev_b32 v3, 5, v1")
    a("v_lshl_or_b32 v32, v3, 29, v10")

    def a_setup():
        a("v_and_b32 v2, 31, v1")
        a("v_lshrrev_b32 v3, 5, v1")
        a("v_lshrrev_b32 v4, 3, v2")
        a("v_mul_u32_u24 v4, 3072, v4")
        a("v_lshl_add_u32 v4, v5, 7, v4")
        a("v_bfe_u32 v11, v2, 1, 3")
        a("v_xor_b32 v11, v11, v3")
        a("s_and_b32 s28, s25, 3" if P["qrot"] else "s_mov_b32 s28, 0")
        a("s_lshl_b32 s27, s28, 1")
        a("v_xor_b32 v11, s27, v11")
        a("v_lshl_add_u32 v4, v11, 4, v4")
        a("v_add_u32 v20, s37, v4")
        a("v_xad_u32 v21, v4, 32, s37")
        a("v_xad_u32 v22, v4, 64, s37")
        a("v_xor_b32 v4, 64, v4")
        a("v_xad_u32 v23, v4, 32, s37")
        a("v_lshrrev_b32 v4, 2, v2")
        a("v_lshlrev_b32 v4, 7, v4")
        a("v_lshl_add_u32 v4, v3, 6, v4")
        a("v_and_b32 v11, 3, v1")
        a("v_lshl_add_u32 v24, v11, 4, v4")
        for k in range(4):
            a(f"s_xor_b32 s27, s28, {k}")
            a(f"v_lshl_add_u32 v{224+k}, s27, 10, v24")
        a("s_mul_i32 s38, s3, 12288")
        a(f"s_add_u32 s38, s38, {XQA}")
        a("s_add_u32 s39, s38, 4096")
        a("s_add_u32 s40, s38, 8192")
        a("s_mov_b32 s27, 0x15555556")
        for m in range(3):
            a(f"v_add_u32 v4, {64*m}, v1")
            a("v_mul_hi_u32 v11, v4, s27")
            a(f"v_mul_u32_u24 v11, {1536-192}, v11")
            a(f"v_lshl_add_u32 v{25+m}, v4, 4, v11")
        a("s_lshr_b32 s27, s25, 3")
        a("s_lshl_b32 s35, s24, 1")
        a("s_add_u32 s35, s35, s27")
        a("s_and_b32 s36, s25, 7")
        a("s_lshl_b32 s27, s35, 2")
        a("s_add_u32 s27, s27, s3")
        a(f"s_mul_i32 s41, s27, {128*1536}")
        a("s_mul_i32 s27, s36, 192")
        a("s_add_u32 s41, s41, s27")
        a(f"s_movk_i32 s46, 1024")
        a(f"s_movk_i32 s47, {16*1536}")
        for p in range(1, 4):
            a(f"s_xor_b32 s27, s3, {p}")
            a("s_mul_i32 s27, s27, 6144")
            a(f"s_add_u32 s27, s27, {R2+(p-1)*2048}")
            a(f"v_add_u32 v{27+p}, s27, v10")
        a("s_mul_i32 s27, s3, 6144")
        a(f"s_add_u32 s27, s27, {R2}")
        a("v_add_u32 v31, s27, v10")
        a("v_and_b32 v18, 15, v1")
        a("v_lshrrev_b32 v19, 4, v1")
        a("v_lshlrev_b32 v4, 13, v19")
        a("v_lshl_add_u32 v33, v18, 4, v4")
        a("v_lshlrev_b32 v4, 10, v19")
        a("v_lshl_add_u32 v34, v18, 4, v4")
        a("s_lshr_b32 s27, s3, 1")
        a("s_and_b32 s28, s3, 1")
        a("s_lshl_b32 s44, s35, 15")
        a("s_lshl_b32 s20, s24, 13")
        a("s_add_u32 s44, s44, s20")
        a("s_lshl_b32 s20, s27, 8")
        a("s_add_u32 s44, s44, s20")
        a(f"s_add_u32 s44, s44, {XP}")
        a("s_add_u32 s45, s44, 4096")
        a("s_lshl_b32 s20, s35, 12")
        a("s_lshl_b32 s21, s24, 16")
        a("s_add_u32 s20, s20, s21")
        a("s_lshl_b32 s21, s27, 8")
        a("s_add_u32 s20, s20, s21")
        a(f"s_add_u32 s20, s20, {XM}")
        a(f"v_mul_u32_u24 v4, {R1}, v19")
        a("v_lshrrev_b32 v11, 2, v18")
        a("v_mul_u32_u24 v11, 192, v11")
        a("v_add_u32 v4, v4, v11")
        a("v_and_b32 v11, 3, v1")
        a("v_lshl_add_u32 v4, v11, 3, v4")
        a("s_mul_i32 s21, s28, 96")
        a("v_add_u32 v35, s21, v4")
        a("v_lshl_add_u32 v36, v18, 2, v19")
        a("v_lshlrev_b32 v36, 2, v36")
        a("v_lshrrev_b32 v4, 2, v1")
        a("v_mul_u32_u24 v4, 24576, v4")
        a("v_lshl_add_u32 v37, v11, 4, v4")
        a("v_lshl_add_u32 v38, v11, 3, v4")
        a(f"s_mul_i32 s21, s27, {16*24576}")
        a("s_mul_i32 s22, s35, 1536")
        a("s_add_u32 s21, s21, s22")
        a(f"s_add_u32 s21, s21, {XO}")
        a("s_lshl_b32 s23, s36, 1")
        a("s_add_u32 s23, s23, s28")
        a("s_lshl_b32 s22, s23, 5")
        a("s_add_u32 s22, s22, s21")
        a("s_add_u32 s22, s22, 1024")
        a("s_lshl_b32 s28, s23, 6")
        a("s_add_u32 s21, s21, s28")
        a("s_lshl_b32 s35, s35, 8")
        a("s_lshl_b32 s27, s27, 7")
        a("s_add_u32 s35, s35, s27")
        a("s_lshl_b32 s27, s36, 12")
        a("s_add_u32 s35, s35, s27")
        a(f"s_add_u32 s35, s35, {XML}")
        for k in range(4):
            a(f"v_mov_b32 v{40+k}, 0x3f803f80")
        a("s_lshl_b32 s81, s36, 7")
        a(f"s_add_u32 s81, s81, {XN3}")
        a("v_mov_b32 v161, 1")
        a("v_lshlrev_b32 v4, 10, v1")
        only_if(162, 3, 8, 4)
        a("s_and_b32 s23, s3, 1")
        a("v_lshlrev_b32 v4, 3, v1")
        only_if(39, 23, 16, 4)
        a("s_lshr_b32 s27, s89, 2")
        a("s_lshl_b32 s27, s27, 9")
        a(f"s_add_u32 s27, s27, {XN2}")
        cnt_base(27)
        srd(8, 1280)
        srd(84, 1280)

    fill = cap(a_setup)
    rem = 24 - ck[0]
    per = (len(fill) + rem - 1) // rem
    while ck[0] < 24:
        pop_n(fill, per)
        throttle(dck())
        ckv_dma()
        if ck[0] == P["a_flag_at"]:
            flag_load(P["a_lvl"])
        if ck[0] == P["a_flag_at"] + 4:
            a("s_waitcnt lgkmcnt(0)")
            flag_check("A", P["a_lvl"])
            same_add("A")
            checked = True
        if P["n2"] and ck[0] == P["n2_at"]:
            assert checked
            pop_n(fill, 999)
            a("s_cmp_lg_u32 s3, 0")
            a("s_cbranch_scc1 L_A_nolook")
            for k in range(4):
                a(f"s_load_dword s{(92, 94, 95, 83)[k]}, s[90:91], {128*k} glc")
            a("L_A_nolook:")
    assert checked
    assert not fill
    stamp(4)
    XQRE = "buffer_store_dwordx4 v[144:147], v10, s[16:19], s88 offen sc1"
    CA = 160
    QA = 64
    SA = 112

    def ck_read(kt):
        for kk in range(12):
            q = CA + (kt * 12 + kk) * 4
            a(f"ds_read_b128 a[{q}:{q+3}], v{20+(kk&3)} offset:{kt*12288+(kk>>2)*1024}")

    def qa_load(kk):
        return f"buffer_load_dwordx4 v[{QA+4*kk}:{QA+4*kk+3}], v{224+(kk&3)}, s[16:19], s{38+(kk>>2)} offen sc1"

    def s_mfma(kk):
        for kt in range(2):
            q = CA + (kt * 12 + kk) * 4
            c = f"v[{SA+16*kt}:{SA+16*kt+15}]"
            a(f"v_mfma_f32_32x32x16_bf16 v[{SA+16*kt}:{SA+16*kt+15}], a[{q}:{q+3}], v[{QA+4*kk}:{QA+4*kk+3}], {c}")

    l2 = [0]

    def l2_dma():
        n = l2[0]
        if not P.get("no_l2"):
            a.vmem(f"buffer_load_dwordx4 v{25+n%3}, s[12:15], s41 offen lds", ("l2", n // 12))
        a("s_add_u32 m0, m0, s46")
        if n % 3 == 2:
            a("s_add_u32 s41, s41, s47")
        l2[0] += 1

    trn = [0]

    def tr_read():
        n = trn[0]
        s, T, b = n // 6, (n // 2) % 3, n & 1
        q = (s * 3 + T) * 4 + 2 * b
        a(f"ds_read_b64_tr_b16 a[{q}:{q+1}], v35 offset:{(16*(s>>1)+4*(s&1)+8*b)*192+32*T}")
        trn[0] += 1

    a("s_waitcnt lgkmcnt(0)")
    if ("ck", 0) in a.vm:
        a.wait_vm(("ck", 0))
    ck_read(0)
    a("s_mov_b32 m0, s37")
    for k in range(32):
        a(f"v_mov_b32 v{SA+k}, 0")
    a("s_mov_b32 s82, 0")
    throttle(P["a_x2_wait"])
    stamp(5)
    tgt = P["n2_tgt"] - 1
    if P["n2"]:
        a("s_cmp_lg_u32 s3, 0")
        a("s_cbranch_scc1 L_A_n2_out")
        if P["n2_at"]:
            a("s_min_i32 s92, s92, s94")
            a("s_min_i32 s95, s95, s83")
            a("s_min_i32 s92, s92, s95")
            a(f"s_cmp_ge_i32 s92, {tgt}")
            a("s_cbranch_scc1 L_A_n2_out")
        poll_cnt("A_n2", ["0", "128", "256", "384"], tgt, 0, (P["q_looks"], XQRE) if P["local"] else None)
    a("s_barrier")
    tr_ok = 0
    stamp(6)
    stamp(1, 2)
    for kk in range(12):
        a.vmem(qa_load(kk), ("qa", kk))
        if P["rr"] and (kk + 1) % P["rr"] == 0 and kk < 11:
            a("s_barrier")
    stamp(2, 2)
    if ("ck", 1) in a.vm:
        a.wait_vm(("ck", 1))
    ck_read(1)

    def q_chk(g):
        b = QA + 16 * g
        a(f"v_max3_u32 v11, v{b+3}, v{b+7}, v{b+11}")
        a(f"v_max_u32 v11, v11, v{b+15}")
        a("v_cmp_eq_u32 vcc, -1, v11")

    for g in range(3):
        a.wait_vm(("qa", 4 * g + 3), f" lgkmcnt({8-4*g})")
        if g == 0:
            stamp(3, 2)
        if g == 2 and not P["a_lvl"]:
            flag_load(1)
        q_chk(g)
        a(f"s_cbranch_vccnz L_A_skip{g}")
        alt = [f"L_A_skip{g}:", f"s_bitset1_b32 s82, {g}"]
        for kk in range(4 * g, 4 * g + 4):
            s_mfma(kk)
            if l2[0] < 12 and (kk + 1) * P["l2_in_s"] // 12 > kk * P["l2_in_s"] // 12:
                d = cap(l2_dma)
                alt += d
                for l in d:
                    a(l)
        a(f"L_A_after{g}:")
        slow.append("\n".join(alt + [f"s_branch L_A_after{g}"]))
    for k in range(P["l2_after1"]):
        if l2[0] < 24:
            l2_dma()
    a("s_cmp_lg_u32 s82, 0")
    a("s_cbranch_scc1 L_A_x2_slow")
    a("L_A_x2_ok:")
    main = a.L
    a.L = []
    a("L_A_x2_slow:")
    a("s_mov_b32 s28, 0")
    a("L_A_x2_loop:")
    a("s_add_u32 s29, s29, 1")
    if P["local"]:
        a(f"s_cmp_lg_u32 s28, {P['q_looks']}")
        a("s_cbranch_scc1 L_A_x2_nore")
        a(XQRE)
        a("L_A_x2_nore:")
    for g in range(3):
        a(f"s_bitcmp0_b32 s82, {g}")
        a(f"s_cbranch_scc1 L_A_x2_l{g}")
        for kk in range(4 * g, 4 * g + 4):
            a(qa_load(kk))
        a(f"L_A_x2_l{g}:")
    a("s_add_u32 s28, s28, 1")
    a("s_waitcnt vmcnt(0)")
    for g in range(3):
        a(f"s_bitcmp0_b32 s82, {g}")
        a(f"s_cbranch_scc1 L_A_x2_m{g}")
        q_chk(g)
        a(f"s_cbranch_vccnz L_A_x2_m{g}")
        for kk in range(4 * g, 4 * g + 4):
            s_mfma(kk)
        a(f"s_bitset0_b32 s82, {g}")
        a(f"L_A_x2_m{g}:")
    a("s_cmp_eq_u32 s82, 0")
    a("s_cbranch_scc1 L_A_x2_ok")
    a(f"s_cmp_lt_u32 s28, {SPIN}")
    a("s_cbranch_scc1 L_A_x2_loop")
    a("s_branch L_A_x2_ok")
    slow.append("\n".join(a.L))
    a.L = main
    stamp(7)
    stamp(4, 2)
    nw_ = 0
    for p in range(1, 4):
        for k in range(2):
            r = SA + 8 * p + 4 * k
            a(f"ds_write_b128 v{27+p}, v[{r}:{r+3}] offset:{k*1024}")
        if nw_ < P["l2b_w"] and l2[0] < 24:
            l2_dma()
            nw_ += 1
    stamp(5, 2)
    if l2[0] == 24 and P["l2a_wait"] == 2:
        a.wait_vm(("l2", 1), " lgkmcnt(0)")
    elif l2[0] >= 12 and ("l2", 0) in a.vm and P["l2a_wait"]:
        a.wait_vm(("l2", 0), " lgkmcnt(0)")
    else:
        a("s_waitcnt lgkmcnt(0)")
    if l2[0] >= 12 and ("l2", 0) not in a.vm:
        tr_ok = 48
    if l2[0] == 24 and ("l2", 1) not in a.vm:
        tr_ok = P["tr_pre"]
    if not P["a_lvl"]:
        flag_check("A1", 1)
    stamp(6, 2)
    a("s_barrier")
    stamp(7, 2)
    for p in range(3):
        for k in range(2):
            r = QA + 8 * p + 4 * k
            a(f"ds_read_b128 v[{r}:{r+3}], v31 offset:{p*2048+k*1024}")
    for k in range(P["l2b_r"]):
        if l2[0] < 24:
            l2_dma()

    def softmax():
        for p in range(3):
            a(f"s_waitcnt lgkmcnt({4-2*p})")
            for k in range(0, 8, 2):
                a(f"v_pk_add_f32 v[{SA+k}:{SA+k+1}], v[{SA+k}:{SA+k+1}], v[{QA+8*p+k}:{QA+8*p+k+1}]")
        a(f"v_max3_f32 v4, v{SA}, v{SA+1}, v{SA+2}")
        a(f"v_max3_f32 v11, v{SA+3}, v{SA+4}, v{SA+5}")
        a(f"v_max3_f32 v4, v4, v{SA+6}, v{SA+7}")
        a("v_max_f32 v4, v4, v11")
        a("v_mov_b32 v11, v4")
        a("v_permlane32_swap_b32 v4, v11")
        a("v_max_f32 v4, v4, v11")
        a("v_ceil_f32 v4, v4")
        for e in range(8):
            a(f"v_sub_f32 v{SA+e}, v{SA+e}, v4")
        for e in range(8):
            a(f"v_exp_f32 v{SA+e}, v{SA+e}")
        a("v_min_u32 v4, -2, v4")
        for m in range(4):
            a(f"v_cvt_pk_bf16_f32 v{12+m}, v{SA+2*m}, v{SA+2*m+1}")
        a("v_and_b32 v15, 0x7fffffff, v15")

    sm = cap(softmax)
    nmid = P["l2b_mid"]
    step = len(sm) // (nmid + 1)
    for i, l in enumerate(sm):
        a(l)
        if (i + 1) % step == 0 and (i + 1) // step <= nmid and l2[0] < 24:
            l2_dma()
    def p_pub(fl):
        a.vmem(f"buffer_store_dwordx4 v[12:15], v10, s[16:19], s42 offen{fl}", "pub")
        a.vmem(f"buffer_store_dword v4, v32, s[16:19], s43 offen{fl}", "pub")

    stamp(8, 2)
    p_pub(LOC)
    if not P["local"]:
        a.wait_all()
    stamp(8)
    while l2[0] < 24:
        l2_dma()
        for k in range(4):
            if trn[0] < tr_ok:
                tr_read()
    stamp(9)
    stamp(9, 2)
    MR = 44
    PR = 64
    PT = 128
    OC = 136

    def m_load(p):
        return f"buffer_load_dwordx4 v[{MR+4*p}:{MR+4*p+3}], v34, s[16:19], s20 offen offset:{p*512} sc1"

    def p_load(s):
        return f"buffer_load_dwordx4 v[{PR+4*s}:{PR+4*s+3}], v33, s[16:19], s{44+(s>>3)} offen offset:{(s&7)*512} sc1"

    def m_check():
        a(f"v_max3_u32 v11, v{MR}, v{MR+1}, v{MR+2}")
        a(f"v_max3_u32 v11, v11, v{MR+3}, v{MR+4}")
        a(f"v_max3_u32 v11, v11, v{MR+5}, v{MR+6}")
        a(f"v_max_u32 v11, v11, v{MR+7}")

    def m_max():
        a(f"v_max3_f32 v60, v{MR}, v{MR+1}, v{MR+2}")
        a(f"v_max3_f32 v61, v{MR+3}, v{MR+4}, v{MR+5}")
        a(f"v_max3_f32 v60, v60, v{MR+6}, v{MR+7}")
        a("v_max_f32 v60, v60, v61")
        for sw in ("32", "16"):
            a("v_mov_b32 v61, v60")
            a(f"v_permlane{sw}_swap_b32 v60, v61")
            a("v_max_f32 v60, v60, v61")

    def delta(p):
        a(f"v_sub_f32 v{MR+8+p}, v60, v{MR+p}")
        a(f"v_cvt_pk_u8_f32 v{MR+8+p}, v{MR+8+p}, 0, 0")
        a(f"v_mul_u32_u24 v{MR+8+p}, 0x800080, v{MR+8+p}")

    def pv_adj(s):
        for d in (3, 0, 1, 2):
            a(f"v_pk_sub_u16 v{PR+4*s+d}, v{PR+4*s+d}, v{MR+8+(s>>1)} clamp")

    def pv_mfma(s, T):
        t = PR + 4 * s
        c = "0" if s == 0 else f"v[{OC+4*T}:{OC+4*T+3}]"
        q = (s * 3 + T) * 4
        A = f"a[{q}:{q+3}]" if T < 3 else "v[40:43]"
        a(f"v_mfma_f32_16x16x32_bf16 v[{OC+4*T}:{OC+4*T+3}], {A}, v[{t}:{t+3}], {c}")

    for p in range(2):
        a.vmem(m_load(p), "m")
    while trn[0] < tr_ok:
        tr_read()
    stamp(10, 2)
    a("s_mov_b32 s28, 0")
    a("s_branch L_A_m_chk")
    a("L_A_m_loop:")
    a("s_add_u32 s29, s29, 0x10")
    for p in range(2):
        a(m_load(p))
    a("s_add_u32 s28, s28, 1")
    a(f"s_cmp_ge_u32 s28, {P['a_looks']}")
    a("s_cbranch_scc1 L_A_m_long")
    a("L_A_m_chk:")
    a.wait_all()
    m_check()
    a("v_cmp_eq_u32 vcc, -1, v11")
    a("s_cbranch_vccnz L_A_m_loop")
    a("L_A_m_ok:")
    stamp(11, 2)
    slow.append("\n".join(["L_A_m_long:", f"s_cmp_lg_u32 s28, {P['a_looks']}", "s_cbranch_scc1 L_A_m_nore"] + cap(p_pub, " sc1") +
                ["L_A_m_nore:", f"s_cmp_lt_u32 s28, {SPIN}", "s_cbranch_scc1 L_A_m_chk", "s_waitcnt vmcnt(0)", "s_branch L_A_m_ok"]))
    a.vm = []
    pl = [0]

    def p_issue():
        if pl[0] < 16:
            a.vmem(p_load(pl[0]), ("p", pl[0]))
            pl[0] += 1
            return True
        return False

    p_issue()
    a("s_barrier")
    stamp(10)
    stamp(12, 2)
    pre = cap(m_max)
    for k in range(3):
        for p in range(8):
            pre.append(cap(delta, p)[k])
    tr_in = P["tr_in"] if tr_ok else 6
    tr_before = trn[0]
    pre = mix(pre, [cap(tr_read)[0] for k in range(min(96 - trn[0], P["tr_pro"] if tr_ok else 18))])
    per = (len(pre) + P["p_ahead"] - 2) // (P["p_ahead"] - 1)
    while pl[0] < P["p_ahead"]:
        p_issue()
        for k in range(per):
            if pre:
                a(pre.pop(0))
    assert not pre
    a.wait_vm(("p", 0), f" lgkmcnt({min(15, trn[0] - max(tr_before, 6))})")
    stamp(13, 2)
    tr0 = max(tr_before, 6)
    pv_adj(0)
    p_issue()
    a.wait_vm(("p", 1))
    chk = [(2, f"v_or3_b32 v11, v{PR+3}, v{PR+7}, v{PR+11}")]
    chk += [(k + 1, f"v_or3_b32 v11, v11, v{PR+4*k+3}, v{PR+4*k+7}") for k in range(3, 15, 2)]
    chk += [(15, f"v_or_b32 v11, v11, v{PR+63}")]
    noted = False
    for s in range(16):
        adj = cap(pv_adj, s + 1) if s < 15 else [c[1] for c in chk]
        pv_mfma(s, 0)
        for l in adj[:2]:
            a(l)
        pv_mfma(s, 1)
        for l in adj[2:4]:
            a(l)
        pv_mfma(s, 2)
        for l in adj[4:]:
            a(l)
        if not p_issue():
            if s >= P["n3_step"] and not noted:
                notice(162, 81)
                noted = True
            elif s < 15 and chk and chk[0][0] <= s + 1:
                a(chk.pop(0)[1])
        for k in range(tr_in):
            if trn[0] < 96:
                tr_read()
        if s < 15:
            assert trn[0] >= 6 * (s + 2)
            lg = f" lgkmcnt({min(15, trn[0]-6*(s+2))})" if 6 * (s + 2) > tr0 else ""
            if s < 14:
                a.wait_vm(("p", s + 2), lg)
            else:
                a("s_waitcnt" + lg)
    assert trn[0] == 96
    a("v_cmp_gt_i32 vcc, 0, v11")
    a("s_cbranch_vccnz L_A_p_slow")
    a("L_A_p_ok:")
    main = a.L
    a.L = []
    a("L_A_p_slow:")
    vmk = list(a.vm)
    p_pub(" sc1")
    a.vm = vmk
    a("s_mov_b32 s28, 0")
    a("L_A_p_loop:")
    a("s_add_u32 s29, s29, 0x100")
    for p in range(2):
        a(m_load(p))
    for s in range(16):
        a(p_load(s))
    a("s_add_u32 s28, s28, 1")
    a("s_waitcnt vmcnt(0)")
    m_check()
    for s in range(1, 16, 2):
        a(f"v_max3_u32 v11, v11, v{PR+4*s-1}, v{PR+4*s+3}")
    a("v_cmp_eq_u32 vcc, -1, v11")
    a("s_cbranch_vccz L_A_p_redo")
    a(f"s_cmp_lt_u32 s28, {SPIN}")
    a("s_cbranch_scc1 L_A_p_loop")
    a("L_A_p_redo:")
    m_max()
    for s in range(16):
        if not s & 1:
            delta(s // 2)
        pv_adj(s)
        for T in range(3):
            pv_mfma(s, T)
    a("s_branch L_A_p_ok")
    slow.append("\n".join(a.L))
    a.L = main
    stamp(11)
    stamp(14, 2)
    epi = []
    for k in range(6):
        epi.append(f"v_cvt_pk_bf16_f32 v{OC+k}, v{OC+2*k}, v{OC+2*k+1}")
        if k & 1:
            epi.append(f"v_min_u32 v{OC+k}, -2, v{OC+k}")
        epi.append(f"ds_permute_b32 v{44+k}, v36, v{OC+k}")
    epi += [None, None, None, None, "s_waitcnt lgkmcnt(2)", "buffer_store_dwordx4 v[44:47], v37, s[16:19], s21 offen sc1",
            "s_waitcnt lgkmcnt(0)", "buffer_store_dwordx2 v[48:49], v38, s[16:19], s22 offen sc1"]
    for s in range(16):
        pv_mfma(s, 3)
        if s >= 2:
            for k in range(2):
                if epi:
                    l = epi.pop(0)
                    if l:
                        a(l)
    assert not epi
    if not noted:
        notice(162, 81)
    a(f"v_min_u32 v61, -2, v{OC+12}")
    a("buffer_store_dwordx2 v[60:61], v39, s[16:19], s35 offen sc1")
    stamp(12)
    if RE:
        same_load()
        a("s_waitcnt lgkmcnt(0)")
        unless_same("L_A_nore")
        a.wait_all()
        p_pub(" sc1")
        a("L_A_nore:")
    a("s_cmp_lg_u32 s3, 0")
    a("s_cbranch_scc1 L_A_end")
    a("s_cmp_ge_u32 s25, 5")
    a("s_cbranch_scc1 L_A_end")
    a("s_mul_i32 s35, s24, 5")
    a("s_add_u32 s35, s35, s25")
    a("v_and_b32 v5, 3, v1")
    a("v_lshlrev_b32 v3, 1, v19")
    a("v_lshl_add_u32 v48, v5, 3, v3")
    a("s_lshl_b32 s40, s35, 5")
    a("buffer_load_ushort v49, v48, s[4:7], s40 offen")
    a("buffer_load_ushort v50, v48, s[8:11], s40 offen")
    if P["out_pt"]:
        a("buffer_load_ushort v58, v48, s[84:87], s40 offen")
    a("v_and_b32 v3, 12, v1")
    a("v_lshl_or_b32 v57, v3, 20, v48")
    a("v_lshrrev_b32 v3, 2, v1")
    a("v_mul_u32_u24 v56, 2560, v3")
    a("v_lshl_add_u32 v56, v5, 4, v56")
    a("s_lshl_b32 s27, s35, 7" if P["n5_priv"] else "s_lshl_b32 s27, s24, 10")
    a(f"s_add_u32 s27, s27, {XN5}")
    cnt_base(27)

    ZS = (41, 42, 43, 44, 45, 46, 47, 39)

    def z_offs(base, n):
        a("s_lshl_b32 s41, s35, 6")
        a(f"s_add_u32 s41, s41, {base}")
        for k in range(1, n):
            a(f"s_add_u32 s{ZS[k]}, s41, {40960*k}")

    def z_gather(name, n, cnt):
        a(f"L_Z_{name}:")
        a(f"s_add_u32 s29, s29, {cnt}")
        for k in range(n):
            a(f"buffer_load_dwordx4 v[{64+4*k}:{67+4*k}], v56, s[16:19], s{ZS[k]} offen sc1")
        a("s_add_u32 s28, s28, 1")
        a(f"s_waitcnt vmcnt({n-2})")
        a("v_max_u32 v3, v67, v71")
        for kk in (0, 2):
            a(f"v_pk_add_f32 v[{60+kk}:{61+kk}], v[{64+kk}:{65+kk}], v[{68+kk}:{69+kk}]")
        for k in range(2, n):
            a(f"s_waitcnt vmcnt({n-1-k})")
            a(f"v_max_u32 v3, v3, v{67+4*k}")
            for kk in (0, 2):
                a(f"v_pk_add_f32 v[{60+kk}:{61+kk}], v[{60+kk}:{61+kk}], v[{64+4*k+kk}:{65+4*k+kk}]")
        a("v_cmp_eq_u32 vcc, -1, v3")
        a(f"s_cbranch_vccnz L_Z_{name}_r")
        a(f"L_Z_{name}_ok:")
        slow.append(f"""L_Z_{name}_r:
            s_cmp_lt_u32 s28, {SPIN}
            s_cbranch_scc1 L_Z_{name}
            s_branch L_Z_{name}_ok""")
        a("v_permlane32_swap_b32 v60, v62")
        a("v_permlane32_swap_b32 v61, v63")
        a("v_add_f32 v60, v60, v62")
        a("v_add_f32 v61, v61, v63")
        a("v_permlane16_swap_b32 v60, v61")
        a("v_add_f32 v60, v60, v61")
        a("v_add_f32 v60, v60, v60 row_ror:8 row_mask:0xf bank_mask:0xf")
        a("v_add_f32 v60, v60, v60 row_ror:4 row_mask:0xf bank_mask:0xf")
        rbf(60)

    z_offs(XY, 2)
    a("s_mov_b32 s28, 0")
    z_gather("y", 2, 0x100000)
    only_if(4, 35, 1, 1)
    a("v_mov_b32 v5, s26")
    a(f"buffer_store_dword v5, v4, s[16:19], 0 offen offset:{EPOCH} sc1")
    z_offs(XS, 8)
    a("v_lshlrev_b32 v50, 16, v50")
    a("v_add_f32 v50, v50, v60")
    rbf(50)
    a(f"v_mul_f32 v3, {f32(-math.log2(math.e))}, v50")
    a("v_exp_f32 v3, v3")
    a("v_add_f32 v3, 1.0, v3")
    a("v_rcp_f32 v3, v3")
    a("v_mul_f32 v50, v50, v3")
    rbf(50)
    a("v_lshlrev_b32 v49, 16, v49")
    stamp(13)
    if P["n5_pos"] >= 0:
        if P["n5_priv"]:
            poll_cnt("Z_n5", ["0"], 8 * P["n5_priv"] - 1, 0)
        else:
            poll_cnt("Z_n5", [str(128 * k) for k in range(8)], 15, 0)
    stamp(14)
    z_gather("s", 8, 0x1000000)
    a("v_mul_f32 v60, v60, v50")
    rbf(60)
    a("v_add_f32 v60, v60, v49")
    a("v_cvt_pk_bf16_f32 v60, v60, v60")
    a(f"buffer_store_short v60, v57, s[84:87], s40 offen {P['outf']}")
    a("L_A_end:")
    dump_stamps()
    a("s_endpgm")

    a(".p2align 8")
    a("L_F:")
    role[0] = "F"
    a.vm = []
    common_ids()
    srd(4, 1280)
    a("s_sub_u32 s25, s25, 16")
    a("s_lshl_b32 s89, s24, 2")
    a("s_add_u32 s89, s89, s25")
    a("s_sub_u32 s89, s89, 12")
    a("v_lshrrev_b32 v2, 3, v1")
    a("v_and_b32 v5, 7, v1")
    a("v_lshlrev_b32 v7, 1, v2")
    a("s_and_b32 s46, s25, 3")
    a("s_lshl_b32 s46, s46, 2")
    a("s_add_u32 s46, s46, s3")
    a("s_mul_i32 s35, s46, 80")
    a("s_mul_i32 s42, s89, 3072")
    a(f"s_add_u32 s42, s42, {XQA if not P.get('no_c0') else 0x20000000}")
    a("v_lshlrev_b32 v14, 4, v0")
    a("v_and_b32 v16, 0x7ff, v14")
    for k in range(4):
        a(f"v_mov_b32 v{60+k}, -1")
    a("s_mul_i32 s36, s89, 18432")
    a(f"s_add_u32 s36, s36, {XP}")
    a(f"s_mul_i32 s38, s89, {CLR_PER}")
    a(f"s_add_u32 s38, s38, {CLR0}")
    a(f"s_add_u32 s39, s38, {CLR_PER}")
    a("s_waitcnt lgkmcnt(0)")
    load_epoch()
    a("v_min_u32 v17, 3056, v14")
    a.vmem("buffer_store_dwordx4 v[60:63], v17, s[16:19], s42 offen sc1", "c0")
    x_stats_loads(8)
    x_rows(88, 35, 5)
    a("s_load_dwordx2 s[12:13], s[0:1], 56")
    a("s_load_dwordx2 s[8:9], s[0:1], 72")
    a("s_load_dwordx2 s[96:97], s[0:1], 64")
    a("s_load_dwordx2 s[20:21], s[0:1], 40")


    def pm_clear():
        a("s_mov_b32 s27, s36" if not P.get("no_pm") else "s_mov_b32 s27, 0x20000000")
        for k in range(5):
            a.vmem(f"buffer_store_dwordx4 v[60:63], v{14 if k < 4 else 16}, s[16:19], s27 offen sc1", "clr")
            a("s_add_u32 s27, s27, 4096")

    if P["c0_alone"] == 0:
        pm_clear()
    sel_masks(152, 3)
    a.wait_vm("c0", " lgkmcnt(0)")
    a("s_barrier")
    flag_add("F0", 0)
    stamp(3)
    if P["c0_alone"]:
        pm_clear()
    if P.get("no_clr"):
        a("v_mov_b32 v14, 0x20000000")
    a("L_F_clr:")
    a("buffer_store_dwordx4 v[60:63], v14, s[16:19], s38 offen sc1")
    a("s_add_u32 s38, s38, 4096")
    if P["dClr"] < 63:
        a(f"s_waitcnt vmcnt({P['dClr']})")
    a("s_cmp_lt_u32 s38, s39")
    a("s_cbranch_scc1 L_F_clr")
    a.vm += ["clr"] * (CLR_PER // 4096)
    make_tag()
    srd(12, 0 if P.get("no_f") else 1966080)
    srd(20, 0 if P.get("no_f") else 7864320)
    a.wait_vm("x")
    ln_stats(8, 24)
    sel_ops(88, 24, 5)
    red_addrs()
    a("v_mul_u32_u24 v6, 3072, v2")
    a("v_lshl_add_u32 v6, v5, 4, v6")
    a(f"s_mul_i32 s44, s46, {40*3072}")
    a("s_mul_i32 s27, s24, 384")
    a("s_add_u32 s44, s44, s27")
    a(f"s_movk_i32 s45, {8*3072}")
    fn = [0]

    def f_next():
        n = fn[0]
        if n < 15:
            rows_load(n, 5, 64, 6, 12, "w1")
        elif n < 30:
            q = 128 + 4 * (n - 15)
            a.vmem(f"buffer_load_dwordx4 a[{q}:{q+3}], v159, s[8:11], s{38+(n-15)//5} offen offset:{((n-15)%5)*256} {NT}", "w2")
        else:
            wo_load(n - 30)
        fn[0] += 1

    a("v_and_b32 v18, 15, v1")
    a("v_lshrrev_b32 v19, 4, v1")
    tail_setup(25, 18, 19, 3)
    a("v_mov_b32 v163, 0x20000000")
    srd(8, 0 if P.get("no_f") else 1966080)
    srd(96, 3072)
    a("s_mul_i32 s27, s24, 48")
    a("s_add_u32 s27, s27, s46")
    a("s_mul_i32 s38, s27, 5120")
    a(f"s_add_u32 s39, s38, {64*1280}")
    a(f"s_add_u32 s40, s38, {128*1280}")
    a("s_lshl_b32 s47, s27, 3")
    a("s_lshl_b32 s41, s89, 10")
    a(f"s_add_u32 s41, s41, {XH}")
    a("s_mul_i32 s43, s89, 2560")
    a(f"s_add_u32 s43, s43, {XY}")
    a("s_lshl_b32 s42, s24, 12")
    a("s_lshl_b32 s27, s46, 6")
    a("s_add_u32 s42, s42, s27")
    a(f"s_add_u32 s42, s42, {XH}")
    a("v_and_b32 v3, 3, v1")
    a("v_lshlrev_b32 v3, 10, v3")
    a("v_lshl_add_u32 v59, v19, 4, v3")
    phase5_addrs(11, 0, 3)
    a.wait_all()
    a("s_barrier")
    flag_add("F1", 128)
    stamp(1)
    a("v_min_u32 v14, 143, v0")
    a("v_lshlrev_b32 v14, 7, v14")
    a.vmem("buffer_load_dword v15, v14, s[16:19], s36 offen sc1", "pt")
    a("v_min_u32 v14, 95, v0")
    a("v_lshlrev_b32 v14, 7, v14")
    a("s_mul_i32 s27, s89, 12288")
    a(f"s_add_u32 s27, s27, {XC}")
    a.vmem("buffer_load_dword v15, v14, s[16:19], s27 offen sc1", "pt")
    a("v_lshlrev_b32 v3, 1, v19")
    for t in range(3):
        a.vmem(f"buffer_load_ushort v{56+t}, v3, s[96:99], s47 offen offset:{128*t}", "b1")
    while fn[0] < 15:
        throttle(P["dF"] if fn[0] >= P["nF0"] else 0)
        f_next()
        if fn[0] == 11:
            flag_load(0)
    a("s_waitcnt lgkmcnt(0)")
    flag_check("F", 0)
    same_add("F")
    rows_finish("F_h", 5, 24, 64, "w1", f_next, P["dF"] + 1, P["dF"], 140, 41, " sc1")
    stamp(5)
    while fn[0] < 30:
        throttle(P["dF2"])
        f_next()
    XHL = "buffer_load_dwordx4 v[60:63], v59, s[16:19], s42 offen sc1"
    a.vmem(XHL, "xh")
    flag_load(1)
    while "xh" in a.vm and fn[0] < 45:
        throttle(P["dF2"])
        if "xh" in a.vm:
            f_next()
    if "xh" in a.vm:
        a.wait_vm("xh")
    stamp(6)
    a("s_waitcnt lgkmcnt(0)")
    flag_check("F1", 1)
    a("v_cmp_ne_u32 vcc, s26, v63")
    a("s_cbranch_vccnz L_F_xh_slow")
    a("L_F_xh_ok:")
    slow.append(f"""L_F_xh_slow:
        s_mov_b32 s28, 0
        L_F_xh_loop:
        s_add_u32 s29, s29, 1
        {XHL}
        s_add_u32 s28, s28, 1
        s_waitcnt vmcnt(0)
        v_cmp_ne_u32 vcc, s26, v63
        s_cbranch_vccz L_F_xh_ok
        s_cmp_lt_u32 s28, {SPIN}
        s_cbranch_scc1 L_F_xh_loop
        s_branch L_F_xh_ok""")

    def gelu_part():
        for m in ("quad_perm:[1,0,3,2]", "quad_perm:[2,3,0,1]"):
            for k in range(3):
                a(f"v_add_f32 v{60+k}, v{60+k}, v{60+k} {m} row_mask:0xf bank_mask:0xf")
        for k in range(3):
            v = 60 + k
            rbf(v)
            a(f"v_lshlrev_b32 v3, 16, v{56+k}")
            a(f"v_add_f32 v{v}, v{v}, v3")
            rbf(v)
            a(f"v_mul_f32 v3, v{v}, v{v}")
            a(f"v_mul_f32 v3, {f32(0.044715)}, v3")
            a("v_add_f32 v3, 1.0, v3")
            a(f"v_mul_f32 v3, v3, v{v}")
            a(f"v_mul_f32 v3, {f32(-2*math.sqrt(2/math.pi)*math.log2(math.e))}, v3")
            a("v_exp_f32 v3, v3")
            a("v_add_f32 v3, 1.0, v3")
            a("v_rcp_f32 v3, v3")
            a(f"v_mul_f32 v{v}, v{v}, v3")

    gl = cap(gelu_part)
    for i, l in enumerate(gl):
        a(l)
        if i % 16 == 15 and fn[0] < 45:
            f_next()

    def f_hook(pos):
        if fn[0] < 45 and pos <= (4 if P["p5w"] < 2 else 1):
            f_next()

    phase5(60, 152, 128, 72, 11, 43, ng=3, hook=f_hook)
    stamp(7)
    while fn[0] < 45:
        throttle(P["dF2"])
        f_next()
    a("s_mov_b32 s80, 31")
    a("s_branch L_T")
    for blk in slow:
        a(blk)
    a("L_codeend:")

    if not P["stamps"]:
        a.L = [l for l in a.L if not l.startswith(("s_add_u32 s29,", "s_mov_b32 s29,"))]
    body = fix_hazards(a.L)
    hdr = open("recurrent_scan__compressed_kv_cla__dense_activation_gelu__decode.s.ref").read().split("; Override launch")[0] if P.get("hdr", 1) else ""
    out = hdr
    out += f"; @launch grid=(256,1,1) block=(256,1,1) lds={LDS_SIZE}\n"
    out += f""".amdgcn_target "amdgcn-amd-amdhsa--gfx950"
.text
.globl {KN}
.p2align 8
.type {KN},@function
{KN}:
"""
    out += "\n".join(("" if l.endswith(":") or l.startswith(".") else "    ") + l for l in body)
    out += f"""
s_endpgm
.section .rodata,"a"
.p2align 6
.amdhsa_kernel {KN}
  .amdhsa_next_free_vgpr 512
  .amdhsa_next_free_sgpr 102
  .amdhsa_accum_offset 256
  .amdhsa_group_segment_fixed_size 0
  .amdhsa_kernarg_size 112
  .amdhsa_user_sgpr_count 2
  .amdhsa_user_sgpr_kernarg_segment_ptr 1
  .amdhsa_system_sgpr_workgroup_id_x 1
  .amdhsa_float_denorm_mode_32 3
.end_amdhsa_kernel
"""
    return out


def parse(spec):
    kw = {}
    for p in spec.split(","):
        if "=" in p:
            k, v = p.split("=")
            kw[k] = int(v) if v.lstrip("-").isdigit() else v.replace("+", " ").replace("_", "")
    return kw


if __name__ == "__main__":
    out = sys.argv[1]
    kw = parse(sys.argv[2]) if len(sys.argv) > 2 else {}
    open(out, "w").write(gen(**kw))
```

```python
import re

REG = re.compile(r"^(-|abs\(|\|)?([vas])(\d+|\[(\d+):(\d+)\])\)?\|?$")


def regs_of(op):
    op = op.strip()
    if op in ("vcc", "exec", "m0"):
        return [(op, 0)]
    if op in ("vcc_lo", "vcc_hi"):
        return [("vcc", 0)]
    if op in ("exec_lo", "exec_hi"):
        return [("exec", 0)]
    m = REG.match(op)
    if not m:
        return []
    k = m.group(2)
    if m.group(4) is not None:
        return [(k, i) for i in range(int(m.group(4)), int(m.group(5)) + 1)]
    return [(k, int(m.group(3)))]


TRANS = ("v_exp_f32", "v_log_f32", "v_rcp_f32", "v_rsq_f32", "v_sqrt_f32", "v_sin_f32", "v_cos_f32")


class Ins:
    def __init__(self, text):
        self.text = text
        t = text.split(";")[0].strip()
        self.label = None
        self.kind = "other"
        self.dst = []
        self.src = []
        self.ws = 1
        self.target = None
        self.uncond = False
        if not t or t.startswith("."):
            self.kind = "dir"
            self.ws = 0
            return
        if t.endswith(":"):
            self.label = t[:-1]
            self.kind = "label"
            self.ws = 0
            return
        parts = t.split(None, 1)
        mn = parts[0]
        self.mn = mn
        rest = parts[1] if len(parts) > 1 else ""
        ops = []
        depth = 0
        cur = ""
        for ch in rest:
            if ch in "[(":
                depth += 1
            if ch in "])":
                depth -= 1
            if ch == "," and depth == 0:
                ops.append(cur)
                cur = ""
            else:
                cur += ch
        if cur.strip():
            ops.append(cur)
        mods = ""
        if ops:
            last = ops[-1].strip().split(None, 1)
            ops[-1] = last[0]
            mods = last[1] if len(last) > 1 else ""
        ops = [o.strip() for o in ops]
        self.ops = ops
        self.mods = mods
        R = [regs_of(o) for o in ops]
        flat = lambda x: [r for l in x for r in l]
        if mn.startswith("v_mfma"):
            self.kind = "mfma"
            self.dst = R[0]
            self.A, self.B, self.C = R[1], R[2], R[3]
            self.src = flat(R[1:])
            self.passes = 8 if "32x32x16" in mn else 4
        elif mn.startswith("v_"):
            self.kind = "valu"
            self.dst = R[0]
            self.src = flat(R[1:])
            if "permlane" in mn and "swap" in mn:
                self.dst = R[0] + R[1]
                self.src = R[0] + R[1]
            if mn.startswith(("v_fmac", "v_dot2c", "v_writelane")):
                self.src = self.src + R[0]
            if mn.startswith(("v_add_co", "v_sub_co", "v_addc_co")):
                self.dst = R[0] + R[1]
                self.src = flat(R[2:])
            self.dpp = any(k in mods for k in ("quad_perm", "row_", "wave_"))
            if self.dpp:
                self.src = self.src + R[0]
            self.trans = mn.startswith(TRANS)
            self.perml = "permlane" in mn
            self.rdlane = mn.startswith(("v_readlane", "v_readfirstlane"))
        elif mn.startswith(("buffer_", "global_")):
            self.kind = "vmem"
            self.lds = " lds" in (" " + mods)
            if "load" in mn and not self.lds:
                self.dst = R[0]
                self.src = flat(R[1:])
                if "d16" in mn:
                    self.src = self.src + R[0]
            else:
                self.src = flat(R)
            self.wide_store = "store" in mn and ("x3" in mn or "x4" in mn)
            if self.wide_store:
                self.data = R[0] if mn.startswith("buffer_") else R[1]
        elif mn.startswith("ds_"):
            self.kind = "ds"
            if mn.startswith(("ds_read", "ds_bpermute", "ds_permute", "ds_swizzle")):
                self.dst = R[0]
                self.src = flat(R[1:])
            else:
                self.src = flat(R)
        elif mn.startswith("s_"):
            self.kind = "salu"
            if mn == "s_nop":
                self.ws = int(ops[0], 0) + 1
            elif mn.startswith(("s_cbranch", "s_branch")):
                self.target = ops[0]
                self.uncond = mn == "s_branch"
            elif mn == "s_endpgm":
                self.uncond = True
            elif mn.startswith(("s_cmp", "s_bitcmp", "s_waitcnt", "s_barrier", "s_sleep", "s_setprio")):
                self.src = flat(R)
            else:
                self.dst = R[0] if R else []
                self.src = flat(R[1:])


BIG = 99


class State:
    def __init__(self):
        self.ev = {}

    def copy(self):
        s = State()
        s.ev = dict(self.ev)
        return s

    def merge(self, o):
        ch = False
        for k, v in o.ev.items():
            if v < self.ev.get(k, BIG):
                self.ev[k] = v
                ch = True
        return ch

    def tick(self, n):
        if n:
            self.ev = {k: v + n for k, v in self.ev.items() if v + n < 24}

    def age(self, e, r):
        return self.ev.get((e, r), BIG)


def need(ins, st):
    n = 0

    def req(e, regs, w):
        nonlocal n
        for r in regs:
            a = st.age(e, r)
            if a < w:
                n = max(n, w - a)

    vec = lambda regs: [r for r in regs if r[0] in "va" and r[0] != "vcc"]
    sca = lambda regs: [r for r in regs if r[0] in ("s", "vcc")]
    k = ins.kind
    if k == "mfma":
        req("valu_w", vec(ins.src), 2)
        for p, ab, c in ((4, 8, 6), (8, 12, 10)):
            req(("mfma_w", p), ins.A + ins.B, ab)
            for r in set(ins.C + ins.dst):
                a = st.age(("mfma_w", p), r)
                if a < c:
                    same = st.ev.get((("mfma_tuple", p, ins.dst[0], len(ins.dst)), r), BIG) == a and ins.passes == p and (ins.C == ins.dst)
                    if not same:
                        n = max(n, c - a)
    if k in ("valu", "vmem", "ds"):
        for p, w in ((4, 8), (8, 12)):
            req(("mfma_w", p), vec(ins.src) + vec(ins.dst), w)
    if k == "valu":
        for p, w in ((4, 3), (8, 7)):
            req(("mfma_c", p), vec(ins.dst), w)
        if ins.dpp or ins.perml:
            req("valu_w", vec(ins.src), 2)
        if ins.rdlane:
            req("valu_w", vec(ins.src), 1)
            req("valu_sw", sca(ins.src), 4)
        if ins.mn.startswith("v_writelane"):
            req("valu_sw", sca(ins.src), 4)
        req("valu_sw", sca(ins.src), 2)
        if not ins.trans:
            req("trans_w", vec(ins.src), 1)
        else:
            req("trans_w", vec(ins.src), 1)
        req("wstore", vec(ins.dst), 2)
    if k in ("vmem", "ds"):
        req("wstore", vec(ins.dst), 1)
        req("trans_w", vec(ins.src), 1)
    if k == "vmem":
        req("valu_sw", sca(ins.src), 5)
        if ins.lds:
            req("salu_w", [("m0", 0)], 1)
    if k == "salu":
        req("valu_sw", [r for r in sca(ins.src) if r[0] == "s"], 1)
    return n


def apply(ins, st):
    st.tick(ins.ws)
    k = ins.kind
    if k == "mfma":
        for r in ins.dst:
            st.ev[(("mfma_w", ins.passes), r)] = 0
            st.ev[(("mfma_tuple", ins.passes, ins.dst[0], len(ins.dst)), r)] = 0
        for r in ins.C:
            st.ev[(("mfma_c", ins.passes), r)] = 0
    elif k == "valu":
        for r in ins.dst:
            if r[0] in ("s", "vcc"):
                st.ev[("valu_sw", r)] = 0
            else:
                st.ev[("valu_w", r)] = 0
                if ins.trans:
                    st.ev[("trans_w", r)] = 0
                else:
                    st.ev.pop(("trans_w", r), None)
    elif k == "vmem":
        if ins.wide_store:
            for r in ins.data:
                st.ev[("wstore", r)] = 0
    elif k == "salu":
        for r in ins.dst:
            if r[0] == "m0":
                st.ev[("salu_w", r)] = 0
            st.ev.pop(("valu_sw", r), None)


def fix_hazards(lines):
    ins = [Ins(l) for l in lines]
    pad = [0] * len(ins)
    at_label = {}
    for _ in range(8):
        changed = False
        st = State()
        live = True
        for i, x in enumerate(ins):
            if x.kind == "label":
                if not live:
                    st = State()
                    live = True
                if x.label in at_label:
                    st.merge(at_label[x.label])
                continue
            if x.kind == "dir":
                continue
            st.tick(pad[i])
            n = need(x, st)
            if n:
                pad[i] += n
                st.tick(n)
                changed = True
            apply(x, st)
            if x.target:
                s = at_label.setdefault(x.target, State())
                if s.merge(st):
                    changed = True
            if x.uncond:
                live = False
        if not changed:
            break
    out = []
    for i, x in enumerate(ins):
        n = pad[i]
        while n > 0:
            k = min(n, 16)
            out.append(f"s_nop {k-1}")
            n -= k
        out.append(x.text)
    return out


class Asm:
    def __init__(self):
        self.L = []
        self.vm = []

    def __call__(self, text):
        for t in text.split("\n"):
            t = t.strip()
            if t:
                self.L.append(t)

    def vmem(self, text, tag=None):
        self(text)
        self.vm.append(tag)

    def vm_n(self, tag):
        idx = [i for i, t in enumerate(self.vm) if t == tag]
        assert idx, tag
        return len(self.vm) - 1 - idx[-1]

    def wait_vm(self, tag, extra=""):
        n = self.vm_n(tag)
        assert n <= 63, n
        self(f"s_waitcnt vmcnt({n}){extra}")
        self.vm = self.vm[len(self.vm) - n:] if n else []

    def wait_vm_n(self, n):
        self(f"s_waitcnt vmcnt({n})")
        if len(self.vm) > n:
            self.vm = self.vm[len(self.vm) - n:] if n else []

    def wait_all(self):
        self("s_waitcnt vmcnt(0)")
        self.vm = []


import subprocess, tempfile, os
WIDEN = ("v_add_f32", "v_sub_f32", "v_subrev_f32", "v_mul_f32", "v_max_f32", "v_and_b32", "v_or_b32", "v_xor_b32", "v_mov_b32",
         "v_exp_f32", "v_ceil_f32", "v_min_u32", "v_max_u32", "v_lshlrev_b32", "v_lshrrev_b32", "v_add_u32", "v_rcp_f32", "v_fmac_f32",
         "v_cmp_eq_u32", "v_cmp_ne_u32", "v_cmp_gt_u32", "v_cmp_gt_i32", "v_cndmask_b32")


def sizes(lines):
    src = '.amdgcn_target "amdgcn-amd-amdhsa--gfx950"\n.text\n' + "\n".join(l for l in lines if not l.startswith(".p2align")) + "\n"
    with tempfile.TemporaryDirectory() as d:
        open(d + "/a.s", "w").write(src)
        subprocess.run(["clang", "-x", "assembler", "-target", "amdgcn-amd-amdhsa", "-mcpu=gfx950", "-c", d + "/a.s", "-o", d + "/a.o"], check=True)
        out = subprocess.run(["llvm-objdump", "-d", "--mcpu=gfx950", d + "/a.o"], capture_output=True, text=True).stdout
    sz = [4 * len(l.split("//")[1].split(":")[1].split()) for l in out.split("\n") if "//" in l]
    res = []
    it = iter(sz)
    for l in lines:
        res.append(0 if l.endswith(":") or l.startswith(".") else next(it))
    assert next(it, None) is None
    return res


def align8(lines):
    sz = sizes(lines)
    INF = 1e18
    cost = [0.0, INF]
    back = []
    for l, n in zip(lines, sz):
        if l.startswith(".p2align"):
            b = 0 if cost[0] <= cost[1] else 1
            back.append({0: (b, False)})
            cost = [cost[b], INF]
            continue
        nc = [INF, INF]
        bk = {}
        opts = [(n, False)]
        if n == 4 and l.split()[0] in WIDEN:
            opts.append((8, True))
        for p in (0, 1):
            if cost[p] >= INF:
                continue
            for m, w in opts:
                c = cost[p] + (1.0 if m == 8 and p else 0.0) + (0.05 if w else 0.0)
                q = (p + m // 4) & 1
                if c < nc[q]:
                    nc[q] = c
                    bk[q] = (p, w)
        cost = nc
        back.append(bk)
    p = 0 if cost[0] <= cost[1] else 1
    out = []
    for l, bk in zip(reversed(lines), reversed(back)):
        p, w = bk[p]
        if w:
            mn, rest = l.split(None, 1)
            l = mn + "_e64 " + rest
        out.append(l)
    return out[::-1]
```

```python
import sys, struct, math
from asmlib import Asm, fix_hazards, align8

KN = "recurrent_scan__compressed_kv_cla__dense_activation_gelu__decode_kernel"


def f32(x):
    return hex(struct.unpack("<I", struct.pack("<f", x))[0])


EPOCH = 0
XH = 0x8000
XQ = 0x290000
XP = 0x40000
XM = XP + 65536
PM = 73728
XC = 0xD0000
XQA = 0x130000
XN2 = XQA + 49152
XI = XN2 + 16384
CLR0 = XQA + 98304
XN3 = CLR0
XN5 = XN3 + 32768
XML = XN5 + 32768
XO = XML + 32768
XS = XO + 786432
XY = XS + 128 * 2560
CLR_END = XY + 32 * 2560
CLR_PER = 40960
assert CLR_END <= CLR0 + 32 * CLR_PER
STAMP = 0x400000
WS_SIZE = 0x10000000

R1 = 24608
R2 = 4 * R1
LDS_SIZE = R2 + 24576 + 1024
SPIN = 200000

DOC = '''; ---------------------------------------------------------------------------------------------
;   q = LN(x) Wq ; qa = q Wuk^T * log2e/sqrt(D) ; s = qa ckv^T ; softmax with the true running max
;   (rounded up to an integer exponent so partial results rescale exactly) ; o = p ckv ;
;   ctx = o Wuv ; out = x + (ctx Wo) * silu(gelu(LN(x) W1 + b1) W2 + b2)
; Hand-offs in the workspace are self-validating: 16-byte granules carry either a launch tag
; in this launch (completion counted in the debug buffer).  Arrival counters only say when to look.
; ---------------------------------------------------------------------------------------------
'''

DEF = dict(stamps=0, wnt="nt", local=1, re=1, cpf=1,
           dQ=8, x_at=8, a_first=3, q_bar=1, dH1=7, nH1=0, dH=5, x1_wait=3, x1_at=99, wo_late=0, qa_lines=0, p5w=1, w6=0, xperm=1, n_pf=0, prog=0, m_at=4, ckf='', l2f='', rperm=0, rinv=0, rep3=1, rep5=1, pipe2=0, pipe3=0, pipe5=0, pf_bar=1, al8=1, out_pk=0, outf='', out_pt=0,
           dV1=3, nV1=5, dV=7, c0_alone=1, a_lvl=1, h1_early=0, dClr=63, n2=2, n2_at=23, n2_tgt=24,
           q_looks=12, dC1=4, nC1=0, dC=7, a_flag_at=18, a_x2_wait=8, rr=2, qrot=1,
           l2_in_s=12, l2_after1=0, l2b_w=0, l2b_r=2, l2b_mid=3, l2a_wait=1, tr_pre=60, p_ahead=6, tr_in=4, tr_pro=0,
           n3_step=13, n5_priv=4, n5_who=3, n5_pos=2, h_looks=10, a_looks=8, nF0=0, dF=4, dF2=5)


def gen(**kw):
    P = dict(DEF)
    P.update(kw)
    a = Asm()
    NT = P["wnt"]
    RE = P["local"] and P["re"]

    def stamp(i, fine=None):
        if not P["stamps"]:
            return
        if fine is None:
            if P["stamps"] != 1 and (role[0] == "A" or P["stamps"] == 3) and 0 < i < 15:
                return
        elif fine != P["stamps"]:
            return
        a(f"s_memrealtime s[{48+2*i}:{49+2*i}]")
        if fine is None and 0 < i < 15 and P.get("stop" + role[0]) == i:
            a("s_waitcnt vmcnt(0)")
            dump_stamps()
            a("s_endpgm")
            a(f"L_dead_{role[0]}:")

    role = ["H"]

    def dump_stamps():
        if not P["stamps"]:
            return
        stamp(15)
        if P.get("clk"):
            a("s_memtime s[76:77]")
        a("s_waitcnt lgkmcnt(0)")
        a("s_mov_b64 exec, -1")
        a("v_mov_b32 v250, 0")
        for i in range(16):
            a(f"v_writelane_b32 v250, s{48+2*i}, {i}")
        a("v_writelane_b32 v250, s29, 16")
        a("s_lshl_b32 s27, s2, 2\ns_add_u32 s27, s27, s3\ns_lshl_b32 s27, s27, 7")
        a(f"s_add_u32 s27, s27, {STAMP}")
        a("v_lshlrev_b32 v251, 2, v1")
        a("s_mov_b32 exec_hi, 0")
        a("buffer_store_dword v250, v251, s[16:19], s27 offen sc1")

    def srd(reg, size):
        a(f"s_mov_b32 s{reg+2}, {size}")
        a(f"s_mov_b32 s{reg+3}, 0x20000")

    def common_ids():
        a("v_lshrrev_b32 v2, 6, v0")
        a("v_and_b32 v1, 63, v0")
        a("v_readfirstlane_b32 s3, v2")
        if P["xperm"]:
            a("s_and_b32 s24, s2, 3")
            a("s_bfe_u32 s27, s2, 0x10002")
            if P["xperm"] == 2:
                a("s_xor_b32 s27, s27, 1")
            a("s_lshl1_add_u32 s24, s24, s27")
        else:
            a("s_and_b32 s24, s2, 7")
        srd(16, WS_SIZE)
        a("s_mov_b32 s29, 0")
        if P.get("stop" + role[0]) == 0:
            a("s_waitcnt lgkmcnt(0)")
            for i in range(1, 16):
                a(f"s_mov_b64 s[{48+2*i}:{49+2*i}], 0")
            dump_stamps()
            a("s_endpgm")
            a(f"L_dead_{role[0]}:")
        if P["stamps"] and P["stamps"] != 3:
            for i in range(1, 16):
                a(f"s_mov_b64 s[{48+2*i}:{49+2*i}], 0")

    def load_epoch():
        a(f"s_load_dword s26, s[16:17], {EPOCH}")
        a("s_load_dwordx2 s[30:31], s[0:1], 96")

    def make_tag():
        a("s_mul_i32 s26, s26, 0x9e3779b1")
        a("s_add_u32 s26, s26, 0x7f4a7c15")

    def rbf(v, t=None):
        a(f"v_cvt_pk_bf16_f32 v{v}, v{v}, v{v}")
        a(f"v_and_b32 v{v}, 0xffff0000, v{v}")

    def wave_sum(v, s):
        for m in ("quad_perm:[1,0,3,2] row_mask:0xf", "quad_perm:[2,3,0,1] row_mask:0xf", "row_half_mirror row_mask:0xf",
                  "row_mirror row_mask:0xf", "row_bcast:15 row_mask:0xa", "row_bcast:31 row_mask:0xc"):
            a(f"v_add_f32 v{v}, v{v}, v{v} {m} bank_mask:0xf")
        a(f"v_readlane_b32 s{s}, v{v}, 63")

    def x_stats_loads(v):
        a("v_lshlrev_b32 v3, 4, v1")
        a("v_lshlrev_b32 v4, 2, v1")
        a.vmem(f"buffer_load_dwordx4 v[{v}:{v+3}], v3, s[4:7], 0 offen", "x")
        a.vmem(f"buffer_load_dword v{v+4}, v4, s[4:7], 0 offen offset:1024", "x")

    def ln_stats(v, t):
        for j in range(5):
            a(f"v_lshlrev_b32 v{t+2*j}, 16, v{v+j}")
            a(f"v_and_b32 v{t+2*j+1}, 0xffff0000, v{v+j}")
        a(f"v_add_f32 v{t+10}, v{t}, v{t+1}")
        for j in range(2, 10):
            a(f"v_add_f32 v{t+10}, v{t+10}, v{t+j}")
        wave_sum(t + 10, 32)
        a(f"v_mov_b32 v{t+10}, {f32(1/640)}")
        a(f"v_mul_f32 v{t+10}, s32, v{t+10}")
        for j in range(10):
            a(f"v_sub_f32 v{t+j}, v{t+j}, v{t+10}")
        a(f"v_mul_f32 v{t+11}, v{t}, v{t}")
        for j in range(1, 10):
            a(f"v_fmac_f32 v{t+11}, v{t+j}, v{t+j}")
        wave_sum(t + 11, 33)
        a(f"v_mov_b32 v{t+11}, {f32(1/640)}")
        a(f"v_mul_f32 v{t+11}, s33, v{t+11}")
        rbf(t + 10)
        rbf(t + 11)
        a(f"v_add_f32 v{t+11}, {f32(1e-5)}, v{t+11}")
        rbf(t + 11)
        a(f"v_sqrt_f32 v{t+11}, v{t+11}")
        a(f"v_readfirstlane_b32 s32, v{t+10}")
        rbf(t + 11)
        a(f"v_rcp_f32 v{t+10}, v{t+11}")
        a(f"v_readfirstlane_b32 s33, v{t+11}")
        a(f"v_readfirstlane_b32 s34, v{t+10}")

    def normalize(v, t):
        a(f"v_subrev_f32 v{v}, s32, v{v}")
        rbf(v)
        a(f"v_mul_f32 v{t}, s34, v{v}")
        a(f"v_fma_f32 v{v}, -v{t}, s33, v{v}")
        a(f"v_fmac_f32 v{t}, s34, v{v}")
        a(f"v_cvt_pk_bf16_f32 v{v}, v{t}, v{t}")

    def sel_masks(m, t):
        a(f"v_and_b32 v{t}, 1, v1")
        a(f"v_lshlrev_b32 v{t}, 4, v{t}")
        a(f"v_mov_b32 v{t+1}, 0xffff")
        a(f"v_lshlrev_b32 v{t}, v{t}, v{t+1}")
        a(f"v_bfe_u32 v{t+1}, v1, 1, 2")
        for d in range(4):
            a(f"v_cmp_eq_u32 vcc, {d}, v{t+1}")
            a(f"v_cndmask_b32 v{m+d}, 0, v{t}, vcc")

    LVL = {0: (0, 0, 32), 1: (128, 128, 32)}

    def flag_load(lvl):
        o0, o1, n = LVL[lvl]
        a(f"s_load_dword s92, s[30:31], {o0}")
        if o1 != o0:
            a(f"s_load_dword s95, s[30:31], {o1}")

    def flag_add(name, off):
        a("s_mov_b32 s94, 1")
        a("s_cmp_lg_u32 s3, 0")
        a(f"s_cbranch_scc1 L_{name}_noadd")
        a(f"s_atomic_add s94, s[30:31], {off}")
        a(f"L_{name}_noadd:")

    slow = []

    def cap(f, *args):
        main = a.L
        a.L = []
        f(*args)
        r = a.L
        a.L = main
        return r

    LOC = "" if P["local"] else " sc1"

    def only_if(vd, cond, nl, vsrc):
        a(f"s_cmp_eq_u32 s{cond}, 0")
        a(f"s_cselect_b32 s27, {nl}, 0")
        a("v_cmp_gt_u32 vcc, s27, v1")
        a(f"v_mov_b32 v{vd}, 0x20000000")
        a(f"v_cndmask_b32 v{vd}, v{vd}, v{vsrc}, vcc")

    def notice(va, soff):
        a.vmem(f"buffer_atomic_add v161, v{va}, s[16:19], s{soff} offen sc1", "note")

    def poll_cnt(name, offs, target, cnt, late=None, pipe=0):
        a("s_mov_b32 s28, 0")
        if pipe:
            for i in range(len(offs)):
                a(f"s_mov_b32 s{92+i}, -1")
            if late:
                late = (late[0] * 3, late[1])
        a(f"L_{name}:")
        if late:
            a(f"s_cmp_eq_u32 s28, {late[0]}")
            a(f"s_cbranch_scc1 L_{name}_late")
            a(f"L_{name}_go:")
            slow.append(f"L_{name}_late:\n{late[1]}\ns_branch L_{name}_go")
        for i, o in enumerate(offs):
            a(f"s_load_dword s{92+i}, s[90:91], {o} glc")
        a("s_add_u32 s28, s28, 1")
        if cnt:
            a(f"s_add_u32 s29, s29, {cnt}")
        a(f"s_cmp_ge_u32 s28, {SPIN * (4 if pipe else 1)}")
        a(f"s_sleep {pipe}" if pipe else "s_waitcnt lgkmcnt(0)")
        a(f"s_cbranch_scc1 L_{name}_out")
        r = 92
        for i in range(1, len(offs)):
            a(f"s_min_i32 s27, s{r}, s{92+i}")
            r = 27
        a(f"s_cmp_lt_i32 s{r}, {target}")
        a(f"s_cbranch_scc1 L_{name}")
        a(f"L_{name}_out:")

    def same_add(name):
        a("s_getreg_b32 s80, hwreg(HW_REG_XCC_ID, 0, 4)")
        a("s_lshl_b32 s80, s80, 2")
        a("s_lshl_b32 s93, s24, 7")
        a("s_add_u32 s80, s80, s93")
        a(f"s_add_u32 s80, s80, {XI}")
        a("s_cmp_lg_u32 s3, 0")
        a(f"s_cbranch_scc1 L_{name}_nocensus")
        a("s_mov_b32 s93, 1")
        a("s_atomic_add s93, s[16:17], s80")
        a(f"L_{name}_nocensus:")

    def same_load():
        a("s_load_dword s80, s[16:17], s80")

    def unless_same(label):
        a("s_cmp_eq_u32 s80, 31")
        a(f"s_cbranch_scc1 {label}")

    def poll_multi(name, nrep, second, target, gap):
        nc = 2 if second else 1
        a("s_mov_b32 s28, 0")
        for i in range(nrep * nc):
            a(f"s_mov_b32 s{92+i}, -1")
        a(f"L_{name}:")
        for r in range(nrep):
            a(f"s_load_dword s{92+r}, s[90:91], {8192*r} glc")
            if second:
                a(f"s_load_dword s{92+nrep+r}, s[90:91], {second} offset:{8192*r} glc")
            a(f"s_sleep {gap}")
            for c in range(nc):
                t = (27, 100)[c]
                b = 92 + nrep * c
                a(f"s_max_i32 s{t}, s{b}, s{b+1}")
                for k in range(2, nrep):
                    a(f"s_max_i32 s{t}, s{t}, s{b+k}")
            if second:
                a("s_min_i32 s27, s27, s100")
            a(f"s_cmp_ge_i32 s27, {target}")
            a(f"s_cbranch_scc1 L_{name}_out")
        a("s_add_u32 s28, s28, 1")
        a(f"s_cmp_lt_u32 s28, {SPIN}")
        a(f"s_cbranch_scc1 L_{name}")
        a(f"L_{name}_out:")

    def cnt_base(sreg):
        a(f"s_add_u32 s90, s16, s{sreg}")
        a("s_addc_u32 s91, s17, 0")

    def pop_n(fill, n):
        while fill and (n > 0 or fill[0].startswith(("s_cselect", "s_addc", "s_cbranch", "v_cndmask")) or
                        (len(fill) > 1 and fill[1].startswith("v_cndmask") and not fill[0].startswith("v_cmp"))):
            a(fill.pop(0))
            n -= 1

    def throttle(d):
        if len(a.vm) > d:
            a.wait_vm_n(d)

    def flag_check(name, lvl):
        o0, o1, n = LVL[lvl]
        if o1 != o0:
            a("s_min_u32 s92, s92, s95")
        a(f"s_cmp_lt_u32 s92, {n}")
        a(f"s_cbranch_scc1 L_{name}_fslow")
        a(f"L_{name}_fok:")
        slow.append(f"""L_{name}_fslow:
            s_mov_b32 s92, 0
            v_and_b32 v252, 1, v1
            v_mul_u32_u24 v252, {o1-o0}, v252
            L_{name}_floop:
            s_add_u32 s29, s29, 0x10000
            s_sleep 24
            global_load_dword v253, v252, s[30:31] offset:{o0} sc1
            s_add_u32 s92, s92, 1
            s_waitcnt vmcnt(0)
            v_cmp_gt_u32 vcc, {n}, v253
            s_cbranch_vccz L_{name}_fok
            s_cmp_lt_u32 s92, {SPIN}
            s_cbranch_scc1 L_{name}_floop
            s_branch L_{name}_fok""")

    def phase5(vin, vmask, wreg, vt, lds_s, s_out, ng=4, hook=None):
        acc = vt + 16
        for t in range(ng):
            a(f"v_cvt_pk_bf16_f32 v{vin+t}, v{vin+t}, v{vin+t}")
        for d in range(4):
            a(f"v_and_b32 v{vt+d}, v{vin}, v{vmask+d}")
        assert ng == 3
        seq = [(0, 0), (0, 1), (0, 2), (1, 0), (1, 1), (2, 0), (2, 1), (1, 2), (2, 2)] + [(t, b) for b in (3, 4) for t in range(3)]
        wr = lambda b: a(f"ds_write_b128 v{lds_s}, v[{acc+4*b}:{acc+4*b+3}] offset:{b*512}")
        for i, (t, b) in enumerate(seq):
            if hook and i % 5 == 0:
                hook(i // 5 + 1)
            q = wreg + 4 * (t * 5 + b)
            c = "0" if t == 0 else f"v[{acc+4*b}:{acc+4*b+3}]"
            a(f"v_mfma_f32_16x16x32_bf16 v[{acc+4*b}:{acc+4*b+3}], v[{vt+4*t}:{vt+4*t+3}], a[{q}:{q+3}], {c}")
            if i < 4:
                for d in (2 * (i & 1), 2 * (i & 1) + 1):
                    a(f"v_and_b32 v{vt+4*(i//2+1)+d}, v{vin+i//2+1}, v{vmask+d}")
            if P["p5w"] == 2 and i == 4:
                a("s_mov_b32 exec_hi, 0xff")
            if P["p5w"] and i in (8, 9, 11, 14):
                wr({8: 0, 9: 1, 11: 2, 14: 3}[i])
                if i < 14:
                    a("s_nop 0")
            elif P["p5w"] and i >= 5:
                a("s_nop 1")
        if hook:
            hook(ng + 1)
        if not P["p5w"]:
            a("s_mov_b32 exec_hi, 0")
        for b in range(4 if P["p5w"] else 0, 5):
            wr(b)
        a("s_mov_b32 exec_hi, 0xff")
        if hook:
            hook(ng + 2)
        a("s_waitcnt lgkmcnt(0)")
        a("s_barrier")
        for w in range(4):
            a(f"ds_read_b128 v[{vt+4*w}:{vt+4*w+3}], v{lds_s+1} offset:{w*2560}")
        a("s_waitcnt lgkmcnt(2)")
        for k in (0, 2):
            a(f"v_pk_add_f32 v[{vt+k}:{vt+k+1}], v[{vt+k}:{vt+k+1}], v[{vt+4+k}:{vt+5+k}]")
        a("s_waitcnt lgkmcnt(0)")
        for k in (0, 2):
            a(f"v_pk_add_f32 v[{vt+8+k}:{vt+9+k}], v[{vt+8+k}:{vt+9+k}], v[{vt+12+k}:{vt+13+k}]")
        for k in (2, 0):
            a(f"v_pk_add_f32 v[{vt+k}:{vt+k+1}], v[{vt+k}:{vt+k+1}], v[{vt+8+k}:{vt+9+k}]")
        a(f"v_min_u32 v{vt+3}, -2, v{vt+3}")
        a.vmem(f"buffer_store_dwordx4 v[{vt}:{vt+3}], v{lds_s+2}, s[16:19], s{s_out} offen sc1", "pub")
        a("s_mov_b64 exec, -1")

    def phase5_addrs(lds_s, base, t):
        a(f"v_and_b32 v{t}, 15, v1")
        a(f"v_lshlrev_b32 v{t}, 5, v{t}")
        a(f"v_and_b32 v{t+1}, 16, v1")
        a(f"s_mul_i32 s27, s3, 2560")
        a(f"s_add_u32 s27, s27, {base}")
        a(f"v_add3_u32 v{lds_s}, v{t}, v{t+1}, s27")
        a(f"s_mul_i32 s27, s3, 640")
        a(f"v_lshl_add_u32 v{lds_s+2}, v1, 4, s27")
        a(f"v_add_u32 v{lds_s+1}, {base}, v{lds_s+2}")

    def tail_setup(sn, vj, vg, vt):
        phase5_addrs(156, R2 + 14336, vt)
        a(f"v_mul_u32_u24 v{vt}, 1280, v{vg}")
        a(f"v_lshl_add_u32 v159, v{vj}, 4, v{vt}")
        a(f"v_lshlrev_b32 v{vt}, 10, v{vj}")
        a(f"v_lshl_add_u32 v160, v{vg}, 4, v{vt}")
        a(f"s_lshr_b32 s87, s{sn}, 2")
        a("s_lshl_b32 s27, s24, 2")
        a("s_add_u32 s87, s87, s27")
        a(f"s_and_b32 s27, s{sn}, 3")
        a("s_lshl_b32 s27, s27, 2")
        a("s_add_u32 s27, s27, s3")
        a("s_mul_i32 s84, s87, 48")
        a("s_add_u32 s84, s84, s27")
        a("s_mulk_i32 s84, 5120")
        a(f"s_add_u32 s85, s84, {64*1280}")
        a(f"s_add_u32 s86, s84, {128*1280}")
        a("s_mulk_i32 s87, 12288")
        a("s_lshl_b32 s27, s27, 6")
        a("s_add_u32 s87, s87, s27")
        a(f"s_add_u32 s87, s87, {XC}")
        a("s_lshl_b32 s88, s24, 4")
        a(f"s_add_u32 s88, s88, s{sn}")
        if P["n5_priv"]:
            a("s_lshl_b32 s83, s3, 13")
            a(f"s_add_u32 s83, s83, {XN5}")
        else:
            a("s_lshl_b32 s83, s24, 7")
            a(f"s_add_u32 s83, s83, {XN5}")
        a("s_mulk_i32 s88, 2560")
        a(f"s_add_u32 s88, s88, {XS}")
        for k in range(3):
            a(f"v_mov_b32 v{164+k}, 0")
        a("v_mov_b32 v161, 1")
        if P["n5_priv"]:
            a(f"s_and_b32 s28, s{sn}, {16 // P['n5_priv'] - 1}")
            a(f"s_xor_b32 s28, s28, {P['n5_who'] & (16 // P['n5_priv'] - 1)}")
            a(f"s_lshr_b32 s27, s3, {P['rep5'].bit_length() - 1}")
            a("s_or_b32 s28, s28, s27")
            a(f"v_lshlrev_b32 v{vt}, 7, v1")
            only_if(162, 28, 40, vt)
        else:
            a(f"v_lshlrev_b32 v{vt}, 10, v1")
            only_if(162, 3, 8, vt)

    def wo_load(n):
        q = 192 + 4 * n
        a.vmem(f"buffer_load_dwordx4 a[{q}:{q+3}], v159, s[20:23], s{84+n//5} offen offset:{(n%5)*256} {NT}", "wo")

    def tail():
        re = "buffer_store_dwordx4 v[28:31], v163, s[16:19], s43 offen sc1"
        a("L_T:")
        a("s_mov_b32 exec_lo, 0x0fff0fff")
        a("s_mov_b32 exec_hi, 0x0fff0fff")
        a("s_mov_b32 s28, 0")
        stamp(13)
        a("L_T_x4:")
        a("buffer_load_dwordx4 v[164:167], v160, s[16:19], s87 offen sc1")
        a("s_add_u32 s28, s28, 1")
        a(f"s_cmp_ge_u32 s28, {P['h_looks']}")
        a("s_cbranch_scc1 L_T_x4_long")
        a("L_T_x4_chk:")
        a.wait_all()
        a("v_cmp_ne_u32 vcc, s26, v167")
        a("s_cbranch_vccnz L_T_x4")
        a("L_T_x4_ok:")
        slow.append(f"""L_T_x4_long:
            s_cmp_lg_u32 s28, {P['h_looks']}
            s_cbranch_scc1 L_T_x4_nore
            s_mov_b64 exec, -1
            {re}
            s_mov_b32 exec_lo, 0x0fff0fff
            s_mov_b32 exec_hi, 0x0fff0fff
            L_T_x4_nore:
            s_cmp_lt_u32 s28, {SPIN}
            s_cbranch_scc1 L_T_x4_chk
            s_waitcnt vmcnt(0)
            s_branch L_T_x4_ok""")
        a("s_mov_b64 exec, -1")
        stamp(14)

        def n5(pos):
            if pos == P["n5_pos"]:
                notice(162, 83)

        n5(0)
        for m in ("quad_perm:[1,0,3,2]", "quad_perm:[2,3,0,1]", "row_half_mirror", "row_mirror"):
            for k in range(3):
                a(f"v_add_f32 v{164+k}, v{164+k}, v{164+k} {m} row_mask:0xf bank_mask:0xf")
        phase5(164, 152, 192, 168, 156, 88, ng=3, hook=n5)
        if RE:
            unless_same("L_T_end")
            a(re)
            a("L_T_end:")

    def x_rows(vd, sreg, ng):
        for g in range(ng):
            a.vmem(f"buffer_load_ushort v{vd+g}, v7, s[4:7], s{sreg} offen offset:{16*g}", "x")

    def rows_load(n, ng, areg, va, srdr, tag):
        g, t = n // 3, n % 3
        q = areg + n * 4
        a.vmem(f"buffer_load_dwordx4 a[{q}:{q+3}], v{va}, s[{srdr}:{srdr+3}], s44 offen offset:{t*128} {NT}", (tag, g))
        if t == 2 and g < ng - 1:
            a("s_add_u32 s44, s44, s45")

    def sel_ops(vx, vop, ng):
        for g in range(ng):
            a(f"v_lshlrev_b32 v{vx+g}, 16, v{vx+g}")
            normalize(vx + g, 3)
            for d in range(4):
                a(f"v_and_b32 v{vop+4*g+d}, v{vx+g}, v{152+d}")

    def red_addrs():
        a("v_bfe_u32 v3, v1, 3, 1")
        a("v_mul_u32_u24 v3, 768, v3")
        a("v_lshl_add_u32 v3, v5, 5, v3")
        a("v_and_b32 v4, 16, v1")
        a("s_mul_i32 s28, s3, 1536")
        a(f"s_add_u32 s28, s28, {R2}")
        a("v_add3_u32 v22, v3, v4, s28")
        a("v_lshlrev_b32 v23, 2, v1")
        a(f"v_add_u32 v23, {R2}, v23")
        a("v_lshlrev_b32 v10, 4, v1")

    def rows_finish(name, ng, vop, areg, tag, nxt, nfirst, depth, dst, slot, flags, before_bar=None, allw=False, two=False):
        done = [0]

        def ready():
            while done[0] < ng and (tag, done[0]) not in a.vm:
                g = done[0]
                for t in range(3):
                    q = areg + (g * 3 + t) * 4
                    c = "0" if g == 0 else f"v[{44+4*t}:{47+4*t}]"
                    a(f"v_mfma_f32_16x16x32_bf16 v[{44+4*t}:{47+4*t}], v[{vop+4*g}:{vop+4*g+3}], a[{q}:{q+3}], {c}")
                done[0] += 1

        ready()
        for k in range(nfirst):
            throttle(depth)
            nxt()
            ready()
        while done[0] < ng:
            a.wait_vm((tag, done[0]))
            ready()
        if before_bar:
            before_bar()
        a("s_mov_b32 exec_lo, 0x00ff00ff")
        a("s_mov_b32 exec_hi, 0xff00ff00")
        for t in range(3):
            a(f"ds_write_b128 v22, v[{44+4*t}:{47+4*t}] offset:{t*256}")
        a("s_mov_b64 exec, -1")
        a("s_waitcnt lgkmcnt(0)")
        a("s_barrier")
        if not allw:
            a("s_cmp_lg_u32 s3, 0")
            a(f"s_cbranch_scc1 L_{name}_nopub")
        for k in range(12):
            a(f"ds_read2st64_b32 v[{64+2*k}:{65+2*k}], v23 offset0:{2*k} offset1:{2*k+1}")
        a(f"v_mov_b32 v{dst+3}, s26")
        a("s_waitcnt lgkmcnt(6)")
        for t in range(3):
            a(f"v_add_f32 v{dst+t}, v{64+t}, v{67+t}")
        for p in (2, 3):
            for t in range(3):
                a(f"v_add_f32 v{dst+t}, v{dst+t}, v{64+3*p+t}")
        if two:
            a.vmem(f"buffer_store_dwordx4 v[{dst}:{dst+3}], v148, s[16:19], s{slot} offen{flags}", "pub")
            a(f"v_mov_b32 v{dst-1}, s26")
            a("s_waitcnt lgkmcnt(0)")
            for t in range(3):
                a(f"v_add_f32 v{dst-4+t}, v{76+t}, v{79+t}")
            for p in (6, 7):
                for t in range(3):
                    a(f"v_add_f32 v{dst-4+t}, v{dst-4+t}, v{64+3*p+t}")
            a.vmem(f"buffer_store_dwordx4 v[{dst-4}:{dst-1}], v149, s[16:19], s{slot} offen{flags}", "pub")
            return
        a("s_waitcnt lgkmcnt(0)")
        for p in range(4, 8):
            for t in range(3):
                a(f"v_add_f32 v{dst+t}, v{dst+t}, v{64+3*p+t}")
        if allw:
            a.vmem(f"buffer_store_dwordx4 v[{dst}:{dst+3}], v148, s[16:19], s{slot} offen{flags}", "pub")
        else:
            a(f"buffer_store_dwordx4 v[{dst}:{dst+3}], v10, s[16:19], s{slot} offen{flags}")
            a(f"L_{name}_nopub:")

    gA = 5
    W6 = P["w6"]
    NQ = 8 if W6 else 4

    stamp(0)
    if P.get("clk"):
        a("s_memtime s[74:75]")
    a("s_cmpk_ge_u32 s2, 256")
    a("s_cbranch_scc1 L_exit")
    a("s_load_dwordx2 s[4:5], s[0:1], 0")
    a("s_load_dwordx2 s[8:9], s[0:1], 16")
    a("s_load_dwordx2 s[12:13], s[0:1], 24")
    a("s_load_dwordx2 s[16:17], s[0:1], 104")
    a("s_getpc_b64 s[30:31]")
    a("L_pc:")
    a("s_lshr_b32 s25, s2, 3")
    if P["rperm"]:
        b = P["rperm"] - 1
        a(f"s_bfe_u32 s27, s25, {hex(0x10000 | b)}")
        a("s_lshl_b32 s27, s27, 4")
        a(f"s_and_b32 s28, s25, {(1 << b) - 1}")
        a("s_or_b32 s27, s27, s28")
        a(f"s_lshr_b32 s25, s25, {b+1}")
        a(f"s_lshl_b32 s25, s25, {b}")
        a("s_or_b32 s25, s25, s27")
    if P["rinv"]:
        a("s_xor_b32 s25, s25, 31")
    if P["cpf"] == 1:
        a("v_lshlrev_b32 v5, 7, v0")
    elif P["cpf"] == 2:
        a("v_and_b32 v5, 7, v0")
        a("v_lshl_add_u32 v5, s25, 3, v5")
        a("v_lshlrev_b32 v5, 7, v5")
    if P["cpf"]:
        a("v_min_u32 v5, L_codeend-L_pc-4, v5")
        a("global_load_dword v255, v5, s[30:31]")
    a("s_cmp_lt_u32 s25, 16")
    a("s_cbranch_scc1 L_A")
    a("s_cmp_ge_u32 s25, 28")
    a("s_cbranch_scc1 L_F")

    a.vm = []
    common_ids()
    srd(12, 0 if P.get("no_uk") else 9437184)
    a("s_sub_u32 s25, s25, 16")
    a("v_lshrrev_b32 v2, 3, v1")
    a("v_and_b32 v5, 7, v1")
    a("v_lshrrev_b32 v4, 5, v1")
    a("v_and_b32 v3, 3, v2")
    a("v_lshl_add_u32 v4, v4, 3, v3")
    a("v_mul_u32_u24 v4, 12288, v4")
    a("v_lshrrev_b32 v3, 1, v2")
    a("v_xor_b32 v3, v3, v5")
    a("v_lshl_add_u32 v6, v3, 4, v4")
    a("v_xor_b32 v7, 64, v6")
    a(f"v_add_u32 v7, {16*12288}, v7")
    a(f"s_mul_i32 s35, s25, {64*12288}")
    a("s_lshl_b32 s36, s24, 2")
    a("s_add_u32 s36, s36, s3")
    a("s_mul_i32 s27, s36, 384")
    a("s_add_u32 s35, s35, s27")
    a(f"s_mul_i32 s37, s3, {R1}")
    a("s_mov_b32 m0, s37")
    a("s_movk_i32 s38, 896")
    a("s_movk_i32 s39, 1280")
    a(f"s_mov_b32 s40, {4*12288}")
    a(f"s_mul_i32 s27, s25, {3*NQ}")
    a("v_lshrrev_b32 v8, 3, v0")
    a(f"v_min_u32 v8, {3*NQ-1}, v8")
    a("v_add_u32 v8, s27, v8")
    a(f"v_min_u32 v8, {32*NQ-1}, v8")
    a("v_lshlrev_b32 v8, 7, v8")
    a(f"s_mul_i32 s42, s24, {4096*NQ}")
    a(f"s_add_u32 s42, s42, {XQ}")
    a("s_waitcnt lgkmcnt(0)")
    tn = [0]

    def tile_dma(srdr, xor, tag, grp):
        n = tn[0]
        par, t = (n // 3) & 1, n % 3
        a.vmem(f"buffer_load_dwordx4 v{6+par}, s[{srdr}:{srdr+3}], s35 offen offset:{t*128} {NT} lds", (tag, n // grp))
        a(f"s_add_u32 m0, m0, s{39 if t == 2 else 38}")
        if n % 6 == 5 and n < 23:
            a("s_add_u32 s35, s35, s40")
            a(f"s_xor_b32 s40, s40, {xor}")
        tn[0] += 1

    XR = (4*12288) ^ (28*12288)
    uk = lambda: tile_dma(12, XR, "uk", 6)

    def h_setup():
        load_epoch()
        a("s_load_dwordx2 s[8:9], s[0:1], 32")
        a("s_load_dwordx2 s[20:21], s[0:1], 40")
        a("v_lshlrev_b32 v10, 4, v1")
        sel_masks(152, 3)
        a("v_and_b32 v2, 15, v1")
        a("v_lshrrev_b32 v3, 4, v1")
        a("v_lshrrev_b32 v4, 3, v2")
        a("v_mul_u32_u24 v4, 3072, v4")
        a("v_and_b32 v5, 7, v2")
        a("v_lshl_add_u32 v4, v5, 7, v4")
        a("v_lshrrev_b32 v5, 1, v2")
        a("v_xor_b32 v5, v5, v3")
        a("v_lshl_add_u32 v4, v5, 4, v4")
        a("v_add_u32 v8, s37, v4")
        a("v_xad_u32 v9, v4, 64, s37")
        a(f"s_mul_i32 s41, s36, {1024*NQ}")
        a(f"s_add_u32 s41, s41, {XQ}")
        a("s_add_u32 s45, s41, 4096")
        a("s_lshl_b32 s27, s3, 9")
        a(f"s_add_u32 s27, s27, {R2+12288}")
        a("v_lshl_add_u32 v11, v1, 1, s27")
        a("v_lshl_add_u32 v12, v3, 4, s27")
        a("v_lshrrev_b32 v4, 1, v3")
        a("v_lshl_add_u32 v4, v2, 1, v4")
        a("v_lshlrev_b32 v4, 10, v4")
        a("v_and_b32 v5, 1, v3")
        a("v_lshl_add_u32 v13, v5, 6, v4")
        a("s_lshl_b32 s42, s25, 12")
        a("s_lshl_b32 s27, s24, 7")
        a("s_add_u32 s42, s42, s27")
        a(f"s_lshl_b32 s27, s3, {10 if P['qa_lines'] else 4}")
        a("s_add_u32 s42, s42, s27")
        a(f"s_add_u32 s42, s42, {XQA}")
        if P["qa_lines"]:
            a("v_lshl_add_u32 v4, v2, 2, v3")
            a("s_lshl_b32 s27, s3, 4")
            a(f"s_add_u32 s27, s27, {R2+11264}")
            a("v_lshl_add_u32 v14, v4, 6, s27")
            a("s_lshl_b32 s27, s3, 7")
            a(f"s_add_u32 s27, s27, {R2+11264}")
            a("v_add_u32 v15, s27, v10")
        tail_setup(25, 2, 3, 4)
        a("v_mov_b32 v163, v10")
        a("v_lshlrev_b32 v4, 9, v1")
        only_if(150, 3, 32, 4)
        a("s_lshr_b32 s82, s24, 1")
        a("s_lshl_b32 s82, s82, 7")
        a(f"s_add_u32 s82, s82, {XN2}")
        a("s_waitcnt lgkmcnt(0)")
        make_tag()
        srd(8, 0 if P.get("no_uv") else 9437184)
        srd(20, 0 if P.get("no_wo") else 7864320)

    def uk_read(T):
        for kk in range(6):
            q = (T * 6 + kk) * 4
            a(f"ds_read_b128 a[{q}:{q+3}], v{8+(kk&1)} offset:{T*6144+(kk>>1)*1024}")

    def xq_loads(tag):
        for mq in range(NQ):
            t = f"buffer_load_dwordx4 v[{16+4*mq}:{19+4*mq}], v10, s[16:19], s{41 if mq < 4 else 45} offen offset:{(mq&3)*1024} sc1"
            if tag:
                a.vmem(t, tag)
            else:
                a(t)

    def xq_check():
        a("v_min3_u32 v4, s26, v19, v23")
        a("v_max3_u32 v5, s26, v19, v23")
        for mq in range(2, NQ, 2):
            a(f"v_min3_u32 v4, v4, v{19+4*mq}, v{23+4*mq}")
            a(f"v_max3_u32 v5, v5, v{19+4*mq}, v{23+4*mq}")
        a("v_cmp_ne_u32 vcc, v4, v5")

    dh = lambda: P["dH1"] if tn[0] < P["nH1"] else P["dH"]
    uk()
    uk()
    a.vmem("buffer_load_dword v17, v8, s[16:19], s42 offen sc1", "pt")
    while tn[0] <= dh():
        uk()
    h_setup()
    while tn[0] < 24:
        throttle(dh() + (sum(t == "xq" for t in a.vm[-(dh()+NQ):])))
        uk()
        if tn[0] == P["x1_at"]:
            xq_loads("xq")
            flag_load(0)
    stamp(1)
    rd = [0]

    def uk_ready():
        while rd[0] < 4 and ("uk", rd[0]) not in a.vm:
            uk_read(rd[0])
            rd[0] += 1

    won = 0
    uk_ready()
    if P["x1_at"] > 24:
        throttle(P["x1_wait"])
        xq_loads("xq")
        flag_load(0)
    stamp(2)
    uk_ready()
    while rd[0] < 4 and "xq" in a.vm and a.vm_n(("uk", rd[0])) > a.vm_n("xq"):
        a.wait_vm(("uk", rd[0]))
        uk_ready()
    if "xq" in a.vm:
        a.wait_vm("xq", " lgkmcnt(0)")
    else:
        a("s_waitcnt lgkmcnt(0)")
    flag_check("H", 0)
    stamp(3)
    xq_check()
    a("s_cbranch_vccnz L_H_xq_slow")
    a("L_H_xq_ok:")
    stamp(4)
    if P["n2"] == 3:
        notice(150, 82)
    slow.append("\n".join(["L_H_xq_slow:", "s_mov_b32 s28, 0", "L_H_xq_loop:", "s_add_u32 s29, s29, 1",
                           ] + cap(xq_loads, None) +
                          ["s_add_u32 s28, s28, 1", "s_waitcnt vmcnt(0)"] + cap(xq_check) +
                          ["s_cbranch_vccz L_H_xq_ok", f"s_cmp_lt_u32 s28, {SPIN}", "s_cbranch_scc1 L_H_xq_loop", "s_branch L_H_xq_ok"]))
    for k in range(3):
        a(f"v_add_f32 v{16+k}, v{16+k}, v{20+k}")
        a(f"v_add_f32 v{24+k}, v{24+k}, v{28+k}")
    if NQ == 8:
        for k in range(3):
            a(f"v_add_f32 v{32+k}, v{32+k}, v{36+k}")
            a(f"v_add_f32 v{40+k}, v{40+k}, v{44+k}")
        for k in range(3):
            a(f"v_add_f32 v{16+k}, v{16+k}, v{32+k}")
            a(f"v_add_f32 v{24+k}, v{24+k}, v{40+k}")
    for k in range(3):
        a(f"v_add_f32 v{16+k}, v{16+k}, v{24+k}")
    a("v_cvt_pk_bf16_f32 v16, v16, v17")
    a("v_cvt_pk_bf16_f32 v18, v18, v18")
    a("ds_write_b16 v11, v16")
    a("ds_write_b16_d16_hi v11, v16 offset:128")
    a("ds_write_b16 v11, v18 offset:256")
    for kk in range(6):
        a(f"ds_read_b128 v[{32+4*kk}:{35+4*kk}], v12 offset:{kk*64}")

    def qa_mfma(T, kk):
        q = (T * 6 + kk) * 4
        c = "0" if kk == 0 else f"v[{16+4*T}:{19+4*T}]"
        a(f"v_mfma_f32_16x16x32_bf16 v[{16+4*T}:{19+4*T}], a[{q}:{q+3}], v[{32+4*kk}:{35+4*kk}], {c}")

    have = rd[0]
    for kk in range(6):
        a(f"s_waitcnt lgkmcnt({5-kk})")
        for T in range(have):
            qa_mfma(T, kk)
    while rd[0] < 4:
        T = rd[0]
        if ("uk", T) in a.vm:
            a.wait_vm(("uk", T))
        uk_read(T)
        rd[0] += 1
        for kk in range(6):
            a(f"s_waitcnt lgkmcnt({5-kk})")
            qa_mfma(T, kk)
    if P["n2"] == 2:
        a("s_barrier")
        notice(150, 82)
    a("v_cmp_eq_u32 vcc, 1, v2")
    a(f"s_mov_b32 s27, {f32(math.log2(math.e)/math.sqrt(192))}")
    a("s_mov_b32 exec_lo, 0x30003")
    a("s_mov_b32 exec_hi, 0x30003")
    for k in range(8):
        a(f"v_cndmask_b32 v{16+k}, v{16+k}, v{24+k}, vcc")
    for k in range(8):
        a(f"v_mul_f32 v{16+k}, s27, v{16+k}")
    for k in range(4):
        a(f"v_cvt_pk_bf16_f32 v{24+k}, v{16+2*k}, v{17+2*k}")
    a("v_min_u32 v27, -2, v27")
    if P["qa_lines"]:
        a("ds_write_b128 v14, v[24:27]")
        a("s_mov_b64 exec, 0xff")
        a("s_waitcnt lgkmcnt(0)")
        a("s_barrier")
        a("ds_read_b128 v[24:27], v15")
        if P["n2"] == 4:
            a("s_mov_b64 exec, -1")
            notice(150, 82)
            a("s_mov_b64 exec, 0xff")
        a("s_waitcnt lgkmcnt(0)")
        a.vmem("buffer_store_dwordx4 v[24:27], v10, s[16:19], s42 offen sc1", "pub")
    else:
        a.vmem("buffer_store_dwordx4 v[24:27], v13, s[16:19], s42 offen sc1", "pub")
    a("s_mov_b64 exec, -1")
    stamp(5)
    a("s_barrier")
    if P["n2"] == 1:
        notice(150, 82)
    stamp(6)
    a("s_cmp_lt_u32 s25, 8")
    a("s_cselect_b32 s44, 16, 4")
    a("s_cselect_b32 s45, 4, 8")
    a("s_cselect_b32 s40, 8, 48")
    a(f"s_cselect_b32 s46, {(8*12288) ^ (40*12288)}, 0")
    a("s_cselect_b32 s27, 1, 2")
    a(f"s_cselect_b32 s28, 0, {32*12288}")
    a("s_mulk_i32 s45, 12288")
    a("s_mulk_i32 s40, 12288")
    a("s_and_b32 s35, s25, 7")
    a("s_mul_i32 s35, s35, s27")
    a(f"s_mul_i32 s35, s35, {96*12288}")
    a("s_add_u32 s35, s35, s28")
    a("s_mul_i32 s27, s36, 384")
    a("s_add_u32 s35, s35, s27")
    a("v_lshrrev_b32 v4, 5, v1")
    a("v_bfe_u32 v5, v1, 3, 2")
    a("v_mad_u32_u24 v4, v4, s44, v5")
    a("v_mul_u32_u24 v4, 12288, v4")
    a("v_and_b32 v5, 2, v5")
    a("v_xor_b32 v5, v5, v1")
    a("v_and_b32 v5, 7, v5")
    a("v_lshl_add_u32 v6, v5, 4, v4")
    a("v_xad_u32 v7, v6, 64, s45")
    a("s_mov_b32 m0, s37")
    same_add("H")
    tn[0] = 0
    while tn[0] < 24:
        throttle(P["dV1"] if tn[0] < P["nV1"] else P["dV"])
        tile_dma(8, "s46", "uv", 12)
    a("v_mul_u32_u24 v4, 3072, v3")
    a("v_lshrrev_b32 v5, 2, v2")
    a("v_lshl_add_u32 v4, v5, 7, v4")
    a("v_and_b32 v5, 2, v5")
    a("v_and_b32 v12, 1, v3")
    a("v_lshl_or_b32 v5, v12, 2, v5")
    a("v_bfe_u32 v12, v1, 1, 1")
    a("v_or_b32 v5, v5, v12")
    a("v_lshl_add_u32 v4, v5, 4, v4")
    a("v_and_b32 v12, 1, v1")
    a("v_lshl_add_u32 v4, v12, 3, v4")
    a("v_add_u32 v8, s37, v4")
    a("v_xad_u32 v9, v4, 32, s37")
    a("v_xad_u32 v14, v4, 64, s37")
    a("v_xor_b32 v4, 64, v4")
    a("v_xad_u32 v15, v4, 32, s37")
    a("v_lshrrev_b32 v5, 3, v1")
    a("v_lshrrev_b32 v4, 1, v5")
    a("v_xor_b32 v4, v4, v1")
    a("v_and_b32 v4, 7, v4")
    a("v_lshlrev_b32 v4, 4, v4")
    a("v_mul_u32_u24 v5, 1536, v5")
    a("v_add_u32 v24, v4, v5")
    a("v_xor_b32 v4, 64, v4")
    a(f"v_add_u32 v4, {8*1536}, v4")
    a("v_add_u32 v25, v4, v5")
    a("s_mul_i32 s40, s36, 24576")
    a("s_lshl_b32 s27, s25, 7")
    a("s_add_u32 s40, s40, s27")
    a(f"s_add_u32 s40, s40, {XO}")
    a("s_lshl_b32 s41, s3, 11")
    a(f"s_add_u32 s41, s41, {R2+2048}")
    a("v_lshrrev_b32 v4, 1, v2")
    a("v_xor_b32 v4, v4, v3")
    a("v_lshlrev_b32 v4, 4, v4")
    a("v_lshl_add_u32 v5, v2, 7, s41")
    a("v_add_u32 v26, v4, v5")
    a("v_xad_u32 v27, v4, 64, v5")
    a("v_lshrrev_b32 v36, 2, v1")
    a("v_lshlrev_b32 v36, 8, v36")
    a("s_lshl_b32 s27, s25, 1")
    a("s_sub_u32 s27, s27, 16")
    a("s_cmp_lt_u32 s25, 8")
    a("s_cselect_b32 s27, s25, s27")
    a("s_cselect_b32 s89, 0, 128")
    a("s_lshl_b32 s42, s27, 12")
    a("s_lshl_b32 s28, s36, 3")
    a("s_add_u32 s42, s42, s28")
    a(f"s_add_u32 s42, s42, {XML}")
    a("s_lshl_b32 s28, s24, 3")
    a("s_add_u32 s27, s27, s28")
    a("s_lshl_b32 s27, s27, 7")
    a(f"s_add_u32 s27, s27, {XN3}")
    cnt_base(27)
    a("s_mul_i32 s43, s36, 12")
    a("s_add_u32 s43, s43, s25")
    a("s_lshl_b32 s43, s43, 10")
    a(f"s_add_u32 s43, s43, {XC}")
    a("v_mov_b32 v31, s26")
    tr_done = [0]

    def uv_ready():
        while tr_done[0] < 2 and ("uv", tr_done[0]) not in a.vm:
            st = tr_done[0]
            for T in range(12):
                for b in range(2):
                    q = (T * 2 + st) * 4 + 2 * b
                    a(f"ds_read_b64_tr_b16 a[{q}:{q+1}], v{(8, 9, 14, 15)[T&3]} offset:{st*12288+(T>>2)*1024+b*512}")
            tr_done[0] += 1

    uv_ready()
    if P["h1_early"]:
        same_load()
        flag_load(1)
    while won < 15 - P["wo_late"]:
        throttle(P["dV"])
        wo_load(won)
        won += 1
    if not P["h1_early"]:
        same_load()
        flag_load(1)
    while tr_done[0] < 2:
        if ("uv", tr_done[0]) in a.vm:
            a.wait_vm(("uv", tr_done[0]))
        uv_ready()
    stamp(7)
    OA = 48
    AC = 64
    D = " row_mask:0xf bank_mask:0xf"

    def allred(op, v):
        a(f"{op} v{v}, v{v}, v{v} row_ror:8{D}")
        for sw in ("32", "16"):
            a(f"v_mov_b32 v5, v{v}")
            a(f"v_permlane{sw}_swap_b32 v{v}, v5")
            a(f"{op} v{v}, v{v}, v5")

    def weights():
        a(f"v_max_f32 v4, v40, v40 row_ror:4{D}")
        allred("v_max_f32", 4)
        a("v_sub_f32 v16, v40, v4")
        a("v_exp_f32 v16, v16")

    def norm():
        a("v_mul_f32 v17, v16, v41")
        a(f"v_add_f32 v17, v17, v17 row_ror:4{D}")
        allred("v_add_f32", 17)
        a("v_rcp_f32 v17, v17")

    a("s_waitcnt lgkmcnt(0)")
    flag_check("H1", 1)
    a("s_cmp_lg_u32 s3, 0")
    a("s_cbranch_scc1 L_H_n3_out")
    if P["rep3"] > 1:
        poll_multi("H_n3", P["rep3"], "s89", 15, P["pipe3"])
    else:
        poll_cnt("H_n3", ["0", "s89"], 15, 0)
    a("s_barrier")
    stamp(10)
    a("s_mov_b32 s28, 0")

    def x3_loads():
        a("s_mov_b32 m0, s41")
        a("s_add_u32 s28, s28, 1")
        a("buffer_load_dwordx4 v24, s[16:19], s40 offen sc1 lds")
        a("s_add_u32 m0, m0, 1024")
        a("s_add_u32 s29, s29, 0x1000000")
        a("buffer_load_dwordx4 v25, s[16:19], s40 offen sc1 lds")
        a("buffer_load_dwordx2 v[40:41], v36, s[16:19], s42 offen sc1")

    x3_loads()
    nl8 = P["wo_late"]
    if nl8:
        a("s_barrier")
    while won < 15:
        wo_load(won)
        won += 1
    a(f"s_waitcnt vmcnt({1+nl8})")
    a("L_H_x3:")
    for st in range(2):
        a(f"ds_read_b128 v[{OA+4*st}:{OA+4*st+3}], v{26+st}")
    a(f"s_waitcnt vmcnt({nl8})")
    weights()
    a("s_waitcnt lgkmcnt(0)")
    a.vm = []
    slow.append("\n".join(["L_H_x3_retry:", f"s_cmp_ge_u32 s28, {SPIN}", "s_cbranch_scc1 L_H_x3_ok"] + cap(x3_loads) +
                           ["s_waitcnt vmcnt(0)", "s_branch L_H_x3"]))
    stamp(8)
    fill = [f"v_max3_u32 v39, v41, v{OA+1}, v{OA+3}", f"v_max3_u32 v39, v39, v{OA+5}, v{OA+7}",
            "v_cmp_eq_u32 vcc, -1, v39", "s_cbranch_vccnz L_H_x3_retry\nL_H_x3_ok:"]
    nl = cap(norm)

    def post(T):
        o = [f"v_mul_f32 v{AC+4*T}, v16, v{AC+4*T} row_newbcast:0{D}"]
        for r in range(1, 4):
            o.append(f"v_fmac_f32 v{112+T}, v16, v{AC+4*T+r} row_newbcast:{4*r}{D}")
        o[0] = f"v_mul_f32 v{112+T}, v16, v{AC+4*T} row_newbcast:0{D}"
        return o

    def fold(Q):
        b = 112 + 4 * Q
        return [f"v_permlane32_swap_b32 v{b}, v{b+2}", f"v_permlane32_swap_b32 v{b+1}, v{b+3}",
                f"v_add_f32 v{b}, v{b}, v{b+2}", f"v_add_f32 v{b+1}, v{b+1}, v{b+3}",
                f"v_permlane16_swap_b32 v{b}, v{b+1}", f"v_add_f32 v{b}, v{b}, v{b+1}", f"v_mul_f32 v{28+Q}, v{b}, v17"]

    def mix(*lists):
        o = []
        lists = [list(l) for l in lists]
        while any(lists):
            for l in lists:
                if l:
                    o.append(l.pop(0))
        return o

    for T in range(12):
        if T in (1, 2):
            fill += nl[:4] if T == 1 else []
        if T >= 3 and T & 1:
            fill += mix(post(T - 3), post(T - 2))
        for st in range(2):
            q = (T * 2 + st) * 4
            c = "0" if st == 0 else f"v[{AC+4*T}:{AC+4*T+3}]"
            a(f"v_mfma_f32_16x16x32_bf16 v[{AC+4*T}:{AC+4*T+3}], v[{OA+4*st}:{OA+4*st+3}], a[{q}:{q+3}], {c}")
            for k in range(2):
                if fill:
                    a(fill.pop(0))
    for l in mix(fill, nl[4:]) + mix(fold(0)[:6], fold(1)[:6], mix(post(10), post(11))) + mix(fold(2), fold(0)[6:] + fold(1)[6:]):
        a(l)
    a(f"buffer_store_dwordx4 v[28:31], v10, s[16:19], s43 offen{LOC}")
    stamp(9)
    tail()
    dump_stamps()
    a("L_exit:")
    a("s_endpgm")

    a(".p2align 8")
    a("L_A:")
    role[0] = "A"
    a.vm = []
    common_ids()
    srd(4, 1280)
    srd(8, 0 if P.get("no_wq") else 7864320)
    a("v_lshrrev_b32 v2, 3, v1")
    a("v_and_b32 v5, 7, v1")
    a("v_mul_u32_u24 v6, 12288, v2")
    a("v_lshl_add_u32 v6, v5, 4, v6")
    if W6:
        a("s_and_b32 s46, s25, 7")
        a("s_and_b32 s27, s3, 1")
        a("s_lshl1_add_u32 s46, s46, s27")
        a("s_lshr_b32 s27, s25, 3")
        a("s_lshl1_add_u32 s88, s24, s27")
        a("s_lshr_b32 s27, s3, 1")
        a("s_lshl1_add_u32 s27, s88, s27")
    else:
        a("s_and_b32 s46, s25, 3")
        a("s_lshl2_add_u32 s46, s46, s3")
        a("s_lshr_b32 s27, s25, 2")
        a("s_lshl2_add_u32 s27, s24, s27")
    a(f"s_mul_i32 s44, s46, {8*gA*12288}")
    a(f"s_mul_i32 s35, s46, {16*gA}")
    a("v_lshlrev_b32 v7, 1, v2")
    a("s_mul_i32 s27, s27, 384")
    a("s_add_u32 s44, s44, s27")
    a(f"s_mov_b32 s45, {8*12288}")
    a("s_waitcnt lgkmcnt(0)")
    dQ = P["dQ"]
    wq = 0
    while wq < min(3 * gA, dQ + 1):
        if wq == P["x_at"]:
            x_stats_loads(8)
            x_rows(13, 35, gA)
        rows_load(wq, gA, 0, 6, 8, "wq")
        wq += 1
    stamp(1)
    load_epoch()
    a("s_load_dwordx2 s[12:13], s[0:1], 8")
    a("s_load_dwordx2 s[84:85], s[0:1], 88")
    a("s_lshl_b32 s89, s24, 4")
    a("s_add_u32 s89, s89, s25")
    if W6:
        a("s_lshl_b32 s88, s88, 4")
        a("s_and_b32 s27, s25, 7")
        a("s_add_u32 s88, s88, s27")
        a("s_lshl_b32 s88, s88, 10")
    else:
        a("s_lshl_b32 s88, s89, 10")
    a(f"s_add_u32 s88, s88, {XQ}")
    sel_masks(152, 3)
    a("v_lshlrev_b32 v149, 4, v1")
    only_if(148, 3, 64, 149)
    if W6:
        a("v_add_u32 v150, 8192, v149")
        a("v_add_u32 v149, 8192, v148")
    a("v_lshrrev_b32 v3, 1, v2")
    a("v_xor_b32 v3, v3, v5")
    a("v_mul_u32_u24 v4, 1536, v2")
    a("v_lshl_add_u32 v62, v3, 4, v4")
    a("v_xor_b32 v63, 64, v62")
    a(f"v_add_u32 v63, {8*1536}, v63")
    a(f"s_mul_i32 s35, s89, {64*1536}")
    a("s_mul_i32 s28, s3, 384")
    a("s_add_u32 s35, s35, s28")
    for p in range(4):
        a(f"s_xor_b32 s28, s3, {p}")
        a(f"s_mul_i32 s28, s28, {16*1536}")
        a(f"s_add_u32 s{96+p}, s35, s28")
    a(f"s_mul_i32 s37, s3, {R1}")
    a("s_mov_b32 m0, s37")
    a("s_movk_i32 s100, 896")
    a("s_movk_i32 s101, 1280")
    a.wait_vm("x", " lgkmcnt(0)")
    make_tag()
    srd(12, 0 if P.get("no_ck") else 12582912)
    fill = cap(ln_stats, 8, 24) + cap(sel_ops, 13, 24, gA) + cap(red_addrs)
    while wq < 3 * gA and len(a.vm) <= dQ:
        rows_load(wq, gA, 0, 6, 8, "wq")
        wq += 1
    rem = 3 * gA - wq
    per = (len(fill) + rem) // (rem + 1) if rem else len(fill)
    while wq < 3 * gA:
        pop_n(fill, per)
        a.wait_vm_n(dQ)
        rows_load(wq, gA, 0, 6, 8, "wq")
        wq += 1
    for l in fill:
        a(l)
    a("s_load_dwordx2 s[8:9], s[0:1], 80")
    ck = [0]

    def ckv_dma():
        n = ck[0]
        p, par, t = n // 6, (n // 3) & 1, n % 3
        a.vmem(f"buffer_load_dwordx4 v{62+par}, s[12:15], s{96+p} offen offset:{t*128} {P['ckf']} lds", ("ck", n // 12))
        a(f"s_add_u32 m0, m0, s{101 if t == 2 else 100}")
        ck[0] += 1

    dck = lambda: P["dC1"] if ck[0] < P["nC1"] else P["dC"]
    rows_finish("A_q", gA, 24, 0, "wq", ckv_dma, P["a_first"], dQ, 232, 88, LOC, lambda: stamp(2), allw=P['prog'] or W6, two=W6)
    if P["q_bar"]:
        a("s_barrier")
    stamp(3)
    checked = False
    for k in range(dck() + 1):
        throttle(dck())
        ckv_dma()
    a("s_lshl_b32 s27, s25, 2")
    a("s_add_u32 s27, s27, s3")
    a("s_lshl_b32 s42, s27, 10")
    a(f"s_mul_i32 s28, s24, {PM}")
    a("s_add_u32 s42, s42, s28")
    a(f"s_add_u32 s42, s42, {XP}")
    a("s_lshl_b32 s43, s25, 9")
    a("s_add_u32 s43, s43, s28")
    a("s_lshl_b32 s27, s3, 2")
    a("s_add_u32 s43, s43, s27")
    a(f"s_add_u32 s43, s43, {XM}")
    a("v_lshrrev_b32 v3, 5, v1")
    a("v_lshl_or_b32 v32, v3, 29, v10")

    def a_setup():
        a("v_and_b32 v2, 31, v1")
        a("v_lshrrev_b32 v3, 5, v1")
        a("v_lshrrev_b32 v4, 3, v2")
        a("v_mul_u32_u24 v4, 3072, v4")
        a("v_lshl_add_u32 v4, v5, 7, v4")
        a("v_bfe_u32 v11, v2, 1, 3")
        a("v_xor_b32 v11, v11, v3")
        a("s_and_b32 s28, s25, 3" if P["qrot"] else "s_mov_b32 s28, 0")
        a("s_lshl_b32 s27, s28, 1")
        a("v_xor_b32 v11, s27, v11")
        a("v_lshl_add_u32 v4, v11, 4, v4")
        a("v_add_u32 v20, s37, v4")
        a("v_xad_u32 v21, v4, 32, s37")
        a("v_xad_u32 v22, v4, 64, s37")
        a("v_xor_b32 v4, 64, v4")
        a("v_xad_u32 v23, v4, 32, s37")
        a("v_lshrrev_b32 v4, 2, v2")
        a("v_lshlrev_b32 v4, 7, v4")
        a("v_lshl_add_u32 v4, v3, 6, v4")
        a("v_and_b32 v11, 3, v1")
        a("v_lshl_add_u32 v24, v11, 4, v4")
        for k in range(4):
            a(f"s_xor_b32 s27, s28, {k}")
            a(f"v_lshl_add_u32 v{224+k}, s27, 10, v24")
        a("s_mul_i32 s38, s3, 12288")
        a(f"s_add_u32 s38, s38, {XQA}")
        a("s_add_u32 s39, s38, 4096")
        a("s_add_u32 s40, s38, 8192")
        a("s_mov_b32 s27, 0x15555556")
        for m in range(3):
            a(f"v_add_u32 v4, {64*m}, v1")
            a("v_mul_hi_u32 v11, v4, s27")
            a(f"v_mul_u32_u24 v11, {1536-192}, v11")
            a(f"v_lshl_add_u32 v{25+m}, v4, 4, v11")
        a("s_lshr_b32 s27, s25, 3")
        a("s_lshl_b32 s35, s24, 1")
        a("s_add_u32 s35, s35, s27")
        a("s_and_b32 s36, s25, 7")
        a("s_lshl_b32 s27, s35, 2")
        a("s_add_u32 s27, s27, s3")
        a(f"s_mul_i32 s41, s27, {128*1536}")
        a("s_mul_i32 s27, s36, 192")
        a("s_add_u32 s41, s41, s27")
        a(f"s_movk_i32 s46, 1024")
        a(f"s_movk_i32 s47, {16*1536}")
        for p in range(1, 4):
            a(f"s_xor_b32 s27, s3, {p}")
            a("s_mul_i32 s27, s27, 6144")
            a(f"s_add_u32 s27, s27, {R2+(p-1)*2048}")
            a(f"v_add_u32 v{27+p}, s27, v10")
        a("s_mul_i32 s27, s3, 6144")
        a(f"s_add_u32 s27, s27, {R2}")
        a("v_add_u32 v31, s27, v10")
        a("v_and_b32 v18, 15, v1")
        a("v_lshrrev_b32 v19, 4, v1")
        a("v_lshlrev_b32 v4, 13, v19")
        a("v_lshl_add_u32 v33, v18, 4, v4")
        a("v_lshlrev_b32 v4, 10, v19")
        a("v_lshl_add_u32 v34, v18, 4, v4")
        a("s_lshr_b32 s27, s3, 1")
        a("s_and_b32 s28, s3, 1")
        a("s_lshl_b32 s44, s35, 15")
        a("s_lshl_b32 s20, s24, 13")
        a("s_add_u32 s44, s44, s20")
        a("s_lshl_b32 s20, s27, 8")
        a("s_add_u32 s44, s44, s20")
        a(f"s_add_u32 s44, s44, {XP}")
        a("s_add_u32 s45, s44, 4096")
        a("s_lshl_b32 s20, s35, 12")
        a("s_lshl_b32 s21, s24, 16")
        a("s_add_u32 s20, s20, s21")
        a("s_lshl_b32 s21, s27, 8")
        a("s_add_u32 s20, s20, s21")
        a(f"s_add_u32 s20, s20, {XM}")
        a(f"v_mul_u32_u24 v4, {R1}, v19")
        a("v_lshrrev_b32 v11, 2, v18")
        a("v_mul_u32_u24 v11, 192, v11")
        a("v_add_u32 v4, v4, v11")
        a("v_and_b32 v11, 3, v1")
        a("v_lshl_add_u32 v4, v11, 3, v4")
        a("s_mul_i32 s21, s28, 96")
        a("v_add_u32 v35, s21, v4")
        a("v_lshl_add_u32 v36, v18, 2, v19")
        a("v_lshlrev_b32 v36, 2, v36")
        a("v_lshrrev_b32 v4, 2, v1")
        a("v_mul_u32_u24 v4, 24576, v4")
        a("v_lshl_add_u32 v37, v11, 4, v4")
        a("v_lshl_add_u32 v38, v11, 3, v4")
        a(f"s_mul_i32 s21, s27, {16*24576}")
        a("s_mul_i32 s22, s35, 1536")
        a("s_add_u32 s21, s21, s22")
        a(f"s_add_u32 s21, s21, {XO}")
        a("s_lshl_b32 s23, s36, 1")
        a("s_add_u32 s23, s23, s28")
        a("s_lshl_b32 s22, s23, 5")
        a("s_add_u32 s22, s22, s21")
        a("s_add_u32 s22, s22, 1024")
        a("s_lshl_b32 s28, s23, 6")
        a("s_add_u32 s21, s21, s28")
        a("s_lshl_b32 s35, s35, 8")
        a("s_lshl_b32 s27, s27, 7")
        a("s_add_u32 s35, s35, s27")
        a("s_lshl_b32 s27, s36, 12")
        a("s_add_u32 s35, s35, s27")
        a(f"s_add_u32 s35, s35, {XML}")
        for k in range(4):
            a(f"v_mov_b32 v{40+k}, 0x3f803f80")
        a("s_lshl_b32 s81, s36, 7")
        a(f"s_add_u32 s81, s81, {XN3}")
        a("v_mov_b32 v161, 1")
        a("v_lshlrev_b32 v4, 10, v1")
        only_if(162, 3, 8 * P["rep3"], 4)
        a("s_and_b32 s23, s3, 1")
        a("v_lshlrev_b32 v4, 3, v1")
        only_if(39, 23, 16, 4)
        a("s_lshr_b32 s27, s89, 2")
        a("s_lshl_b32 s27, s27, 9")
        a(f"s_add_u32 s27, s27, {XN2}")
        cnt_base(27)
        srd(8, 1280)
        srd(84, 1280)
        if P["n_pf"]:
            n = P["n_pf"]
            a("s_lshl2_add_u32 s27, s25, s3")
            a(f"s_mulk_i32 s27, {30*n}")
            a(f"v_min_u32 v4, {30*n-1}, v1")
            a("v_add_u32 v4, s27, v4")
            a(f"s_mov_b32 s27, {(1 << 32) // (640*n) + 1}")
            a("v_mul_hi_u32 v11, v4, s27")
            a(f"v_mul_u32_u24 v11, {1920-640*n}, v11")
            a("v_add_lshl_u32 v208, v4, v11, 7")

    fill = cap(a_setup)
    rem = 24 - ck[0]
    per = (len(fill) + rem - 1) // rem
    while ck[0] < 24:
        pop_n(fill, per)
        throttle(dck())
        ckv_dma()
        if ck[0] == P["a_flag_at"]:
            flag_load(P["a_lvl"])
        if ck[0] == P["a_flag_at"] + 4:
            a("s_waitcnt lgkmcnt(0)")
            flag_check("A", P["a_lvl"])
            same_add("A")
            checked = True
        if P["n2"] and ck[0] == P["n2_at"]:
            assert checked
            pop_n(fill, 999)
            a("s_cmp_lg_u32 s3, 0")
            a("s_cbranch_scc1 L_A_nolook")
            for k in range(4):
                a(f"s_load_dword s{(92, 94, 95, 83)[k]}, s[90:91], {128*k} glc")
            a("L_A_nolook:")
    assert checked
    assert not fill
    stamp(4)
    XQRE = "buffer_store_dwordx4 v[232:235], v10, s[16:19], s88 offen sc1"
    if W6:
        XQRE += "\nbuffer_store_dwordx4 v[228:231], v150, s[16:19], s88 offen sc1"
    CA = 160
    QA = 64
    SA = 112

    def ck_read(kt):
        for kk in range(12):
            q = CA + (kt * 12 + kk) * 4
            a(f"ds_read_b128 a[{q}:{q+3}], v{20+(kk&3)} offset:{kt*12288+(kk>>2)*1024}")

    def qa_load(kk):
        return f"buffer_load_dwordx4 v[{QA+4*kk}:{QA+4*kk+3}], v{224+(kk&3)}, s[16:19], s{38+(kk>>2)} offen sc1"

    def s_mfma(kk):
        for kt in range(2):
            q = CA + (kt * 12 + kk) * 4
            c = f"v[{SA+16*kt}:{SA+16*kt+15}]" if kk or P["prog"] else "0"
            a(f"v_mfma_f32_32x32x16_bf16 v[{SA+16*kt}:{SA+16*kt+15}], a[{q}:{q+3}], v[{QA+4*kk}:{QA+4*kk+3}], {c}")

    l2 = [0]

    def l2_dma():
        n = l2[0]
        if not P.get("no_l2") or (P.get("no_l2") == 2 and n % 2):
            a.vmem(f"buffer_load_dwordx4 v{25+n%3}, s[12:15], s41 offen {P['l2f']} lds", ("l2", n // 12))
        a("s_add_u32 m0, m0, s46")
        if n % 3 == 2:
            a("s_add_u32 s41, s41, s47")
        l2[0] += 1

    trn = [0]

    def tr_read():
        n = trn[0]
        s, T, b = n // 6, (n // 2) % 3, n & 1
        q = (s * 3 + T) * 4 + 2 * b
        a(f"ds_read_b64_tr_b16 a[{q}:{q+1}], v35 offset:{(16*(s>>1)+4*(s&1)+8*b)*192+32*T}")
        trn[0] += 1

    a("s_waitcnt lgkmcnt(0)")
    if ("ck", 0) in a.vm:
        a.wait_vm(("ck", 0))
    ck_read(0)
    a("s_mov_b32 m0, s37")
    if P["n_pf"]:
        a("s_load_dwordx2 s[96:97], s[0:1], 40")
        srd(96, 7864320)
        a("s_mul_i32 s100, s24, 983040")
        a(f"s_add_u32 s100, s100, {(3-P['n_pf'])*81920}")
    if P["prog"]:
        for k in range(32):
            a(f"v_mov_b32 v{SA+k}, 0")
        a("s_mov_b32 s82, 0")
    throttle(P["a_x2_wait"])
    stamp(5)
    tgt = P["n2_tgt"] - 1
    if P["n2"]:
        a("s_cmp_lg_u32 s3, 0")
        a("s_cbranch_scc1 L_A_n2_out")
        if P["n2_at"]:
            a("s_min_i32 s92, s92, s94")
            a("s_min_i32 s95, s95, s83")
            a("s_min_i32 s92, s92, s95")
            a(f"s_cmp_ge_i32 s92, {tgt}")
            a("s_cbranch_scc1 L_A_n2_out")
        poll_cnt("A_n2", ["0", "128", "256", "384"], tgt, 0, (P["q_looks"], XQRE) if P["local"] else None, pipe=P["pipe2"])
    a("s_barrier")
    tr_ok = 0
    stamp(6)
    stamp(1, 2)
    for kk in range(12):
        a.vmem(qa_load(kk), ("qa", kk))
        if P["rr"] and (kk + 1) % P["rr"] == 0 and kk < 11:
            a("s_barrier")
    stamp(2, 2)
    if ("ck", 1) in a.vm:
        a.wait_vm(("ck", 1))
    ck_read(1)

    if P["prog"]:
        def q_chk(g):
            b = QA + 16 * g
            a(f"v_max3_u32 v11, v{b+3}, v{b+7}, v{b+11}")
            a(f"v_max_u32 v11, v11, v{b+15}")
            a("v_cmp_eq_u32 vcc, -1, v11")

        for g in range(3):
            a.wait_vm(("qa", 4 * g + 3), f" lgkmcnt({8-4*g})")
            if g == 0:
                stamp(3, 2)
            if g == 2 and not P["a_lvl"]:
                flag_load(1)
            q_chk(g)
            a(f"s_cbranch_vccnz L_A_skip{g}")
            alt = [f"L_A_skip{g}:", f"s_bitset1_b32 s82, {g}"]
            for kk in range(4 * g, 4 * g + 4):
                s_mfma(kk)
                if l2[0] < 12 and (kk + 1) * P["l2_in_s"] // 12 > kk * P["l2_in_s"] // 12:
                    d = cap(l2_dma)
                    alt += d
                    for l in d:
                        a(l)
            a(f"L_A_after{g}:")
            slow.append("\n".join(alt + [f"s_branch L_A_after{g}"]))
        for k in range(P["l2_after1"]):
            if l2[0] < 24:
                l2_dma()
        a("s_cmp_lg_u32 s82, 0")
        a("s_cbranch_scc1 L_A_x2_slow")
        a("L_A_x2_ok:")
        main = a.L
        a.L = []
        a("L_A_x2_slow:")
        a("s_mov_b32 s28, 0")
        a("L_A_x2_loop:")
        a("s_add_u32 s29, s29, 1")
        if P["local"]:
            a(f"s_cmp_lg_u32 s28, {P['q_looks']}")
            a("s_cbranch_scc1 L_A_x2_nore")
            a(XQRE)
            a("L_A_x2_nore:")
        for g in range(3):
            a(f"s_bitcmp0_b32 s82, {g}")
            a(f"s_cbranch_scc1 L_A_x2_l{g}")
            for kk in range(4 * g, 4 * g + 4):
                a(qa_load(kk))
            a(f"L_A_x2_l{g}:")
        a("s_add_u32 s28, s28, 1")
        a("s_waitcnt vmcnt(0)")
        for g in range(3):
            a(f"s_bitcmp0_b32 s82, {g}")
            a(f"s_cbranch_scc1 L_A_x2_m{g}")
            q_chk(g)
            a(f"s_cbranch_vccnz L_A_x2_m{g}")
            for kk in range(4 * g, 4 * g + 4):
                s_mfma(kk)
            a(f"s_bitset0_b32 s82, {g}")
            a(f"L_A_x2_m{g}:")
        a("s_cmp_eq_u32 s82, 0")
        a("s_cbranch_scc1 L_A_x2_ok")
        a(f"s_cmp_lt_u32 s28, {SPIN}")
        a("s_cbranch_scc1 L_A_x2_loop")
        a("s_branch L_A_x2_ok")
        slow.append("\n".join(a.L))
        a.L = main
    else:
        assert P["n2"] and P["n2_tgt"] == 24 and P["a_lvl"]
        for kk in range(12):
            a.wait_vm(("qa", kk), f" lgkmcnt({11-kk})")
            if kk == 0:
                stamp(3, 2)
            s_mfma(kk)
            if kk == 1:
                a(f"v_max_u32 v11, v{QA+3}, v{QA+7}")
            elif kk & 1:
                a(f"v_max3_u32 v11, v11, v{QA+4*kk-1}, v{QA+4*kk+3}")
            if l2[0] < 12 and (kk + 1) * P["l2_in_s"] // 12 > kk * P["l2_in_s"] // 12:
                l2_dma()
        a("v_cmp_eq_u32 vcc, -1, v11")
        a("s_cbranch_vccnz L_A_x2_slow")
        a("L_A_x2_ok:")
        main = a.L
        a.L = []
        a("L_A_x2_slow:")
        a("s_mov_b32 s28, 0")
        a("L_A_x2_loop:")
        a("s_add_u32 s29, s29, 1")
        for kk in range(12):
            a(qa_load(kk))
        a("v_mov_b32 v11, 0")
        a("s_add_u32 s28, s28, 1")
        a("s_waitcnt vmcnt(0)")
        for kk in range(1, 12, 2):
            a(f"v_max3_u32 v11, v11, v{QA+4*kk-1}, v{QA+4*kk+3}")
        a("v_cmp_eq_u32 vcc, -1, v11")
        a("s_cbranch_vccz L_A_x2_redo")
        a(f"s_cmp_lt_u32 s28, {SPIN}")
        a("s_cbranch_scc1 L_A_x2_loop")
        a("L_A_x2_redo:")
        for kk in range(12):
            s_mfma(kk)
        a("s_branch L_A_x2_ok")
        slow.append("\n".join(a.L))
        a.L = main
    stamp(7)
    stamp(4, 2)
    nw_ = 0
    for p in range(1, 4):
        for k in range(2):
            r = SA + 8 * p + 4 * k
            if not P.get("fake_red") or p == 3:
                a(f"ds_write_b128 v{27+p}, v[{r}:{r+3}] offset:{k*1024}")
        if nw_ < P["l2b_w"] and l2[0] < 24:
            l2_dma()
            nw_ += 1
    stamp(5, 2)
    if l2[0] == 24 and P["l2a_wait"] == 2:
        a.wait_vm(("l2", 1), " lgkmcnt(0)")
    elif l2[0] >= 12 and ("l2", 0) in a.vm and P["l2a_wait"]:
        a.wait_vm(("l2", 0), " lgkmcnt(0)")
    else:
        a("s_waitcnt lgkmcnt(0)")
    if l2[0] >= 12 and ("l2", 0) not in a.vm:
        tr_ok = 48
    if l2[0] == 24 and ("l2", 1) not in a.vm:
        tr_ok = P["tr_pre"]
    if not P["a_lvl"]:
        flag_check("A1", 1)
    stamp(6, 2)
    a("s_barrier")
    stamp(7, 2)
    for p in range(3):
        for k in range(2):
            r = QA + 8 * p + 4 * k
            if not P.get("fake_red") or p == 2:
                a(f"ds_read_b128 v[{r}:{r+3}], v31 offset:{p*2048+k*1024}")
    for k in range(P["l2b_r"]):
        if l2[0] < 24:
            l2_dma()

    def softmax():
        for p in range(2 if P.get("fake_red") else 0, 3):
            a(f"s_waitcnt lgkmcnt({4-2*p})")
            for k in range(0, 8, 2):
                a(f"v_pk_add_f32 v[{SA+k}:{SA+k+1}], v[{SA+k}:{SA+k+1}], v[{QA+8*p+k}:{QA+8*p+k+1}]")
        a(f"v_max3_f32 v4, v{SA}, v{SA+1}, v{SA+2}")
        a(f"v_max3_f32 v11, v{SA+3}, v{SA+4}, v{SA+5}")
        a(f"v_max3_f32 v4, v4, v{SA+6}, v{SA+7}")
        a("v_max_f32 v4, v4, v11")
        a("v_mov_b32 v11, v4")
        a("v_permlane32_swap_b32 v4, v11")
        a("v_max_f32 v4, v4, v11")
        a("v_ceil_f32 v4, v4")
        for e in range(8):
            a(f"v_sub_f32 v{SA+e}, v{SA+e}, v4")
        for e in range(8):
            a(f"v_exp_f32 v{SA+e}, v{SA+e}")
        a("v_min_u32 v4, -2, v4")
        for m in range(4):
            a(f"v_cvt_pk_bf16_f32 v{12+m}, v{SA+2*m}, v{SA+2*m+1}")
        a("v_and_b32 v15, 0x7fffffff, v15")

    sm = cap(softmax)
    nmid = P["l2b_mid"]
    step = len(sm) // (nmid + 1)
    for i, l in enumerate(sm):
        a(l)
        if (i + 1) % step == 0 and (i + 1) // step <= nmid and l2[0] < 24:
            l2_dma()
    def p_pub(fl):
        a.vmem(f"buffer_store_dwordx4 v[12:15], v10, s[16:19], s42 offen{fl}", "pub")
        a.vmem(f"buffer_store_dword v4, v32, s[16:19], s43 offen{fl}", "pub")

    stamp(8, 2)
    p_pub(LOC)
    if not P["local"]:
        a.wait_all()
    stamp(8)
    EARLY = P["m_at"] < 24 - l2[0]
    nd = 0
    ntr = (tr_ok - trn[0] + 24 - l2[0] - 1) // (24 - l2[0]) if EARLY else 4
    while l2[0] < 24:
        if nd == P["m_at"]:
            for p in range(2):
                a.vmem(f"buffer_load_dwordx4 v[{44+4*p}:{47+4*p}], v34, s[16:19], s20 offen offset:{p*512} sc1", "m")
        l2_dma()
        nd += 1
        for k in range(ntr):
            if trn[0] < tr_ok:
                tr_read()
    stamp(9)
    stamp(9, 2)
    MR = 44
    PR = 64
    PT = 128
    OC = 136

    def m_load(p):
        return f"buffer_load_dwordx4 v[{MR+4*p}:{MR+4*p+3}], v34, s[16:19], s20 offen offset:{p*512} sc1"

    def p_load(s):
        return f"buffer_load_dwordx4 v[{PR+4*s}:{PR+4*s+3}], v33, s[16:19], s{44+(s>>3)} offen offset:{(s&7)*512} sc1"

    def m_check():
        a(f"v_max3_u32 v11, v{MR}, v{MR+1}, v{MR+2}")
        a(f"v_max3_u32 v11, v11, v{MR+3}, v{MR+4}")
        a(f"v_max3_u32 v11, v11, v{MR+5}, v{MR+6}")
        a(f"v_max_u32 v11, v11, v{MR+7}")

    def m_max():
        a(f"v_max3_f32 v60, v{MR}, v{MR+1}, v{MR+2}")
        a(f"v_max3_f32 v61, v{MR+3}, v{MR+4}, v{MR+5}")
        a(f"v_max3_f32 v60, v60, v{MR+6}, v{MR+7}")
        a("v_max_f32 v60, v60, v61")
        for sw in ("32", "16"):
            a("v_mov_b32 v61, v60")
            a(f"v_permlane{sw}_swap_b32 v60, v61")
            a("v_max_f32 v60, v60, v61")

    def delta(p):
        a(f"v_sub_f32 v{MR+8+p}, v60, v{MR+p}")
        a(f"v_cvt_pk_u8_f32 v{MR+8+p}, v{MR+8+p}, 0, 0")
        a(f"v_mul_u32_u24 v{MR+8+p}, 0x800080, v{MR+8+p}")

    def pv_adj(s):
        for d in (3, 0, 1, 2):
            a(f"v_pk_sub_u16 v{PR+4*s+d}, v{PR+4*s+d}, v{MR+8+(s>>1)} clamp")

    def pv_mfma(s, T):
        t = PR + 4 * s
        c = "0" if s == 0 else f"v[{OC+4*T}:{OC+4*T+3}]"
        q = (s * 3 + T) * 4
        A = f"a[{q}:{q+3}]" if T < 3 else "v[40:43]"
        a(f"v_mfma_f32_16x16x32_bf16 v[{OC+4*T}:{OC+4*T+3}], {A}, v[{t}:{t+3}], {c}")

    if not EARLY:
        for p in range(2):
            a.vmem(m_load(p), "m")
    while trn[0] < tr_ok:
        tr_read()
    stamp(10, 2)
    a("s_mov_b32 s28, 0")
    if EARLY:
        a.wait_vm("m")
    a("s_branch L_A_m_chk1" if EARLY else "s_branch L_A_m_chk")
    a("L_A_m_loop:")
    a("s_add_u32 s29, s29, 0x10")
    for p in range(2):
        a(m_load(p))
    a("s_add_u32 s28, s28, 1")
    a(f"s_cmp_ge_u32 s28, {P['a_looks']}")
    a("s_cbranch_scc1 L_A_m_long")
    a("L_A_m_chk:")
    a.wait_all()
    a("L_A_m_chk1:")
    m_check()
    a("v_cmp_eq_u32 vcc, -1, v11")
    a("s_cbranch_vccnz L_A_m_loop")
    a("L_A_m_ok:")
    stamp(11, 2)
    slow.append("\n".join(["L_A_m_long:", f"s_cmp_lg_u32 s28, {P['a_looks']}", "s_cbranch_scc1 L_A_m_nore"] + cap(p_pub, " sc1") +
                ["L_A_m_nore:", f"s_cmp_lt_u32 s28, {SPIN}", "s_cbranch_scc1 L_A_m_chk", "s_waitcnt vmcnt(0)", "s_branch L_A_m_ok"]))
    a.vm = []
    pl = [0]

    def p_issue():
        if pl[0] < 16:
            a.vmem(p_load(pl[0]), ("p", pl[0]))
            pl[0] += 1
            return True
        return False

    p_issue()
    if not EARLY:
        a("s_barrier")
    stamp(10)
    stamp(12, 2)
    pre = cap(m_max)
    for k in range(3):
        for p in range(8):
            pre.append(cap(delta, p)[k])
    tr_in = P["tr_in"] if tr_ok else 6
    tr_before = trn[0]
    pre = mix(pre, [cap(tr_read)[0] for k in range(min(96 - trn[0], P["tr_pro"] if tr_ok else 18))])
    per = (len(pre) + P["p_ahead"] - 2) // (P["p_ahead"] - 1)
    while pl[0] < P["p_ahead"]:
        p_issue()
        for k in range(per):
            if pre:
                a(pre.pop(0))
    assert not pre
    a.wait_vm(("p", 0), f" lgkmcnt({min(15, trn[0] - max(tr_before, 6))})")
    if EARLY:
        assert tr_ok == 48 and trn[0] == 48
        a("s_barrier")
    stamp(13, 2)
    tr0 = max(tr_before, 6)
    pv_adj(0)
    p_issue()
    a.wait_vm(("p", 1))
    chk = [(2, f"v_or3_b32 v11, v{PR+3}, v{PR+7}, v{PR+11}")]
    chk += [(k + 1, f"v_or3_b32 v11, v11, v{PR+4*k+3}, v{PR+4*k+7}") for k in range(3, 15, 2)]
    chk += [(15, f"v_or_b32 v11, v11, v{PR+63}")]
    noted = False
    for s in range(16):
        adj = cap(pv_adj, s + 1) if s < 15 else [c[1] for c in chk]
        pv_mfma(s, 0)
        for l in adj[:2]:
            a(l)
        pv_mfma(s, 1)
        for l in adj[2:4]:
            a(l)
        pv_mfma(s, 2)
        for l in adj[4:]:
            a(l)
        if not p_issue():
            if s >= P["n3_step"] and not noted:
                notice(162, 81)
                noted = True
            elif s < 15 and chk and chk[0][0] <= s + 1:
                a(chk.pop(0)[1])
        for k in range(tr_in):
            if trn[0] < 96:
                tr_read()
        if s < 15:
            assert trn[0] >= 6 * (s + 2)
            lg = f" lgkmcnt({min(15, trn[0]-6*(s+2))})" if 6 * (s + 2) > tr0 else ""
            if s < 14:
                a.wait_vm(("p", s + 2), lg)
            else:
                a("s_waitcnt" + lg)
    assert trn[0] == 96
    a("v_cmp_gt_i32 vcc, 0, v11")
    a("s_cbranch_vccnz L_A_p_slow")
    a("L_A_p_ok:")
    main = a.L
    a.L = []
    a("L_A_p_slow:")
    vmk = list(a.vm)
    p_pub(" sc1")
    a.vm = vmk
    a("s_mov_b32 s28, 0")
    a("L_A_p_loop:")
    a("s_add_u32 s29, s29, 0x100")
    for p in range(2):
        a(m_load(p))
    for s in range(16):
        a(p_load(s))
    a("s_add_u32 s28, s28, 1")
    a("s_waitcnt vmcnt(0)")
    m_check()
    for s in range(1, 16, 2):
        a(f"v_max3_u32 v11, v11, v{PR+4*s-1}, v{PR+4*s+3}")
    a("v_cmp_eq_u32 vcc, -1, v11")
    a("s_cbranch_vccz L_A_p_redo")
    a(f"s_cmp_lt_u32 s28, {SPIN}")
    a("s_cbranch_scc1 L_A_p_loop")
    a("L_A_p_redo:")
    m_max()
    for s in range(16):
        if not s & 1:
            delta(s // 2)
        pv_adj(s)
        for T in range(3):
            pv_mfma(s, T)
    a("s_branch L_A_p_ok")
    slow.append("\n".join(a.L))
    a.L = main
    stamp(11)
    stamp(14, 2)
    epi = []
    for k in range(6):
        epi.append(f"v_cvt_pk_bf16_f32 v{OC+k}, v{OC+2*k}, v{OC+2*k+1}")
        if k & 1:
            epi.append(f"v_min_u32 v{OC+k}, -2, v{OC+k}")
        epi.append(f"ds_permute_b32 v{44+k}, v36, v{OC+k}")
    epi += [None, None, None, None, "s_waitcnt lgkmcnt(2)", "buffer_store_dwordx4 v[44:47], v37, s[16:19], s21 offen sc1",
            "s_waitcnt lgkmcnt(0)", "buffer_store_dwordx2 v[48:49], v38, s[16:19], s22 offen sc1"]
    for s in range(16):
        pv_mfma(s, 3)
        if s >= 2:
            for k in range(2):
                if epi:
                    l = epi.pop(0)
                    if l:
                        a(l)
    assert not epi
    if not noted:
        notice(162, 81)
    a(f"v_min_u32 v61, -2, v{OC+12}")
    a("buffer_store_dwordx2 v[60:61], v39, s[16:19], s35 offen sc1")
    if P["n_pf"]:
        if P["pf_bar"]:
            a("s_barrier")
        a("buffer_load_dword v209, v208, s[96:99], s100 offen")
    stamp(12)
    if RE:
        same_load()
        a("s_waitcnt lgkmcnt(0)")
        unless_same("L_A_nore")
        a.wait_all()
        p_pub(" sc1")
        a("L_A_nore:")
    a("s_cmp_lg_u32 s3, 0")
    a("s_cbranch_scc1 L_A_end")
    a("s_cmp_ge_u32 s25, 5")
    a("s_cbranch_scc1 L_A_end")
    a("s_mul_i32 s35, s24, 5")
    a("s_add_u32 s35, s35, s25")
    a("v_and_b32 v5, 3, v1")
    a("v_lshlrev_b32 v3, 1, v19")
    a("v_lshl_add_u32 v48, v5, 3, v3")
    a("s_lshl_b32 s40, s35, 5")
    a("buffer_load_ushort v49, v48, s[4:7], s40 offen")
    a("buffer_load_ushort v50, v48, s[8:11], s40 offen")
    if P["out_pt"]:
        a("buffer_load_ushort v58, v48, s[84:87], s40 offen")
    a(f"v_and_b32 v3, {60 if P['out_pk'] else 12}, v1")
    a("v_lshl_or_b32 v57, v3, 20, v48")
    a("v_lshrrev_b32 v3, 2, v1")
    a("v_mul_u32_u24 v56, 2560, v3")
    a("v_lshl_add_u32 v56, v5, 4, v56")
    a("s_lshl_b32 s27, s35, 7" if P["n5_priv"] else "s_lshl_b32 s27, s24, 10")
    a(f"s_add_u32 s27, s27, {XN5}")
    cnt_base(27)

    ZS = (41, 42, 43, 44, 45, 46, 47, 39)

    def z_offs(base, n):
        a("s_lshl_b32 s41, s35, 6")
        a(f"s_add_u32 s41, s41, {base}")
        for k in range(1, n):
            a(f"s_add_u32 s{ZS[k]}, s41, {40960*k}")

    def z_gather(name, n, cnt):
        a(f"L_Z_{name}:")
        a(f"s_add_u32 s29, s29, {cnt}")
        for k in range(n):
            a(f"buffer_load_dwordx4 v[{64+4*k}:{67+4*k}], v56, s[16:19], s{ZS[k]} offen sc1")
        a("s_add_u32 s28, s28, 1")
        a(f"s_waitcnt vmcnt({n-2})")
        a("v_max_u32 v3, v67, v71")
        for kk in (0, 2):
            a(f"v_pk_add_f32 v[{60+kk}:{61+kk}], v[{64+kk}:{65+kk}], v[{68+kk}:{69+kk}]")
        for k in range(2, n):
            a(f"s_waitcnt vmcnt({n-1-k})")
            a(f"v_max_u32 v3, v3, v{67+4*k}")
            for kk in (0, 2):
                a(f"v_pk_add_f32 v[{60+kk}:{61+kk}], v[{60+kk}:{61+kk}], v[{64+4*k+kk}:{65+4*k+kk}]")
        a("v_cmp_eq_u32 vcc, -1, v3")
        a(f"s_cbranch_vccnz L_Z_{name}_r")
        a(f"L_Z_{name}_ok:")
        slow.append(f"""L_Z_{name}_r:
            s_cmp_lt_u32 s28, {SPIN}
            s_cbranch_scc1 L_Z_{name}
            s_branch L_Z_{name}_ok""")
        a("v_permlane32_swap_b32 v60, v62")
        a("v_permlane32_swap_b32 v61, v63")
        a("v_add_f32 v60, v60, v62")
        a("v_add_f32 v61, v61, v63")
        a("v_permlane16_swap_b32 v60, v61")
        a("v_add_f32 v60, v60, v61")
        a("v_add_f32 v60, v60, v60 row_ror:8 row_mask:0xf bank_mask:0xf")
        a("v_add_f32 v60, v60, v60 row_ror:4 row_mask:0xf bank_mask:0xf")
        rbf(60)

    z_offs(XY, 2)
    a("s_mov_b32 s28, 0")
    z_gather("y", 2, 0x100000)
    only_if(4, 35, 1, 1)
    a("v_mov_b32 v5, s26")
    a(f"buffer_store_dword v5, v4, s[16:19], 0 offen offset:{EPOCH} sc1")
    z_offs(XS, 8)
    a("v_lshlrev_b32 v50, 16, v50")
    a("v_add_f32 v50, v50, v60")
    rbf(50)
    a(f"v_mul_f32 v3, {f32(-math.log2(math.e))}, v50")
    a("v_exp_f32 v3, v3")
    a("v_add_f32 v3, 1.0, v3")
    a("v_rcp_f32 v3, v3")
    a("v_mul_f32 v50, v50, v3")
    rbf(50)
    a("v_lshlrev_b32 v49, 16, v49")
    stamp(13)
    if P["n5_pos"] >= 0:
        if P["n5_priv"]:
            if P["rep5"] > 1:
                poll_multi("Z_n5", P["rep5"], None, 8 * P["n5_priv"] - 1, P["pipe5"])
            else:
                poll_cnt("Z_n5", ["0"], 8 * P["n5_priv"] - 1, 0)
        else:
            poll_cnt("Z_n5", [str(128 * k) for k in range(8)], 15, 0)
    stamp(14)
    z_gather("s", 8, 0x1000000)
    a("v_mul_f32 v60, v60, v50")
    rbf(60)
    if P["out_pk"]:
        a("v_add_f32 v61, v60, v49")
        a("v_add_f32 v60, v60, v49")
        a("v_permlane16_swap_b32 v60, v61")
        a("v_cvt_pk_bf16_f32 v62, v60, v61")
        a("v_cvt_pk_bf16_f32 v63, v60, v61")
        a("v_permlane32_swap_b32 v62, v63")
        a(f"buffer_store_dwordx2 v[62:63], v57, s[84:87], s40 offen {P['outf']}")
    else:
        a("v_add_f32 v60, v60, v49")
        a("v_cvt_pk_bf16_f32 v60, v60, v60")
        a(f"buffer_store_short v60, v57, s[84:87], s40 offen {P['outf']}")
    a("L_A_end:")
    dump_stamps()
    a("s_endpgm")

    a(".p2align 8")
    a("L_F:")
    role[0] = "F"
    a.vm = []
    common_ids()
    srd(4, 1280)
    a("s_sub_u32 s25, s25, 16")
    a("s_lshl_b32 s89, s24, 2")
    a("s_add_u32 s89, s89, s25")
    a("s_sub_u32 s89, s89, 12")
    a("v_lshrrev_b32 v2, 3, v1")
    a("v_and_b32 v5, 7, v1")
    a("v_lshlrev_b32 v7, 1, v2")
    a("s_and_b32 s46, s25, 3")
    a("s_lshl_b32 s46, s46, 2")
    a("s_add_u32 s46, s46, s3")
    a("s_mul_i32 s35, s46, 80")
    a("s_mul_i32 s42, s89, 3072")
    a(f"s_add_u32 s42, s42, {XQA if not P.get('no_c0') else 0x20000000}")
    a("v_lshlrev_b32 v14, 4, v0")
    a("v_and_b32 v16, 0x7ff, v14")
    for k in range(4):
        a(f"v_mov_b32 v{60+k}, -1")
    a("s_mul_i32 s36, s89, 18432")
    a(f"s_add_u32 s36, s36, {XP}")
    a(f"s_mul_i32 s38, s89, {CLR_PER}")
    a(f"s_add_u32 s38, s38, {CLR0}")
    a(f"s_add_u32 s39, s38, {CLR_PER}")
    a("s_waitcnt lgkmcnt(0)")
    load_epoch()
    a("v_min_u32 v17, 3056, v14")
    a.vmem("buffer_store_dwordx4 v[60:63], v17, s[16:19], s42 offen sc1", "c0")
    x_stats_loads(8)
    x_rows(88, 35, 5)
    a("s_load_dwordx2 s[12:13], s[0:1], 56")
    a("s_load_dwordx2 s[8:9], s[0:1], 72")
    a("s_load_dwordx2 s[96:97], s[0:1], 64")
    a("s_load_dwordx2 s[20:21], s[0:1], 40")


    def pm_clear():
        a("s_mov_b32 s27, s36" if not P.get("no_pm") else "s_mov_b32 s27, 0x20000000")
        for k in range(5):
            a.vmem(f"buffer_store_dwordx4 v[60:63], v{14 if k < 4 else 16}, s[16:19], s27 offen sc1", "clr")
            a("s_add_u32 s27, s27, 4096")

    if P["c0_alone"] == 0:
        pm_clear()
    sel_masks(152, 3)
    a.wait_vm("c0", " lgkmcnt(0)")
    a("s_barrier")
    flag_add("F0", 0)
    stamp(3)
    if P["c0_alone"]:
        pm_clear()
    if P.get("no_clr"):
        a("v_mov_b32 v14, 0x20000000")
    a("L_F_clr:")
    a("buffer_store_dwordx4 v[60:63], v14, s[16:19], s38 offen sc1")
    a("s_add_u32 s38, s38, 4096")
    if P["dClr"] < 63:
        a(f"s_waitcnt vmcnt({P['dClr']})")
    a("s_cmp_lt_u32 s38, s39")
    a("s_cbranch_scc1 L_F_clr")
    a.vm += ["clr"] * (CLR_PER // 4096)
    make_tag()
    srd(12, 0 if P.get("no_f") else 1966080)
    srd(20, 0 if P.get("no_f") else 7864320)
    a.wait_vm("x")
    ln_stats(8, 24)
    sel_ops(88, 24, 5)
    red_addrs()
    a("v_mul_u32_u24 v6, 3072, v2")
    a("v_lshl_add_u32 v6, v5, 4, v6")
    a(f"s_mul_i32 s44, s46, {40*3072}")
    a("s_mul_i32 s27, s24, 384")
    a("s_add_u32 s44, s44, s27")
    a(f"s_movk_i32 s45, {8*3072}")
    fn = [0]

    def f_next():
        n = fn[0]
        if n < 15:
            rows_load(n, 5, 64, 6, 12, "w1")
        elif n < 30:
            q = 128 + 4 * (n - 15)
            a.vmem(f"buffer_load_dwordx4 a[{q}:{q+3}], v159, s[8:11], s{38+(n-15)//5} offen offset:{((n-15)%5)*256} {NT}", "w2")
        else:
            wo_load(n - 30)
        fn[0] += 1

    a("v_and_b32 v18, 15, v1")
    a("v_lshrrev_b32 v19, 4, v1")
    tail_setup(25, 18, 19, 3)
    a("v_mov_b32 v163, 0x20000000")
    srd(8, 0 if P.get("no_f") else 1966080)
    srd(96, 3072)
    a("s_mul_i32 s27, s24, 48")
    a("s_add_u32 s27, s27, s46")
    a("s_mul_i32 s38, s27, 5120")
    a(f"s_add_u32 s39, s38, {64*1280}")
    a(f"s_add_u32 s40, s38, {128*1280}")
    a("s_lshl_b32 s47, s27, 3")
    a("s_lshl_b32 s41, s89, 10")
    a(f"s_add_u32 s41, s41, {XH}")
    a("s_mul_i32 s43, s89, 2560")
    a(f"s_add_u32 s43, s43, {XY}")
    a("s_lshl_b32 s42, s24, 12")
    a("s_lshl_b32 s27, s46, 6")
    a("s_add_u32 s42, s42, s27")
    a(f"s_add_u32 s42, s42, {XH}")
    a("v_and_b32 v3, 3, v1")
    a("v_lshlrev_b32 v3, 10, v3")
    a("v_lshl_add_u32 v59, v19, 4, v3")
    phase5_addrs(11, 0, 3)
    a.wait_all()
    a("s_barrier")
    flag_add("F1", 128)
    stamp(1)
    a("v_min_u32 v14, 143, v0")
    a("v_lshlrev_b32 v14, 7, v14")
    a.vmem("buffer_load_dword v15, v14, s[16:19], s36 offen sc1", "pt")
    a("v_min_u32 v14, 95, v0")
    a("v_lshlrev_b32 v14, 7, v14")
    a("s_mul_i32 s27, s89, 12288")
    a(f"s_add_u32 s27, s27, {XC}")
    a.vmem("buffer_load_dword v15, v14, s[16:19], s27 offen sc1", "pt")
    a("v_lshlrev_b32 v3, 1, v19")
    for t in range(3):
        a.vmem(f"buffer_load_ushort v{56+t}, v3, s[96:99], s47 offen offset:{128*t}", "b1")
    while fn[0] < 15:
        throttle(P["dF"] if fn[0] >= P["nF0"] else 0)
        f_next()
        if fn[0] == 11:
            flag_load(0)
    a("s_waitcnt lgkmcnt(0)")
    flag_check("F", 0)
    same_add("F")
    rows_finish("F_h", 5, 24, 64, "w1", f_next, P["dF"] + 1, P["dF"], 140, 41, " sc1")
    stamp(5)
    while fn[0] < 30:
        throttle(P["dF2"])
        f_next()
    XHL = "buffer_load_dwordx4 v[60:63], v59, s[16:19], s42 offen sc1"
    a.vmem(XHL, "xh")
    flag_load(1)
    while "xh" in a.vm and fn[0] < 45:
        throttle(P["dF2"])
        if "xh" in a.vm:
            f_next()
    if "xh" in a.vm:
        a.wait_vm("xh")
    stamp(6)
    a("s_waitcnt lgkmcnt(0)")
    flag_check("F1", 1)
    a("v_cmp_ne_u32 vcc, s26, v63")
    a("s_cbranch_vccnz L_F_xh_slow")
    a("L_F_xh_ok:")
    slow.append(f"""L_F_xh_slow:
        s_mov_b32 s28, 0
        L_F_xh_loop:
        s_add_u32 s29, s29, 1
        {XHL}
        s_add_u32 s28, s28, 1
        s_waitcnt vmcnt(0)
        v_cmp_ne_u32 vcc, s26, v63
        s_cbranch_vccz L_F_xh_ok
        s_cmp_lt_u32 s28, {SPIN}
        s_cbranch_scc1 L_F_xh_loop
        s_branch L_F_xh_ok""")

    def gelu_part():
        for m in ("quad_perm:[1,0,3,2]", "quad_perm:[2,3,0,1]"):
            for k in range(3):
                a(f"v_add_f32 v{60+k}, v{60+k}, v{60+k} {m} row_mask:0xf bank_mask:0xf")
        for k in range(3):
            v = 60 + k
            rbf(v)
            a(f"v_lshlrev_b32 v3, 16, v{56+k}")
            a(f"v_add_f32 v{v}, v{v}, v3")
            rbf(v)
            a(f"v_mul_f32 v3, v{v}, v{v}")
            a(f"v_mul_f32 v3, {f32(0.044715)}, v3")
            a("v_add_f32 v3, 1.0, v3")
            a(f"v_mul_f32 v3, v3, v{v}")
            a(f"v_mul_f32 v3, {f32(-2*math.sqrt(2/math.pi)*math.log2(math.e))}, v3")
            a("v_exp_f32 v3, v3")
            a("v_add_f32 v3, 1.0, v3")
            a("v_rcp_f32 v3, v3")
            a(f"v_mul_f32 v{v}, v{v}, v3")

    gl = cap(gelu_part)
    for i, l in enumerate(gl):
        a(l)
        if i % 16 == 15 and fn[0] < 45:
            f_next()

    def f_hook(pos):
        if fn[0] < 45 and pos <= (4 if P["p5w"] < 2 else 1):
            f_next()

    phase5(60, 152, 128, 72, 11, 43, ng=3, hook=f_hook)
    stamp(7)
    while fn[0] < 45:
        throttle(P["dF2"])
        f_next()
    a("s_mov_b32 s80, 31")
    a("s_branch L_T")
    for blk in slow:
        a(blk)
    a("L_codeend:")

    if not P["stamps"]:
        a.L = [l for l in a.L if not l.startswith(("s_add_u32 s29,", "s_mov_b32 s29,"))]
    body = fix_hazards(a.L)
    if P['al8']:
        body = align8(body)
    hdr = open("recurrent_scan__compressed_kv_cla__dense_activation_gelu__decode.s.ref").read().split("; Override launch")[0] if P.get("hdr", 1) else ""
    out = hdr
    out += f"; @launch grid=(256,1,1) block=(256,1,1) lds={LDS_SIZE}\n"
    if P.get("hdr", 1):
        out += DOC
    out += f""".amdgcn_target "amdgcn-amd-amdhsa--gfx950"
.text
.globl {KN}
.p2align 8
.type {KN},@function
{KN}:
"""
    out += "\n".join(("" if l.endswith(":") or l.startswith(".") else "    ") + l for l in body)
    out += f"""
s_endpgm
.section .rodata,"a"
.p2align 6
.amdhsa_kernel {KN}
  .amdhsa_next_free_vgpr 512
  .amdhsa_next_free_sgpr 102
  .amdhsa_accum_offset 256
  .amdhsa_group_segment_fixed_size 0
  .amdhsa_kernarg_size 112
  .amdhsa_user_sgpr_count 2
  .amdhsa_user_sgpr_kernarg_segment_ptr 1
  .amdhsa_system_sgpr_workgroup_id_x 1
  .amdhsa_float_denorm_mode_32 3
.end_amdhsa_kernel
"""
    return out


def parse(spec):
    kw = {}
    for p in spec.split(","):
        if "=" in p:
            k, v = p.split("=")
            kw[k] = int(v) if v.lstrip("-").isdigit() else v.replace("+", " ").replace("_", "")
    return kw


if __name__ == "__main__":
    out = sys.argv[1]
    kw = parse(sys.argv[2]) if len(sys.argv) > 2 else {}
    open(out, "w").write(gen(**kw))
```

```python
import sys, struct, math
from asmlib import Asm, fix_hazards, align8

KN = "recurrent_scan__compressed_kv_cla__dense_activation_gelu__decode_kernel"


def f32(x):
    return hex(struct.unpack("<I", struct.pack("<f", x))[0])


EPOCH = 0
XH = 0x8000
XQ = 0x290000
XP = 0x40000
XM = XP + 65536
PM = 73728
XC = 0xD0000
XQA = 0x130000
XN2 = XQA + 49152
XI = XN2 + 16384
CLR0 = XQA + 98304
XN3 = CLR0
XN5 = XN3 + 32768
XML = XN5 + 32768
XO = XML + 32768
XS = XO + 786432
XY = XS + 128 * 2560
CLR_END = XY + 32 * 2560
CLR_PER = 40960
assert CLR_END <= CLR0 + 32 * CLR_PER
STAMP = 0x400000
WS_SIZE = 0x10000000

R1 = 24608
R2 = 4 * R1
LDS_SIZE = R2 + 24576 + 1024
SPIN = 200000

DOC = '''; ---------------------------------------------------------------------------------------------
;   q = LN(x) Wq ; qa = q Wuk^T * log2e/sqrt(D) ; s = qa ckv^T ; softmax with the true running max
;   (rounded up to an integer exponent so partial results rescale exactly) ; o = p ckv ;
;   ctx = o Wuv ; out = x + (ctx Wo) * silu(gelu(LN(x) W1 + b1) W2 + b2)
; Hand-offs in the workspace are self-validating: 16-byte granules carry either a launch tag
; in this launch (completion counted in the debug buffer).  Arrival counters only say when to look.
; ---------------------------------------------------------------------------------------------
'''

DEF = dict(stamps=0, wnt="nt", local=1, re=1, cpf=1,
           dQ=8, x_at=8, a_first=3, q_bar=1, dH1=7, nH1=0, dH=5, x1_wait=3, x1_at=99, wo_late=0, qa_lines=0, p5w=1, w6=0, xperm=1, n_pf=0, prog=0, m_at=4, ckf='', l2f='', wq_pf=0, f_gate=0, pmf='sc1', clf='sc1', plf='sc1', qlf='sc1', rperm=0, rinv=0, rep3=1, rep5=1, pipe2=0, pipe3=0, pipe5=0, pf_bar=1, al8=1, out_pk=0, outf='', out_pt=0,
           dV1=3, nV1=5, dV=7, c0_alone=1, a_lvl=1, h1_early=0, dClr=63, n2=2, n2_at=23, n2_tgt=24,
           q_looks=12, dC1=4, nC1=0, dC=7, a_flag_at=18, a_x2_wait=8, rr=2, qrot=1,
           l2_in_s=12, l2_after1=0, l2b_w=0, l2b_r=2, l2b_mid=3, l2a_wait=1, tr_pre=60, p_ahead=6, tr_in=4, tr_pro=0,
           n3_step=13, n5_priv=4, n5_who=3, n5_pos=2, h_looks=10, a_looks=8, nF0=0, dF=4, dF2=5)


def gen(**kw):
    P = dict(DEF)
    P.update(kw)
    a = Asm()
    NT = P["wnt"]
    RE = P["local"] and P["re"]

    def stamp(i, fine=None):
        if not P["stamps"]:
            return
        if fine is None:
            if P["stamps"] != 1 and (role[0] == "A" or P["stamps"] == 3) and 0 < i < 15:
                return
        elif fine != P["stamps"]:
            return
        a(f"s_memrealtime s[{48+2*i}:{49+2*i}]")
        if fine is None and 0 < i < 15 and P.get("stop" + role[0]) == i:
            a("s_waitcnt vmcnt(0)")
            dump_stamps()
            a("s_endpgm")
            a(f"L_dead_{role[0]}:")

    role = ["H"]

    def dump_stamps():
        if not P["stamps"]:
            return
        stamp(15)
        if P.get("clk"):
            a("s_memtime s[76:77]")
        a("s_waitcnt lgkmcnt(0)")
        a("s_mov_b64 exec, -1")
        a("v_mov_b32 v250, 0")
        for i in range(16):
            a(f"v_writelane_b32 v250, s{48+2*i}, {i}")
        a("v_writelane_b32 v250, s29, 16")
        a("s_lshl_b32 s27, s2, 2\ns_add_u32 s27, s27, s3\ns_lshl_b32 s27, s27, 7")
        a(f"s_add_u32 s27, s27, {STAMP}")
        a("v_lshlrev_b32 v251, 2, v1")
        a("s_mov_b32 exec_hi, 0")
        a("buffer_store_dword v250, v251, s[16:19], s27 offen sc1")

    def srd(reg, size):
        a(f"s_mov_b32 s{reg+2}, {size}")
        a(f"s_mov_b32 s{reg+3}, 0x20000")

    def common_ids():
        a("v_lshrrev_b32 v2, 6, v0")
        a("v_and_b32 v1, 63, v0")
        a("v_readfirstlane_b32 s3, v2")
        if P["xperm"]:
            a("s_and_b32 s24, s2, 3")
            a("s_bfe_u32 s27, s2, 0x10002")
            if P["xperm"] == 2:
                a("s_xor_b32 s27, s27, 1")
            a("s_lshl1_add_u32 s24, s24, s27")
        else:
            a("s_and_b32 s24, s2, 7")
        srd(16, WS_SIZE)
        a("s_mov_b32 s29, 0")
        if P.get("stop" + role[0]) == 0:
            a("s_waitcnt lgkmcnt(0)")
            for i in range(1, 16):
                a(f"s_mov_b64 s[{48+2*i}:{49+2*i}], 0")
            dump_stamps()
            a("s_endpgm")
            a(f"L_dead_{role[0]}:")
        if P["stamps"] and P["stamps"] != 3:
            for i in range(1, 16):
                a(f"s_mov_b64 s[{48+2*i}:{49+2*i}], 0")

    def load_epoch():
        a(f"s_load_dword s26, s[16:17], {EPOCH}")
        a("s_load_dwordx2 s[30:31], s[0:1], 96")

    def make_tag():
        a("s_mul_i32 s26, s26, 0x9e3779b1")
        a("s_add_u32 s26, s26, 0x7f4a7c15")

    def rbf(v, t=None):
        a(f"v_cvt_pk_bf16_f32 v{v}, v{v}, v{v}")
        a(f"v_and_b32 v{v}, 0xffff0000, v{v}")

    def wave_sum(v, s):
        for m in ("quad_perm:[1,0,3,2] row_mask:0xf", "quad_perm:[2,3,0,1] row_mask:0xf", "row_half_mirror row_mask:0xf",
                  "row_mirror row_mask:0xf", "row_bcast:15 row_mask:0xa", "row_bcast:31 row_mask:0xc"):
            a(f"v_add_f32 v{v}, v{v}, v{v} {m} bank_mask:0xf")
        a(f"v_readlane_b32 s{s}, v{v}, 63")

    def x_stats_loads(v):
        a("v_lshlrev_b32 v3, 4, v1")
        a("v_lshlrev_b32 v4, 2, v1")
        a.vmem(f"buffer_load_dwordx4 v[{v}:{v+3}], v3, s[4:7], 0 offen", "x")
        a.vmem(f"buffer_load_dword v{v+4}, v4, s[4:7], 0 offen offset:1024", "x")

    def ln_stats(v, t):
        for j in range(5):
            a(f"v_lshlrev_b32 v{t+2*j}, 16, v{v+j}")
            a(f"v_and_b32 v{t+2*j+1}, 0xffff0000, v{v+j}")
        a(f"v_add_f32 v{t+10}, v{t}, v{t+1}")
        for j in range(2, 10):
            a(f"v_add_f32 v{t+10}, v{t+10}, v{t+j}")
        wave_sum(t + 10, 32)
        a(f"v_mov_b32 v{t+10}, {f32(1/640)}")
        a(f"v_mul_f32 v{t+10}, s32, v{t+10}")
        for j in range(10):
            a(f"v_sub_f32 v{t+j}, v{t+j}, v{t+10}")
        a(f"v_mul_f32 v{t+11}, v{t}, v{t}")
        for j in range(1, 10):
            a(f"v_fmac_f32 v{t+11}, v{t+j}, v{t+j}")
        wave_sum(t + 11, 33)
        a(f"v_mov_b32 v{t+11}, {f32(1/640)}")
        a(f"v_mul_f32 v{t+11}, s33, v{t+11}")
        rbf(t + 10)
        rbf(t + 11)
        a(f"v_add_f32 v{t+11}, {f32(1e-5)}, v{t+11}")
        rbf(t + 11)
        a(f"v_sqrt_f32 v{t+11}, v{t+11}")
        a(f"v_readfirstlane_b32 s32, v{t+10}")
        rbf(t + 11)
        a(f"v_rcp_f32 v{t+10}, v{t+11}")
        a(f"v_readfirstlane_b32 s33, v{t+11}")
        a(f"v_readfirstlane_b32 s34, v{t+10}")

    def normalize(v, t):
        a(f"v_subrev_f32 v{v}, s32, v{v}")
        rbf(v)
        a(f"v_mul_f32 v{t}, s34, v{v}")
        a(f"v_fma_f32 v{v}, -v{t}, s33, v{v}")
        a(f"v_fmac_f32 v{t}, s34, v{v}")
        a(f"v_cvt_pk_bf16_f32 v{v}, v{t}, v{t}")

    def sel_masks(m, t):
        a(f"v_and_b32 v{t}, 1, v1")
        a(f"v_lshlrev_b32 v{t}, 4, v{t}")
        a(f"v_mov_b32 v{t+1}, 0xffff")
        a(f"v_lshlrev_b32 v{t}, v{t}, v{t+1}")
        a(f"v_bfe_u32 v{t+1}, v1, 1, 2")
        for d in range(4):
            a(f"v_cmp_eq_u32 vcc, {d}, v{t+1}")
            a(f"v_cndmask_b32 v{m+d}, 0, v{t}, vcc")

    LVL = {0: (0, 0, 32), 1: (128, 128, 32)}

    def flag_load(lvl):
        o0, o1, n = LVL[lvl]
        a(f"s_load_dword s92, s[30:31], {o0}")
        if o1 != o0:
            a(f"s_load_dword s95, s[30:31], {o1}")

    def flag_add(name, off):
        a("s_mov_b32 s94, 1")
        a("s_cmp_lg_u32 s3, 0")
        a(f"s_cbranch_scc1 L_{name}_noadd")
        a(f"s_atomic_add s94, s[30:31], {off}")
        a(f"L_{name}_noadd:")

    slow = []

    def cap(f, *args):
        main = a.L
        a.L = []
        f(*args)
        r = a.L
        a.L = main
        return r

    LOC = "" if P["local"] else " sc1"

    def only_if(vd, cond, nl, vsrc):
        a(f"s_cmp_eq_u32 s{cond}, 0")
        a(f"s_cselect_b32 s27, {nl}, 0")
        a("v_cmp_gt_u32 vcc, s27, v1")
        a(f"v_mov_b32 v{vd}, 0x20000000")
        a(f"v_cndmask_b32 v{vd}, v{vd}, v{vsrc}, vcc")

    def notice(va, soff):
        a.vmem(f"buffer_atomic_add v161, v{va}, s[16:19], s{soff} offen sc1", "note")

    def poll_cnt(name, offs, target, cnt, late=None, pipe=0):
        a("s_mov_b32 s28, 0")
        if pipe:
            for i in range(len(offs)):
                a(f"s_mov_b32 s{92+i}, -1")
            if late:
                late = (late[0] * 3, late[1])
        a(f"L_{name}:")
        if late:
            a(f"s_cmp_eq_u32 s28, {late[0]}")
            a(f"s_cbranch_scc1 L_{name}_late")
            a(f"L_{name}_go:")
            slow.append(f"L_{name}_late:\n{late[1]}\ns_branch L_{name}_go")
        for i, o in enumerate(offs):
            a(f"s_load_dword s{92+i}, s[90:91], {o} glc")
        a("s_add_u32 s28, s28, 1")
        if cnt:
            a(f"s_add_u32 s29, s29, {cnt}")
        a(f"s_cmp_ge_u32 s28, {SPIN * (4 if pipe else 1)}")
        a(f"s_sleep {pipe}" if pipe else "s_waitcnt lgkmcnt(0)")
        a(f"s_cbranch_scc1 L_{name}_out")
        r = 92
        for i in range(1, len(offs)):
            a(f"s_min_i32 s27, s{r}, s{92+i}")
            r = 27
        a(f"s_cmp_lt_i32 s{r}, {target}")
        a(f"s_cbranch_scc1 L_{name}")
        a(f"L_{name}_out:")

    def same_add(name):
        a("s_getreg_b32 s80, hwreg(HW_REG_XCC_ID, 0, 4)")
        a("s_lshl_b32 s80, s80, 2")
        a("s_lshl_b32 s93, s24, 7")
        a("s_add_u32 s80, s80, s93")
        a(f"s_add_u32 s80, s80, {XI}")
        a("s_cmp_lg_u32 s3, 0")
        a(f"s_cbranch_scc1 L_{name}_nocensus")
        a("s_mov_b32 s93, 1")
        a("s_atomic_add s93, s[16:17], s80")
        a(f"L_{name}_nocensus:")

    def same_load():
        a("s_load_dword s80, s[16:17], s80")

    def unless_same(label):
        a("s_cmp_eq_u32 s80, 31")
        a(f"s_cbranch_scc1 {label}")

    def poll_multi(name, nrep, second, target, gap):
        nc = 2 if second else 1
        a("s_mov_b32 s28, 0")
        for i in range(nrep * nc):
            a(f"s_mov_b32 s{92+i}, -1")
        a(f"L_{name}:")
        for r in range(nrep):
            a(f"s_load_dword s{92+r}, s[90:91], {8192*r} glc")
            if second:
                a(f"s_load_dword s{92+nrep+r}, s[90:91], {second} offset:{8192*r} glc")
            a(f"s_sleep {gap}")
            for c in range(nc):
                t = (27, 100)[c]
                b = 92 + nrep * c
                a(f"s_max_i32 s{t}, s{b}, s{b+1}")
                for k in range(2, nrep):
                    a(f"s_max_i32 s{t}, s{t}, s{b+k}")
            if second:
                a("s_min_i32 s27, s27, s100")
            a(f"s_cmp_ge_i32 s27, {target}")
            a(f"s_cbranch_scc1 L_{name}_out")
        a("s_add_u32 s28, s28, 1")
        a(f"s_cmp_lt_u32 s28, {SPIN}")
        a(f"s_cbranch_scc1 L_{name}")
        a(f"L_{name}_out:")

    def cnt_base(sreg):
        a(f"s_add_u32 s90, s16, s{sreg}")
        a("s_addc_u32 s91, s17, 0")

    def pop_n(fill, n):
        while fill and (n > 0 or fill[0].startswith(("s_cselect", "s_addc", "s_cbranch", "v_cndmask")) or
                        (len(fill) > 1 and fill[1].startswith("v_cndmask") and not fill[0].startswith("v_cmp"))):
            a(fill.pop(0))
            n -= 1

    def throttle(d):
        if len(a.vm) > d:
            a.wait_vm_n(d)

    def flag_check(name, lvl):
        o0, o1, n = LVL[lvl]
        if o1 != o0:
            a("s_min_u32 s92, s92, s95")
        a(f"s_cmp_lt_u32 s92, {n}")
        a(f"s_cbranch_scc1 L_{name}_fslow")
        a(f"L_{name}_fok:")
        slow.append(f"""L_{name}_fslow:
            s_mov_b32 s92, 0
            v_and_b32 v252, 1, v1
            v_mul_u32_u24 v252, {o1-o0}, v252
            L_{name}_floop:
            s_add_u32 s29, s29, 0x10000
            s_sleep 24
            global_load_dword v253, v252, s[30:31] offset:{o0} sc1
            s_add_u32 s92, s92, 1
            s_waitcnt vmcnt(0)
            v_cmp_gt_u32 vcc, {n}, v253
            s_cbranch_vccz L_{name}_fok
            s_cmp_lt_u32 s92, {SPIN}
            s_cbranch_scc1 L_{name}_floop
            s_branch L_{name}_fok""")

    def phase5(vin, vmask, wreg, vt, lds_s, s_out, ng=4, hook=None):
        acc = vt + 16
        for t in range(ng):
            a(f"v_cvt_pk_bf16_f32 v{vin+t}, v{vin+t}, v{vin+t}")
        for d in range(4):
            a(f"v_and_b32 v{vt+d}, v{vin}, v{vmask+d}")
        assert ng == 3
        seq = [(0, 0), (0, 1), (0, 2), (1, 0), (1, 1), (2, 0), (2, 1), (1, 2), (2, 2)] + [(t, b) for b in (3, 4) for t in range(3)]
        wr = lambda b: a(f"ds_write_b128 v{lds_s}, v[{acc+4*b}:{acc+4*b+3}] offset:{b*512}")
        for i, (t, b) in enumerate(seq):
            if hook and i % 5 == 0:
                hook(i // 5 + 1)
            q = wreg + 4 * (t * 5 + b)
            c = "0" if t == 0 else f"v[{acc+4*b}:{acc+4*b+3}]"
            a(f"v_mfma_f32_16x16x32_bf16 v[{acc+4*b}:{acc+4*b+3}], v[{vt+4*t}:{vt+4*t+3}], a[{q}:{q+3}], {c}")
            if i < 4:
                for d in (2 * (i & 1), 2 * (i & 1) + 1):
                    a(f"v_and_b32 v{vt+4*(i//2+1)+d}, v{vin+i//2+1}, v{vmask+d}")
            if P["p5w"] == 2 and i == 4:
                a("s_mov_b32 exec_hi, 0xff")
            if P["p5w"] and i in (8, 9, 11, 14):
                wr({8: 0, 9: 1, 11: 2, 14: 3}[i])
                if i < 14:
                    a("s_nop 0")
            elif P["p5w"] and i >= 5:
                a("s_nop 1")
        if hook:
            hook(ng + 1)
        if not P["p5w"]:
            a("s_mov_b32 exec_hi, 0")
        for b in range(4 if P["p5w"] else 0, 5):
            wr(b)
        a("s_mov_b32 exec_hi, 0xff")
        if hook:
            hook(ng + 2)
        a("s_waitcnt lgkmcnt(0)")
        a("s_barrier")
        for w in range(4):
            a(f"ds_read_b128 v[{vt+4*w}:{vt+4*w+3}], v{lds_s+1} offset:{w*2560}")
        a("s_waitcnt lgkmcnt(2)")
        for k in (0, 2):
            a(f"v_pk_add_f32 v[{vt+k}:{vt+k+1}], v[{vt+k}:{vt+k+1}], v[{vt+4+k}:{vt+5+k}]")
        a("s_waitcnt lgkmcnt(0)")
        for k in (0, 2):
            a(f"v_pk_add_f32 v[{vt+8+k}:{vt+9+k}], v[{vt+8+k}:{vt+9+k}], v[{vt+12+k}:{vt+13+k}]")
        for k in (2, 0):
            a(f"v_pk_add_f32 v[{vt+k}:{vt+k+1}], v[{vt+k}:{vt+k+1}], v[{vt+8+k}:{vt+9+k}]")
        a(f"v_min_u32 v{vt+3}, -2, v{vt+3}")
        a.vmem(f"buffer_store_dwordx4 v[{vt}:{vt+3}], v{lds_s+2}, s[16:19], s{s_out} offen sc1", "pub")
        a("s_mov_b64 exec, -1")

    def phase5_addrs(lds_s, base, t):
        a(f"v_and_b32 v{t}, 15, v1")
        a(f"v_lshlrev_b32 v{t}, 5, v{t}")
        a(f"v_and_b32 v{t+1}, 16, v1")
        a(f"s_mul_i32 s27, s3, 2560")
        a(f"s_add_u32 s27, s27, {base}")
        a(f"v_add3_u32 v{lds_s}, v{t}, v{t+1}, s27")
        a(f"s_mul_i32 s27, s3, 640")
        a(f"v_lshl_add_u32 v{lds_s+2}, v1, 4, s27")
        a(f"v_add_u32 v{lds_s+1}, {base}, v{lds_s+2}")

    def tail_setup(sn, vj, vg, vt):
        phase5_addrs(156, R2 + 14336, vt)
        a(f"v_mul_u32_u24 v{vt}, 1280, v{vg}")
        a(f"v_lshl_add_u32 v159, v{vj}, 4, v{vt}")
        a(f"v_lshlrev_b32 v{vt}, 10, v{vj}")
        a(f"v_lshl_add_u32 v160, v{vg}, 4, v{vt}")
        a(f"s_lshr_b32 s87, s{sn}, 2")
        a("s_lshl_b32 s27, s24, 2")
        a("s_add_u32 s87, s87, s27")
        a(f"s_and_b32 s27, s{sn}, 3")
        a("s_lshl_b32 s27, s27, 2")
        a("s_add_u32 s27, s27, s3")
        a("s_mul_i32 s84, s87, 48")
        a("s_add_u32 s84, s84, s27")
        a("s_mulk_i32 s84, 5120")
        a(f"s_add_u32 s85, s84, {64*1280}")
        a(f"s_add_u32 s86, s84, {128*1280}")
        a("s_mulk_i32 s87, 12288")
        a("s_lshl_b32 s27, s27, 6")
        a("s_add_u32 s87, s87, s27")
        a(f"s_add_u32 s87, s87, {XC}")
        a("s_lshl_b32 s88, s24, 4")
        a(f"s_add_u32 s88, s88, s{sn}")
        if P["n5_priv"]:
            a("s_lshl_b32 s83, s3, 13")
            a(f"s_add_u32 s83, s83, {XN5}")
        else:
            a("s_lshl_b32 s83, s24, 7")
            a(f"s_add_u32 s83, s83, {XN5}")
        a("s_mulk_i32 s88, 2560")
        a(f"s_add_u32 s88, s88, {XS}")
        for k in range(3):
            a(f"v_mov_b32 v{164+k}, 0")
        a("v_mov_b32 v161, 1")
        if P["n5_priv"]:
            a(f"s_and_b32 s28, s{sn}, {16 // P['n5_priv'] - 1}")
            a(f"s_xor_b32 s28, s28, {P['n5_who'] & (16 // P['n5_priv'] - 1)}")
            a(f"s_lshr_b32 s27, s3, {P['rep5'].bit_length() - 1}")
            a("s_or_b32 s28, s28, s27")
            a(f"v_lshlrev_b32 v{vt}, 7, v1")
            only_if(162, 28, 40, vt)
        else:
            a(f"v_lshlrev_b32 v{vt}, 10, v1")
            only_if(162, 3, 8, vt)

    def wo_load(n):
        q = 192 + 4 * n
        a.vmem(f"buffer_load_dwordx4 a[{q}:{q+3}], v159, s[20:23], s{84+n//5} offen offset:{(n%5)*256} {NT}", "wo")

    def tail():
        re = "buffer_store_dwordx4 v[28:31], v163, s[16:19], s43 offen sc1"
        a("L_T:")
        a("s_mov_b32 exec_lo, 0x0fff0fff")
        a("s_mov_b32 exec_hi, 0x0fff0fff")
        a("s_mov_b32 s28, 0")
        stamp(13)
        a("L_T_x4:")
        a("buffer_load_dwordx4 v[164:167], v160, s[16:19], s87 offen sc1")
        a("s_add_u32 s28, s28, 1")
        a(f"s_cmp_ge_u32 s28, {P['h_looks']}")
        a("s_cbranch_scc1 L_T_x4_long")
        a("L_T_x4_chk:")
        a.wait_all()
        a("v_cmp_ne_u32 vcc, s26, v167")
        a("s_cbranch_vccnz L_T_x4")
        a("L_T_x4_ok:")
        slow.append(f"""L_T_x4_long:
            s_cmp_lg_u32 s28, {P['h_looks']}
            s_cbranch_scc1 L_T_x4_nore
            s_mov_b64 exec, -1
            {re}
            s_mov_b32 exec_lo, 0x0fff0fff
            s_mov_b32 exec_hi, 0x0fff0fff
            L_T_x4_nore:
            s_cmp_lt_u32 s28, {SPIN}
            s_cbranch_scc1 L_T_x4_chk
            s_waitcnt vmcnt(0)
            s_branch L_T_x4_ok""")
        a("s_mov_b64 exec, -1")
        stamp(14)

        def n5(pos):
            if pos == P["n5_pos"]:
                notice(162, 83)

        n5(0)
        for m in ("quad_perm:[1,0,3,2]", "quad_perm:[2,3,0,1]", "row_half_mirror", "row_mirror"):
            for k in range(3):
                a(f"v_add_f32 v{164+k}, v{164+k}, v{164+k} {m} row_mask:0xf bank_mask:0xf")
        phase5(164, 152, 192, 168, 156, 88, ng=3, hook=n5)
        if RE:
            unless_same("L_T_end")
            a(re)
            a("L_T_end:")

    def x_rows(vd, sreg, ng):
        for g in range(ng):
            a.vmem(f"buffer_load_ushort v{vd+g}, v7, s[4:7], s{sreg} offen offset:{16*g}", "x")

    def rows_load(n, ng, areg, va, srdr, tag):
        g, t = n // 3, n % 3
        q = areg + n * 4
        a.vmem(f"buffer_load_dwordx4 a[{q}:{q+3}], v{va}, s[{srdr}:{srdr+3}], s44 offen offset:{t*128} {NT}", (tag, g))
        if t == 2 and g < ng - 1:
            a("s_add_u32 s44, s44, s45")

    def sel_ops(vx, vop, ng):
        for g in range(ng):
            a(f"v_lshlrev_b32 v{vx+g}, 16, v{vx+g}")
            normalize(vx + g, 3)
            for d in range(4):
                a(f"v_and_b32 v{vop+4*g+d}, v{vx+g}, v{152+d}")

    def red_addrs():
        a("v_bfe_u32 v3, v1, 3, 1")
        a("v_mul_u32_u24 v3, 768, v3")
        a("v_lshl_add_u32 v3, v5, 5, v3")
        a("v_and_b32 v4, 16, v1")
        a("s_mul_i32 s28, s3, 1536")
        a(f"s_add_u32 s28, s28, {R2}")
        a("v_add3_u32 v22, v3, v4, s28")
        a("v_lshlrev_b32 v23, 2, v1")
        a(f"v_add_u32 v23, {R2}, v23")
        a("v_lshlrev_b32 v10, 4, v1")

    def rows_finish(name, ng, vop, areg, tag, nxt, nfirst, depth, dst, slot, flags, before_bar=None, allw=False, two=False):
        done = [0]

        def ready():
            while done[0] < ng and (tag, done[0]) not in a.vm:
                g = done[0]
                for t in range(3):
                    q = areg + (g * 3 + t) * 4
                    c = "0" if g == 0 else f"v[{44+4*t}:{47+4*t}]"
                    a(f"v_mfma_f32_16x16x32_bf16 v[{44+4*t}:{47+4*t}], v[{vop+4*g}:{vop+4*g+3}], a[{q}:{q+3}], {c}")
                done[0] += 1

        ready()
        for k in range(nfirst):
            throttle(depth)
            nxt()
            ready()
        while done[0] < ng:
            a.wait_vm((tag, done[0]))
            ready()
        if before_bar:
            before_bar()
        a("s_mov_b32 exec_lo, 0x00ff00ff")
        a("s_mov_b32 exec_hi, 0xff00ff00")
        for t in range(3):
            a(f"ds_write_b128 v22, v[{44+4*t}:{47+4*t}] offset:{t*256}")
        a("s_mov_b64 exec, -1")
        a("s_waitcnt lgkmcnt(0)")
        a("s_barrier")
        if not allw:
            a("s_cmp_lg_u32 s3, 0")
            a(f"s_cbranch_scc1 L_{name}_nopub")
        for k in range(12):
            a(f"ds_read2st64_b32 v[{64+2*k}:{65+2*k}], v23 offset0:{2*k} offset1:{2*k+1}")
        a(f"v_mov_b32 v{dst+3}, s26")
        a("s_waitcnt lgkmcnt(6)")
        for t in range(3):
            a(f"v_add_f32 v{dst+t}, v{64+t}, v{67+t}")
        for p in (2, 3):
            for t in range(3):
                a(f"v_add_f32 v{dst+t}, v{dst+t}, v{64+3*p+t}")
        if two:
            a.vmem(f"buffer_store_dwordx4 v[{dst}:{dst+3}], v148, s[16:19], s{slot} offen{flags}", "pub")
            a(f"v_mov_b32 v{dst-1}, s26")
            a("s_waitcnt lgkmcnt(0)")
            for t in range(3):
                a(f"v_add_f32 v{dst-4+t}, v{76+t}, v{79+t}")
            for p in (6, 7):
                for t in range(3):
                    a(f"v_add_f32 v{dst-4+t}, v{dst-4+t}, v{64+3*p+t}")
            a.vmem(f"buffer_store_dwordx4 v[{dst-4}:{dst-1}], v149, s[16:19], s{slot} offen{flags}", "pub")
            return
        a("s_waitcnt lgkmcnt(0)")
        for p in range(4, 8):
            for t in range(3):
                a(f"v_add_f32 v{dst+t}, v{dst+t}, v{64+3*p+t}")
        if allw:
            a.vmem(f"buffer_store_dwordx4 v[{dst}:{dst+3}], v148, s[16:19], s{slot} offen{flags}", "pub")
        else:
            a(f"buffer_store_dwordx4 v[{dst}:{dst+3}], v10, s[16:19], s{slot} offen{flags}")
            a(f"L_{name}_nopub:")

    gA = 5
    W6 = P["w6"]
    NQ = 8 if W6 else 4

    stamp(0)
    if P.get("clk"):
        a("s_memtime s[74:75]")
    a("s_cmpk_ge_u32 s2, 256")
    a("s_cbranch_scc1 L_exit")
    a("s_load_dwordx2 s[4:5], s[0:1], 0")
    a("s_load_dwordx2 s[8:9], s[0:1], 16")
    a("s_load_dwordx2 s[12:13], s[0:1], 24")
    a("s_load_dwordx2 s[16:17], s[0:1], 104")
    a("s_getpc_b64 s[30:31]")
    a("L_pc:")
    a("s_lshr_b32 s25, s2, 3")
    if P["rperm"]:
        b = P["rperm"] - 1
        a(f"s_bfe_u32 s27, s25, {hex(0x10000 | b)}")
        a("s_lshl_b32 s27, s27, 4")
        a(f"s_and_b32 s28, s25, {(1 << b) - 1}")
        a("s_or_b32 s27, s27, s28")
        a(f"s_lshr_b32 s25, s25, {b+1}")
        a(f"s_lshl_b32 s25, s25, {b}")
        a("s_or_b32 s25, s25, s27")
    if P["rinv"]:
        a("s_xor_b32 s25, s25, 31")
    if P["cpf"] == 1:
        a("v_lshlrev_b32 v5, 7, v0")
    elif P["cpf"] == 2:
        a("v_and_b32 v5, 7, v0")
        a("v_lshl_add_u32 v5, s25, 3, v5")
        a("v_lshlrev_b32 v5, 7, v5")
    if P["cpf"]:
        a("v_min_u32 v5, L_codeend-L_pc-4, v5")
        a("global_load_dword v255, v5, s[30:31]")
    a("s_cmp_lt_u32 s25, 16")
    a("s_cbranch_scc1 L_A")
    a("s_cmp_ge_u32 s25, 28")
    a("s_cbranch_scc1 L_F")

    a.vm = []
    common_ids()
    srd(12, 0 if P.get("no_uk") else 9437184)
    a("s_sub_u32 s25, s25, 16")
    a("v_lshrrev_b32 v2, 3, v1")
    a("v_and_b32 v5, 7, v1")
    a("v_lshrrev_b32 v4, 5, v1")
    a("v_and_b32 v3, 3, v2")
    a("v_lshl_add_u32 v4, v4, 3, v3")
    a("v_mul_u32_u24 v4, 12288, v4")
    a("v_lshrrev_b32 v3, 1, v2")
    a("v_xor_b32 v3, v3, v5")
    a("v_lshl_add_u32 v6, v3, 4, v4")
    a("v_xor_b32 v7, 64, v6")
    a(f"v_add_u32 v7, {16*12288}, v7")
    a(f"s_mul_i32 s35, s25, {64*12288}")
    a("s_lshl_b32 s36, s24, 2")
    a("s_add_u32 s36, s36, s3")
    a("s_mul_i32 s27, s36, 384")
    a("s_add_u32 s35, s35, s27")
    a(f"s_mul_i32 s37, s3, {R1}")
    a("s_mov_b32 m0, s37")
    a("s_movk_i32 s38, 896")
    a("s_movk_i32 s39, 1280")
    a(f"s_mov_b32 s40, {4*12288}")
    a(f"s_mul_i32 s27, s25, {3*NQ}")
    a("v_lshrrev_b32 v8, 3, v0")
    a(f"v_min_u32 v8, {3*NQ-1}, v8")
    a("v_add_u32 v8, s27, v8")
    a(f"v_min_u32 v8, {32*NQ-1}, v8")
    a("v_lshlrev_b32 v8, 7, v8")
    a(f"s_mul_i32 s42, s24, {4096*NQ}")
    a(f"s_add_u32 s42, s42, {XQ}")
    a("s_waitcnt lgkmcnt(0)")
    tn = [0]

    def tile_dma(srdr, xor, tag, grp):
        n = tn[0]
        par, t = (n // 3) & 1, n % 3
        a.vmem(f"buffer_load_dwordx4 v{6+par}, s[{srdr}:{srdr+3}], s35 offen offset:{t*128} {NT} lds", (tag, n // grp))
        a(f"s_add_u32 m0, m0, s{39 if t == 2 else 38}")
        if n % 6 == 5 and n < 23:
            a("s_add_u32 s35, s35, s40")
            a(f"s_xor_b32 s40, s40, {xor}")
        tn[0] += 1

    XR = (4*12288) ^ (28*12288)
    uk = lambda: tile_dma(12, XR, "uk", 6)

    def h_setup():
        load_epoch()
        a("s_load_dwordx2 s[8:9], s[0:1], 32")
        a("s_load_dwordx2 s[20:21], s[0:1], 40")
        a("v_lshlrev_b32 v10, 4, v1")
        sel_masks(152, 3)
        a("v_and_b32 v2, 15, v1")
        a("v_lshrrev_b32 v3, 4, v1")
        a("v_lshrrev_b32 v4, 3, v2")
        a("v_mul_u32_u24 v4, 3072, v4")
        a("v_and_b32 v5, 7, v2")
        a("v_lshl_add_u32 v4, v5, 7, v4")
        a("v_lshrrev_b32 v5, 1, v2")
        a("v_xor_b32 v5, v5, v3")
        a("v_lshl_add_u32 v4, v5, 4, v4")
        a("v_add_u32 v8, s37, v4")
        a("v_xad_u32 v9, v4, 64, s37")
        a(f"s_mul_i32 s41, s36, {1024*NQ}")
        a(f"s_add_u32 s41, s41, {XQ}")
        a("s_add_u32 s45, s41, 4096")
        a("s_lshl_b32 s27, s3, 9")
        a(f"s_add_u32 s27, s27, {R2+12288}")
        a("v_lshl_add_u32 v11, v1, 1, s27")
        a("v_lshl_add_u32 v12, v3, 4, s27")
        a("v_lshrrev_b32 v4, 1, v3")
        a("v_lshl_add_u32 v4, v2, 1, v4")
        a("v_lshlrev_b32 v4, 10, v4")
        a("v_and_b32 v5, 1, v3")
        a("v_lshl_add_u32 v13, v5, 6, v4")
        a("s_lshl_b32 s42, s25, 12")
        a("s_lshl_b32 s27, s24, 7")
        a("s_add_u32 s42, s42, s27")
        a(f"s_lshl_b32 s27, s3, {10 if P['qa_lines'] else 4}")
        a("s_add_u32 s42, s42, s27")
        a(f"s_add_u32 s42, s42, {XQA}")
        if P["qa_lines"]:
            a("v_lshl_add_u32 v4, v2, 2, v3")
            a("s_lshl_b32 s27, s3, 4")
            a(f"s_add_u32 s27, s27, {R2+11264}")
            a("v_lshl_add_u32 v14, v4, 6, s27")
            a("s_lshl_b32 s27, s3, 7")
            a(f"s_add_u32 s27, s27, {R2+11264}")
            a("v_add_u32 v15, s27, v10")
        tail_setup(25, 2, 3, 4)
        a("v_mov_b32 v163, v10")
        a("v_lshlrev_b32 v4, 9, v1")
        only_if(150, 3, 32, 4)
        a("s_lshr_b32 s82, s24, 1")
        a("s_lshl_b32 s82, s82, 7")
        a(f"s_add_u32 s82, s82, {XN2}")
        a("s_waitcnt lgkmcnt(0)")
        make_tag()
        srd(8, 0 if P.get("no_uv") else 9437184)
        srd(20, 0 if P.get("no_wo") else 7864320)

    def uk_read(T):
        for kk in range(6):
            q = (T * 6 + kk) * 4
            a(f"ds_read_b128 a[{q}:{q+3}], v{8+(kk&1)} offset:{T*6144+(kk>>1)*1024}")

    def xq_loads(tag):
        for mq in range(NQ):
            t = f"buffer_load_dwordx4 v[{16+4*mq}:{19+4*mq}], v10, s[16:19], s{41 if mq < 4 else 45} offen offset:{(mq&3)*1024} sc1"
            if tag:
                a.vmem(t, tag)
            else:
                a(t)

    def xq_check():
        a("v_min3_u32 v4, s26, v19, v23")
        a("v_max3_u32 v5, s26, v19, v23")
        for mq in range(2, NQ, 2):
            a(f"v_min3_u32 v4, v4, v{19+4*mq}, v{23+4*mq}")
            a(f"v_max3_u32 v5, v5, v{19+4*mq}, v{23+4*mq}")
        a("v_cmp_ne_u32 vcc, v4, v5")

    dh = lambda: P["dH1"] if tn[0] < P["nH1"] else P["dH"]
    def wq_help():
        ng = P["wq_pf"]
        per = 8 * ng * 16
        k = (2 * per + 47) // 48
        srd(8, 7864320)
        a("s_lshr_b32 s27, s8, 7")
        a("s_mul_i32 s28, s24, 12")
        a("s_add_u32 s27, s27, s28")
        a("s_sub_u32 s27, 3, s27")
        a("s_and_b32 s27, s27, 7")
        a("s_cmp_lt_u32 s27, 4")
        a(f"s_cselect_b32 s43, {k}, {(k+1)//2}")
        a("s_cselect_b32 s44, 2, 1")
        a(f"s_mulk_i32 s44, {per}")
        a("s_sub_u32 s44, s44, 1")
        a("s_add_u32 s27, s27, s28")
        a("s_lshl_b32 s27, s27, 7")
        a(f"s_add_u32 s27, s27, {(40-8*ng)*12288}")
        a("s_lshl2_add_u32 s28, s25, s3")
        a("s_mul_i32 s28, s28, s43")
        a("s_sub_u32 s43, s43, 1")
        a("v_min_u32 v9, s43, v1")
        a("v_add_u32 v9, s28, v9")
        a("v_min_u32 v9, s44, v9")
        a(f"s_mov_b32 s28, {(1 << 32) // (8*ng) + 1}")
        a("v_mul_hi_u32 v11, v9, s28")
        a(f"v_mul_u32_u24 v12, {8*ng}, v11")
        a("v_sub_u32 v9, v9, v12")
        a("v_and_b32 v12, 15, v11")
        a("v_mad_u32_u24 v9, v12, 40, v9")
        a("v_mul_u32_u24 v9, 12288, v9")
        a("v_lshrrev_b32 v11, 4, v11")
        a("v_lshl_add_u32 v9, v11, 10, v9")
        a.vmem("buffer_load_dword v18, v9, s[8:11], s27 offen", "pt")

    uk()
    uk()
    if P["wq_pf"]:
        wq_help()
    a.vmem("buffer_load_dword v17, v8, s[16:19], s42 offen sc1", "pt")
    while tn[0] <= dh():
        uk()
    h_setup()
    while tn[0] < 24:
        throttle(dh() + (sum(t == "xq" for t in a.vm[-(dh()+NQ):])))
        uk()
        if tn[0] == P["x1_at"]:
            xq_loads("xq")
            flag_load(0)
    stamp(1)
    rd = [0]

    def uk_ready():
        while rd[0] < 4 and ("uk", rd[0]) not in a.vm:
            uk_read(rd[0])
            rd[0] += 1

    won = 0
    uk_ready()
    if P["x1_at"] > 24:
        throttle(P["x1_wait"])
        xq_loads("xq")
        flag_load(0)
    stamp(2)
    uk_ready()
    while rd[0] < 4 and "xq" in a.vm and a.vm_n(("uk", rd[0])) > a.vm_n("xq"):
        a.wait_vm(("uk", rd[0]))
        uk_ready()
    if "xq" in a.vm:
        a.wait_vm("xq", " lgkmcnt(0)")
    else:
        a("s_waitcnt lgkmcnt(0)")
    flag_check("H", 0)
    stamp(3)
    xq_check()
    a("s_cbranch_vccnz L_H_xq_slow")
    a("L_H_xq_ok:")
    stamp(4)
    if P["n2"] == 3:
        notice(150, 82)
    slow.append("\n".join(["L_H_xq_slow:", "s_mov_b32 s28, 0", "L_H_xq_loop:", "s_add_u32 s29, s29, 1",
                           ] + cap(xq_loads, None) +
                          ["s_add_u32 s28, s28, 1", "s_waitcnt vmcnt(0)"] + cap(xq_check) +
                          ["s_cbranch_vccz L_H_xq_ok", f"s_cmp_lt_u32 s28, {SPIN}", "s_cbranch_scc1 L_H_xq_loop", "s_branch L_H_xq_ok"]))
    for k in range(3):
        a(f"v_add_f32 v{16+k}, v{16+k}, v{20+k}")
        a(f"v_add_f32 v{24+k}, v{24+k}, v{28+k}")
    if NQ == 8:
        for k in range(3):
            a(f"v_add_f32 v{32+k}, v{32+k}, v{36+k}")
            a(f"v_add_f32 v{40+k}, v{40+k}, v{44+k}")
        for k in range(3):
            a(f"v_add_f32 v{16+k}, v{16+k}, v{32+k}")
            a(f"v_add_f32 v{24+k}, v{24+k}, v{40+k}")
    for k in range(3):
        a(f"v_add_f32 v{16+k}, v{16+k}, v{24+k}")
    a("v_cvt_pk_bf16_f32 v16, v16, v17")
    a("v_cvt_pk_bf16_f32 v18, v18, v18")
    a("ds_write_b16 v11, v16")
    a("ds_write_b16_d16_hi v11, v16 offset:128")
    a("ds_write_b16 v11, v18 offset:256")
    for kk in range(6):
        a(f"ds_read_b128 v[{32+4*kk}:{35+4*kk}], v12 offset:{kk*64}")

    def qa_mfma(T, kk):
        q = (T * 6 + kk) * 4
        c = "0" if kk == 0 else f"v[{16+4*T}:{19+4*T}]"
        a(f"v_mfma_f32_16x16x32_bf16 v[{16+4*T}:{19+4*T}], a[{q}:{q+3}], v[{32+4*kk}:{35+4*kk}], {c}")

    have = rd[0]
    for kk in range(6):
        a(f"s_waitcnt lgkmcnt({5-kk})")
        for T in range(have):
            qa_mfma(T, kk)
    while rd[0] < 4:
        T = rd[0]
        if ("uk", T) in a.vm:
            a.wait_vm(("uk", T))
        uk_read(T)
        rd[0] += 1
        for kk in range(6):
            a(f"s_waitcnt lgkmcnt({5-kk})")
            qa_mfma(T, kk)
    if P["n2"] == 2:
        a("s_barrier")
        notice(150, 82)
    a("v_cmp_eq_u32 vcc, 1, v2")
    a(f"s_mov_b32 s27, {f32(math.log2(math.e)/math.sqrt(192))}")
    a("s_mov_b32 exec_lo, 0x30003")
    a("s_mov_b32 exec_hi, 0x30003")
    for k in range(8):
        a(f"v_cndmask_b32 v{16+k}, v{16+k}, v{24+k}, vcc")
    for k in range(8):
        a(f"v_mul_f32 v{16+k}, s27, v{16+k}")
    for k in range(4):
        a(f"v_cvt_pk_bf16_f32 v{24+k}, v{16+2*k}, v{17+2*k}")
    a("v_min_u32 v27, -2, v27")
    if P["qa_lines"]:
        a("ds_write_b128 v14, v[24:27]")
        a("s_mov_b64 exec, 0xff")
        a("s_waitcnt lgkmcnt(0)")
        a("s_barrier")
        a("ds_read_b128 v[24:27], v15")
        if P["n2"] == 4:
            a("s_mov_b64 exec, -1")
            notice(150, 82)
            a("s_mov_b64 exec, 0xff")
        a("s_waitcnt lgkmcnt(0)")
        a.vmem("buffer_store_dwordx4 v[24:27], v10, s[16:19], s42 offen sc1", "pub")
    else:
        a.vmem("buffer_store_dwordx4 v[24:27], v13, s[16:19], s42 offen sc1", "pub")
    a("s_mov_b64 exec, -1")
    stamp(5)
    a("s_barrier")
    if P["n2"] == 1:
        notice(150, 82)
    stamp(6)
    a("s_cmp_lt_u32 s25, 8")
    a("s_cselect_b32 s44, 16, 4")
    a("s_cselect_b32 s45, 4, 8")
    a("s_cselect_b32 s40, 8, 48")
    a(f"s_cselect_b32 s46, {(8*12288) ^ (40*12288)}, 0")
    a("s_cselect_b32 s27, 1, 2")
    a(f"s_cselect_b32 s28, 0, {32*12288}")
    a("s_mulk_i32 s45, 12288")
    a("s_mulk_i32 s40, 12288")
    a("s_and_b32 s35, s25, 7")
    a("s_mul_i32 s35, s35, s27")
    a(f"s_mul_i32 s35, s35, {96*12288}")
    a("s_add_u32 s35, s35, s28")
    a("s_mul_i32 s27, s36, 384")
    a("s_add_u32 s35, s35, s27")
    a("v_lshrrev_b32 v4, 5, v1")
    a("v_bfe_u32 v5, v1, 3, 2")
    a("v_mad_u32_u24 v4, v4, s44, v5")
    a("v_mul_u32_u24 v4, 12288, v4")
    a("v_and_b32 v5, 2, v5")
    a("v_xor_b32 v5, v5, v1")
    a("v_and_b32 v5, 7, v5")
    a("v_lshl_add_u32 v6, v5, 4, v4")
    a("v_xad_u32 v7, v6, 64, s45")
    a("s_mov_b32 m0, s37")
    same_add("H")
    tn[0] = 0
    while tn[0] < 24:
        throttle(P["dV1"] if tn[0] < P["nV1"] else P["dV"])
        tile_dma(8, "s46", "uv", 12)
    a("v_mul_u32_u24 v4, 3072, v3")
    a("v_lshrrev_b32 v5, 2, v2")
    a("v_lshl_add_u32 v4, v5, 7, v4")
    a("v_and_b32 v5, 2, v5")
    a("v_and_b32 v12, 1, v3")
    a("v_lshl_or_b32 v5, v12, 2, v5")
    a("v_bfe_u32 v12, v1, 1, 1")
    a("v_or_b32 v5, v5, v12")
    a("v_lshl_add_u32 v4, v5, 4, v4")
    a("v_and_b32 v12, 1, v1")
    a("v_lshl_add_u32 v4, v12, 3, v4")
    a("v_add_u32 v8, s37, v4")
    a("v_xad_u32 v9, v4, 32, s37")
    a("v_xad_u32 v14, v4, 64, s37")
    a("v_xor_b32 v4, 64, v4")
    a("v_xad_u32 v15, v4, 32, s37")
    a("v_lshrrev_b32 v5, 3, v1")
    a("v_lshrrev_b32 v4, 1, v5")
    a("v_xor_b32 v4, v4, v1")
    a("v_and_b32 v4, 7, v4")
    a("v_lshlrev_b32 v4, 4, v4")
    a("v_mul_u32_u24 v5, 1536, v5")
    a("v_add_u32 v24, v4, v5")
    a("v_xor_b32 v4, 64, v4")
    a(f"v_add_u32 v4, {8*1536}, v4")
    a("v_add_u32 v25, v4, v5")
    a("s_mul_i32 s40, s36, 24576")
    a("s_lshl_b32 s27, s25, 7")
    a("s_add_u32 s40, s40, s27")
    a(f"s_add_u32 s40, s40, {XO}")
    a("s_lshl_b32 s41, s3, 11")
    a(f"s_add_u32 s41, s41, {R2+2048}")
    a("v_lshrrev_b32 v4, 1, v2")
    a("v_xor_b32 v4, v4, v3")
    a("v_lshlrev_b32 v4, 4, v4")
    a("v_lshl_add_u32 v5, v2, 7, s41")
    a("v_add_u32 v26, v4, v5")
    a("v_xad_u32 v27, v4, 64, v5")
    a("v_lshrrev_b32 v36, 2, v1")
    a("v_lshlrev_b32 v36, 8, v36")
    a("s_lshl_b32 s27, s25, 1")
    a("s_sub_u32 s27, s27, 16")
    a("s_cmp_lt_u32 s25, 8")
    a("s_cselect_b32 s27, s25, s27")
    a("s_cselect_b32 s89, 0, 128")
    a("s_lshl_b32 s42, s27, 12")
    a("s_lshl_b32 s28, s36, 3")
    a("s_add_u32 s42, s42, s28")
    a(f"s_add_u32 s42, s42, {XML}")
    a("s_lshl_b32 s28, s24, 3")
    a("s_add_u32 s27, s27, s28")
    a("s_lshl_b32 s27, s27, 7")
    a(f"s_add_u32 s27, s27, {XN3}")
    cnt_base(27)
    a("s_mul_i32 s43, s36, 12")
    a("s_add_u32 s43, s43, s25")
    a("s_lshl_b32 s43, s43, 10")
    a(f"s_add_u32 s43, s43, {XC}")
    a("v_mov_b32 v31, s26")
    tr_done = [0]

    def uv_ready():
        while tr_done[0] < 2 and ("uv", tr_done[0]) not in a.vm:
            st = tr_done[0]
            for T in range(12):
                for b in range(2):
                    q = (T * 2 + st) * 4 + 2 * b
                    a(f"ds_read_b64_tr_b16 a[{q}:{q+1}], v{(8, 9, 14, 15)[T&3]} offset:{st*12288+(T>>2)*1024+b*512}")
            tr_done[0] += 1

    uv_ready()
    if P["h1_early"]:
        same_load()
        flag_load(1)
    while won < 15 - P["wo_late"]:
        throttle(P["dV"])
        wo_load(won)
        won += 1
    if not P["h1_early"]:
        same_load()
        flag_load(1)
    while tr_done[0] < 2:
        if ("uv", tr_done[0]) in a.vm:
            a.wait_vm(("uv", tr_done[0]))
        uv_ready()
    stamp(7)
    OA = 48
    AC = 64
    D = " row_mask:0xf bank_mask:0xf"

    def allred(op, v):
        a(f"{op} v{v}, v{v}, v{v} row_ror:8{D}")
        for sw in ("32", "16"):
            a(f"v_mov_b32 v5, v{v}")
            a(f"v_permlane{sw}_swap_b32 v{v}, v5")
            a(f"{op} v{v}, v{v}, v5")

    def weights():
        a(f"v_max_f32 v4, v40, v40 row_ror:4{D}")
        allred("v_max_f32", 4)
        a("v_sub_f32 v16, v40, v4")
        a("v_exp_f32 v16, v16")

    def norm():
        a("v_mul_f32 v17, v16, v41")
        a(f"v_add_f32 v17, v17, v17 row_ror:4{D}")
        allred("v_add_f32", 17)
        a("v_rcp_f32 v17, v17")

    a("s_waitcnt lgkmcnt(0)")
    flag_check("H1", 1)
    a("s_cmp_lg_u32 s3, 0")
    a("s_cbranch_scc1 L_H_n3_out")
    if P["rep3"] > 1:
        poll_multi("H_n3", P["rep3"], "s89", 15, P["pipe3"])
    else:
        poll_cnt("H_n3", ["0", "s89"], 15, 0)
    a("s_barrier")
    stamp(10)
    a("s_mov_b32 s28, 0")

    def x3_loads():
        a("s_mov_b32 m0, s41")
        a("s_add_u32 s28, s28, 1")
        a("buffer_load_dwordx4 v24, s[16:19], s40 offen sc1 lds")
        a("s_add_u32 m0, m0, 1024")
        a("s_add_u32 s29, s29, 0x1000000")
        a("buffer_load_dwordx4 v25, s[16:19], s40 offen sc1 lds")
        a("buffer_load_dwordx2 v[40:41], v36, s[16:19], s42 offen sc1")

    x3_loads()
    nl8 = P["wo_late"]
    if nl8:
        a("s_barrier")
    while won < 15:
        wo_load(won)
        won += 1
    a(f"s_waitcnt vmcnt({1+nl8})")
    a("L_H_x3:")
    for st in range(2):
        a(f"ds_read_b128 v[{OA+4*st}:{OA+4*st+3}], v{26+st}")
    a(f"s_waitcnt vmcnt({nl8})")
    weights()
    a("s_waitcnt lgkmcnt(0)")
    a.vm = []
    slow.append("\n".join(["L_H_x3_retry:", f"s_cmp_ge_u32 s28, {SPIN}", "s_cbranch_scc1 L_H_x3_ok"] + cap(x3_loads) +
                           ["s_waitcnt vmcnt(0)", "s_branch L_H_x3"]))
    stamp(8)
    fill = [f"v_max3_u32 v39, v41, v{OA+1}, v{OA+3}", f"v_max3_u32 v39, v39, v{OA+5}, v{OA+7}",
            "v_cmp_eq_u32 vcc, -1, v39", "s_cbranch_vccnz L_H_x3_retry\nL_H_x3_ok:"]
    nl = cap(norm)

    def post(T):
        o = [f"v_mul_f32 v{AC+4*T}, v16, v{AC+4*T} row_newbcast:0{D}"]
        for r in range(1, 4):
            o.append(f"v_fmac_f32 v{112+T}, v16, v{AC+4*T+r} row_newbcast:{4*r}{D}")
        o[0] = f"v_mul_f32 v{112+T}, v16, v{AC+4*T} row_newbcast:0{D}"
        return o

    def fold(Q):
        b = 112 + 4 * Q
        return [f"v_permlane32_swap_b32 v{b}, v{b+2}", f"v_permlane32_swap_b32 v{b+1}, v{b+3}",
                f"v_add_f32 v{b}, v{b}, v{b+2}", f"v_add_f32 v{b+1}, v{b+1}, v{b+3}",
                f"v_permlane16_swap_b32 v{b}, v{b+1}", f"v_add_f32 v{b}, v{b}, v{b+1}", f"v_mul_f32 v{28+Q}, v{b}, v17"]

    def mix(*lists):
        o = []
        lists = [list(l) for l in lists]
        while any(lists):
            for l in lists:
                if l:
                    o.append(l.pop(0))
        return o

    for T in range(12):
        if T in (1, 2):
            fill += nl[:4] if T == 1 else []
        if T >= 3 and T & 1:
            fill += mix(post(T - 3), post(T - 2))
        for st in range(2):
            q = (T * 2 + st) * 4
            c = "0" if st == 0 else f"v[{AC+4*T}:{AC+4*T+3}]"
            a(f"v_mfma_f32_16x16x32_bf16 v[{AC+4*T}:{AC+4*T+3}], v[{OA+4*st}:{OA+4*st+3}], a[{q}:{q+3}], {c}")
            for k in range(2):
                if fill:
                    a(fill.pop(0))
    for l in mix(fill, nl[4:]) + mix(fold(0)[:6], fold(1)[:6], mix(post(10), post(11))) + mix(fold(2), fold(0)[6:] + fold(1)[6:]):
        a(l)
    a(f"buffer_store_dwordx4 v[28:31], v10, s[16:19], s43 offen{LOC}")
    stamp(9)
    tail()
    dump_stamps()
    a("L_exit:")
    a("s_endpgm")

    a(".p2align 8")
    a("L_A:")
    role[0] = "A"
    a.vm = []
    common_ids()
    srd(4, 1280)
    srd(8, 0 if P.get("no_wq") else 7864320)
    a("v_lshrrev_b32 v2, 3, v1")
    a("v_and_b32 v5, 7, v1")
    a("v_mul_u32_u24 v6, 12288, v2")
    a("v_lshl_add_u32 v6, v5, 4, v6")
    if W6:
        a("s_and_b32 s46, s25, 7")
        a("s_and_b32 s27, s3, 1")
        a("s_lshl1_add_u32 s46, s46, s27")
        a("s_lshr_b32 s27, s25, 3")
        a("s_lshl1_add_u32 s88, s24, s27")
        a("s_lshr_b32 s27, s3, 1")
        a("s_lshl1_add_u32 s27, s88, s27")
    else:
        a("s_and_b32 s46, s25, 3")
        a("s_lshl2_add_u32 s46, s46, s3")
        a("s_lshr_b32 s27, s25, 2")
        a("s_lshl2_add_u32 s27, s24, s27")
    a(f"s_mul_i32 s44, s46, {8*gA*12288}")
    a(f"s_mul_i32 s35, s46, {16*gA}")
    a("v_lshlrev_b32 v7, 1, v2")
    a("s_mul_i32 s27, s27, 384")
    a("s_add_u32 s44, s44, s27")
    a(f"s_mov_b32 s45, {8*12288}")
    a("s_waitcnt lgkmcnt(0)")
    dQ = P["dQ"]
    wq = 0
    while wq < min(3 * gA, dQ + 1):
        if wq == P["x_at"]:
            x_stats_loads(8)
            x_rows(13, 35, gA)
        rows_load(wq, gA, 0, 6, 8, "wq")
        wq += 1
    stamp(1)
    load_epoch()
    a("s_load_dwordx2 s[12:13], s[0:1], 8")
    a("s_load_dwordx2 s[84:85], s[0:1], 88")
    a("s_lshl_b32 s89, s24, 4")
    a("s_add_u32 s89, s89, s25")
    if W6:
        a("s_lshl_b32 s88, s88, 4")
        a("s_and_b32 s27, s25, 7")
        a("s_add_u32 s88, s88, s27")
        a("s_lshl_b32 s88, s88, 10")
    else:
        a("s_lshl_b32 s88, s89, 10")
    a(f"s_add_u32 s88, s88, {XQ}")
    sel_masks(152, 3)
    a("v_lshlrev_b32 v149, 4, v1")
    only_if(148, 3, 64, 149)
    if W6:
        a("v_add_u32 v150, 8192, v149")
        a("v_add_u32 v149, 8192, v148")
    a("v_lshrrev_b32 v3, 1, v2")
    a("v_xor_b32 v3, v3, v5")
    a("v_mul_u32_u24 v4, 1536, v2")
    a("v_lshl_add_u32 v62, v3, 4, v4")
    a("v_xor_b32 v63, 64, v62")
    a(f"v_add_u32 v63, {8*1536}, v63")
    a(f"s_mul_i32 s35, s89, {64*1536}")
    a("s_mul_i32 s28, s3, 384")
    a("s_add_u32 s35, s35, s28")
    for p in range(4):
        a(f"s_xor_b32 s28, s3, {p}")
        a(f"s_mul_i32 s28, s28, {16*1536}")
        a(f"s_add_u32 s{96+p}, s35, s28")
    a(f"s_mul_i32 s37, s3, {R1}")
    a("s_mov_b32 m0, s37")
    a("s_movk_i32 s100, 896")
    a("s_movk_i32 s101, 1280")
    a.wait_vm("x", " lgkmcnt(0)")
    make_tag()
    srd(12, 0 if P.get("no_ck") else 12582912)
    fill = cap(ln_stats, 8, 24) + cap(sel_ops, 13, 24, gA) + cap(red_addrs)
    while wq < 3 * gA and len(a.vm) <= dQ:
        rows_load(wq, gA, 0, 6, 8, "wq")
        wq += 1
    rem = 3 * gA - wq
    per = (len(fill) + rem) // (rem + 1) if rem else len(fill)
    while wq < 3 * gA:
        pop_n(fill, per)
        a.wait_vm_n(dQ)
        rows_load(wq, gA, 0, 6, 8, "wq")
        wq += 1
    for l in fill:
        a(l)
    a("s_load_dwordx2 s[8:9], s[0:1], 80")
    ck = [0]

    def ckv_dma():
        n = ck[0]
        p, par, t = n // 6, (n // 3) & 1, n % 3
        a.vmem(f"buffer_load_dwordx4 v{62+par}, s[12:15], s{96+p} offen offset:{t*128} {P['ckf']} lds", ("ck", n // 12))
        a(f"s_add_u32 m0, m0, s{101 if t == 2 else 100}")
        ck[0] += 1

    dck = lambda: P["dC1"] if ck[0] < P["nC1"] else P["dC"]
    rows_finish("A_q", gA, 24, 0, "wq", ckv_dma, P["a_first"], dQ, 232, 88, LOC, lambda: stamp(2), allw=P['prog'] or W6, two=W6)
    if P["q_bar"]:
        a("s_barrier")
    stamp(3)
    checked = False
    for k in range(dck() + 1):
        throttle(dck())
        ckv_dma()
    a("s_lshl_b32 s27, s25, 2")
    a("s_add_u32 s27, s27, s3")
    a("s_lshl_b32 s42, s27, 10")
    a(f"s_mul_i32 s28, s24, {PM}")
    a("s_add_u32 s42, s42, s28")
    a(f"s_add_u32 s42, s42, {XP}")
    a("s_lshl_b32 s43, s25, 9")
    a("s_add_u32 s43, s43, s28")
    a("s_lshl_b32 s27, s3, 2")
    a("s_add_u32 s43, s43, s27")
    a(f"s_add_u32 s43, s43, {XM}")
    a("v_lshrrev_b32 v3, 5, v1")
    a("v_lshl_or_b32 v32, v3, 29, v10")

    def a_setup():
        a("v_and_b32 v2, 31, v1")
        a("v_lshrrev_b32 v3, 5, v1")
        a("v_lshrrev_b32 v4, 3, v2")
        a("v_mul_u32_u24 v4, 3072, v4")
        a("v_lshl_add_u32 v4, v5, 7, v4")
        a("v_bfe_u32 v11, v2, 1, 3")
        a("v_xor_b32 v11, v11, v3")
        a("s_and_b32 s28, s25, 3" if P["qrot"] else "s_mov_b32 s28, 0")
        a("s_lshl_b32 s27, s28, 1")
        a("v_xor_b32 v11, s27, v11")
        a("v_lshl_add_u32 v4, v11, 4, v4")
        a("v_add_u32 v20, s37, v4")
        a("v_xad_u32 v21, v4, 32, s37")
        a("v_xad_u32 v22, v4, 64, s37")
        a("v_xor_b32 v4, 64, v4")
        a("v_xad_u32 v23, v4, 32, s37")
        a("v_lshrrev_b32 v4, 2, v2")
        a("v_lshlrev_b32 v4, 7, v4")
        a("v_lshl_add_u32 v4, v3, 6, v4")
        a("v_and_b32 v11, 3, v1")
        a("v_lshl_add_u32 v24, v11, 4, v4")
        for k in range(4):
            a(f"s_xor_b32 s27, s28, {k}")
            a(f"v_lshl_add_u32 v{224+k}, s27, 10, v24")
        a("s_mul_i32 s38, s3, 12288")
        a(f"s_add_u32 s38, s38, {XQA}")
        a("s_add_u32 s39, s38, 4096")
        a("s_add_u32 s40, s38, 8192")
        a("s_mov_b32 s27, 0x15555556")
        for m in range(3):
            a(f"v_add_u32 v4, {64*m}, v1")
            a("v_mul_hi_u32 v11, v4, s27")
            a(f"v_mul_u32_u24 v11, {1536-192}, v11")
            a(f"v_lshl_add_u32 v{25+m}, v4, 4, v11")
        a("s_lshr_b32 s27, s25, 3")
        a("s_lshl_b32 s35, s24, 1")
        a("s_add_u32 s35, s35, s27")
        a("s_and_b32 s36, s25, 7")
        a("s_lshl_b32 s27, s35, 2")
        a("s_add_u32 s27, s27, s3")
        a(f"s_mul_i32 s41, s27, {128*1536}")
        a("s_mul_i32 s27, s36, 192")
        a("s_add_u32 s41, s41, s27")
        a(f"s_movk_i32 s46, 1024")
        a(f"s_movk_i32 s47, {16*1536}")
        for p in range(1, 4):
            a(f"s_xor_b32 s27, s3, {p}")
            a("s_mul_i32 s27, s27, 6144")
            a(f"s_add_u32 s27, s27, {R2+(p-1)*2048}")
            a(f"v_add_u32 v{27+p}, s27, v10")
        a("s_mul_i32 s27, s3, 6144")
        a(f"s_add_u32 s27, s27, {R2}")
        a("v_add_u32 v31, s27, v10")
        a("v_and_b32 v18, 15, v1")
        a("v_lshrrev_b32 v19, 4, v1")
        a("v_lshlrev_b32 v4, 13, v19")
        a("v_lshl_add_u32 v33, v18, 4, v4")
        a("v_lshlrev_b32 v4, 10, v19")
        a("v_lshl_add_u32 v34, v18, 4, v4")
        a("s_lshr_b32 s27, s3, 1")
        a("s_and_b32 s28, s3, 1")
        a("s_lshl_b32 s44, s35, 15")
        a("s_lshl_b32 s20, s24, 13")
        a("s_add_u32 s44, s44, s20")
        a("s_lshl_b32 s20, s27, 8")
        a("s_add_u32 s44, s44, s20")
        a(f"s_add_u32 s44, s44, {XP}")
        a("s_add_u32 s45, s44, 4096")
        a("s_lshl_b32 s20, s35, 12")
        a("s_lshl_b32 s21, s24, 16")
        a("s_add_u32 s20, s20, s21")
        a("s_lshl_b32 s21, s27, 8")
        a("s_add_u32 s20, s20, s21")
        a(f"s_add_u32 s20, s20, {XM}")
        a(f"v_mul_u32_u24 v4, {R1}, v19")
        a("v_lshrrev_b32 v11, 2, v18")
        a("v_mul_u32_u24 v11, 192, v11")
        a("v_add_u32 v4, v4, v11")
        a("v_and_b32 v11, 3, v1")
        a("v_lshl_add_u32 v4, v11, 3, v4")
        a("s_mul_i32 s21, s28, 96")
        a("v_add_u32 v35, s21, v4")
        a("v_lshl_add_u32 v36, v18, 2, v19")
        a("v_lshlrev_b32 v36, 2, v36")
        a("v_lshrrev_b32 v4, 2, v1")
        a("v_mul_u32_u24 v4, 24576, v4")
        a("v_lshl_add_u32 v37, v11, 4, v4")
        a("v_lshl_add_u32 v38, v11, 3, v4")
        a(f"s_mul_i32 s21, s27, {16*24576}")
        a("s_mul_i32 s22, s35, 1536")
        a("s_add_u32 s21, s21, s22")
        a(f"s_add_u32 s21, s21, {XO}")
        a("s_lshl_b32 s23, s36, 1")
        a("s_add_u32 s23, s23, s28")
        a("s_lshl_b32 s22, s23, 5")
        a("s_add_u32 s22, s22, s21")
        a("s_add_u32 s22, s22, 1024")
        a("s_lshl_b32 s28, s23, 6")
        a("s_add_u32 s21, s21, s28")
        a("s_lshl_b32 s35, s35, 8")
        a("s_lshl_b32 s27, s27, 7")
        a("s_add_u32 s35, s35, s27")
        a("s_lshl_b32 s27, s36, 12")
        a("s_add_u32 s35, s35, s27")
        a(f"s_add_u32 s35, s35, {XML}")
        for k in range(4):
            a(f"v_mov_b32 v{40+k}, 0x3f803f80")
        a("s_lshl_b32 s81, s36, 7")
        a(f"s_add_u32 s81, s81, {XN3}")
        a("v_mov_b32 v161, 1")
        a("v_lshlrev_b32 v4, 10, v1")
        only_if(162, 3, 16 if P["f_gate"] else 8 * P["rep3"], 4)
        a("s_and_b32 s23, s3, 1")
        a("v_lshlrev_b32 v4, 3, v1")
        only_if(39, 23, 16, 4)
        a("s_lshr_b32 s27, s89, 2")
        a("s_lshl_b32 s27, s27, 9")
        a(f"s_add_u32 s27, s27, {XN2}")
        cnt_base(27)
        srd(8, 1280)
        srd(84, 1280)
        if P["n_pf"]:
            n = P["n_pf"]
            a("s_lshl2_add_u32 s27, s25, s3")
            a(f"s_mulk_i32 s27, {30*n}")
            a(f"v_min_u32 v4, {30*n-1}, v1")
            a("v_add_u32 v4, s27, v4")
            a(f"s_mov_b32 s27, {(1 << 32) // (640*n) + 1}")
            a("v_mul_hi_u32 v11, v4, s27")
            a(f"v_mul_u32_u24 v11, {1920-640*n}, v11")
            a("v_add_lshl_u32 v208, v4, v11, 7")

    fill = cap(a_setup)
    rem = 24 - ck[0]
    per = (len(fill) + rem - 1) // rem
    while ck[0] < 24:
        pop_n(fill, per)
        throttle(dck())
        ckv_dma()
        if ck[0] == P["a_flag_at"]:
            flag_load(P["a_lvl"])
        if ck[0] == P["a_flag_at"] + 4:
            a("s_waitcnt lgkmcnt(0)")
            flag_check("A", P["a_lvl"])
            same_add("A")
            checked = True
        if P["n2"] and ck[0] == P["n2_at"]:
            assert checked
            pop_n(fill, 999)
            a("s_cmp_lg_u32 s3, 0")
            a("s_cbranch_scc1 L_A_nolook")
            for k in range(4):
                a(f"s_load_dword s{(92, 94, 95, 83)[k]}, s[90:91], {128*k} glc")
            a("L_A_nolook:")
    assert checked
    assert not fill
    stamp(4)
    XQRE = "buffer_store_dwordx4 v[232:235], v10, s[16:19], s88 offen sc1"
    if W6:
        XQRE += "\nbuffer_store_dwordx4 v[228:231], v150, s[16:19], s88 offen sc1"
    CA = 160
    QA = 64
    SA = 112

    def ck_read(kt):
        for kk in range(12):
            q = CA + (kt * 12 + kk) * 4
            a(f"ds_read_b128 a[{q}:{q+3}], v{20+(kk&3)} offset:{kt*12288+(kk>>2)*1024}")

    def qa_load(kk):
        return f"buffer_load_dwordx4 v[{QA+4*kk}:{QA+4*kk+3}], v{224+(kk&3)}, s[16:19], s{38+(kk>>2)} offen sc1"

    def s_mfma(kk):
        for kt in range(2):
            q = CA + (kt * 12 + kk) * 4
            c = f"v[{SA+16*kt}:{SA+16*kt+15}]" if kk or P["prog"] else "0"
            a(f"v_mfma_f32_32x32x16_bf16 v[{SA+16*kt}:{SA+16*kt+15}], a[{q}:{q+3}], v[{QA+4*kk}:{QA+4*kk+3}], {c}")

    l2 = [0]

    def l2_dma():
        n = l2[0]
        if not P.get("no_l2") or (P.get("no_l2") == 2 and n % 2):
            a.vmem(f"buffer_load_dwordx4 v{25+n%3}, s[12:15], s41 offen {P['l2f']} lds", ("l2", n // 12))
        a("s_add_u32 m0, m0, s46")
        if n % 3 == 2:
            a("s_add_u32 s41, s41, s47")
        l2[0] += 1

    trn = [0]

    def tr_read():
        n = trn[0]
        s, T, b = n // 6, (n // 2) % 3, n & 1
        q = (s * 3 + T) * 4 + 2 * b
        a(f"ds_read_b64_tr_b16 a[{q}:{q+1}], v35 offset:{(16*(s>>1)+4*(s&1)+8*b)*192+32*T}")
        trn[0] += 1

    a("s_waitcnt lgkmcnt(0)")
    if ("ck", 0) in a.vm:
        a.wait_vm(("ck", 0))
    ck_read(0)
    a("s_mov_b32 m0, s37")
    if P["n_pf"]:
        a("s_load_dwordx2 s[96:97], s[0:1], 40")
        srd(96, 7864320)
        a("s_mul_i32 s100, s24, 983040")
        a(f"s_add_u32 s100, s100, {(3-P['n_pf'])*81920}")
    if P["prog"]:
        for k in range(32):
            a(f"v_mov_b32 v{SA+k}, 0")
        a("s_mov_b32 s82, 0")
    throttle(P["a_x2_wait"])
    stamp(5)
    tgt = P["n2_tgt"] - 1
    if P["n2"]:
        a("s_cmp_lg_u32 s3, 0")
        a("s_cbranch_scc1 L_A_n2_out")
        if P["n2_at"]:
            a("s_min_i32 s92, s92, s94")
            a("s_min_i32 s95, s95, s83")
            a("s_min_i32 s92, s92, s95")
            a(f"s_cmp_ge_i32 s92, {tgt}")
            a("s_cbranch_scc1 L_A_n2_out")
        poll_cnt("A_n2", ["0", "128", "256", "384"], tgt, 0, (P["q_looks"], XQRE) if P["local"] else None, pipe=P["pipe2"])
    a("s_barrier")
    tr_ok = 0
    stamp(6)
    stamp(1, 2)
    for kk in range(12):
        a.vmem(qa_load(kk).replace(" sc1", " " + P["qlf"]), ("qa", kk))
        if P["rr"] and (kk + 1) % P["rr"] == 0 and kk < 11:
            a("s_barrier")
    stamp(2, 2)
    if ("ck", 1) in a.vm:
        a.wait_vm(("ck", 1))
    ck_read(1)

    if P["prog"]:
        def q_chk(g):
            b = QA + 16 * g
            a(f"v_max3_u32 v11, v{b+3}, v{b+7}, v{b+11}")
            a(f"v_max_u32 v11, v11, v{b+15}")
            a("v_cmp_eq_u32 vcc, -1, v11")

        for g in range(3):
            a.wait_vm(("qa", 4 * g + 3), f" lgkmcnt({8-4*g})")
            if g == 0:
                stamp(3, 2)
            if g == 2 and not P["a_lvl"]:
                flag_load(1)
            q_chk(g)
            a(f"s_cbranch_vccnz L_A_skip{g}")
            alt = [f"L_A_skip{g}:", f"s_bitset1_b32 s82, {g}"]
            for kk in range(4 * g, 4 * g + 4):
                s_mfma(kk)
                if l2[0] < 12 and (kk + 1) * P["l2_in_s"] // 12 > kk * P["l2_in_s"] // 12:
                    d = cap(l2_dma)
                    alt += d
                    for l in d:
                        a(l)
            a(f"L_A_after{g}:")
            slow.append("\n".join(alt + [f"s_branch L_A_after{g}"]))
        for k in range(P["l2_after1"]):
            if l2[0] < 24:
                l2_dma()
        a("s_cmp_lg_u32 s82, 0")
        a("s_cbranch_scc1 L_A_x2_slow")
        a("L_A_x2_ok:")
        main = a.L
        a.L = []
        a("L_A_x2_slow:")
        a("s_mov_b32 s28, 0")
        a("L_A_x2_loop:")
        a("s_add_u32 s29, s29, 1")
        if P["local"]:
            a(f"s_cmp_lg_u32 s28, {P['q_looks']}")
            a("s_cbranch_scc1 L_A_x2_nore")
            a(XQRE)
            a("L_A_x2_nore:")
        for g in range(3):
            a(f"s_bitcmp0_b32 s82, {g}")
            a(f"s_cbranch_scc1 L_A_x2_l{g}")
            for kk in range(4 * g, 4 * g + 4):
                a(qa_load(kk))
            a(f"L_A_x2_l{g}:")
        a("s_add_u32 s28, s28, 1")
        a("s_waitcnt vmcnt(0)")
        for g in range(3):
            a(f"s_bitcmp0_b32 s82, {g}")
            a(f"s_cbranch_scc1 L_A_x2_m{g}")
            q_chk(g)
            a(f"s_cbranch_vccnz L_A_x2_m{g}")
            for kk in range(4 * g, 4 * g + 4):
                s_mfma(kk)
            a(f"s_bitset0_b32 s82, {g}")
            a(f"L_A_x2_m{g}:")
        a("s_cmp_eq_u32 s82, 0")
        a("s_cbranch_scc1 L_A_x2_ok")
        a(f"s_cmp_lt_u32 s28, {SPIN}")
        a("s_cbranch_scc1 L_A_x2_loop")
        a("s_branch L_A_x2_ok")
        slow.append("\n".join(a.L))
        a.L = main
    else:
        assert P["n2"] and P["n2_tgt"] == 24 and P["a_lvl"]
        for kk in range(12):
            a.wait_vm(("qa", kk), f" lgkmcnt({11-kk})")
            if kk == 0:
                stamp(3, 2)
            s_mfma(kk)
            if kk == 1:
                a(f"v_max_u32 v11, v{QA+3}, v{QA+7}")
            elif kk & 1:
                a(f"v_max3_u32 v11, v11, v{QA+4*kk-1}, v{QA+4*kk+3}")
            if l2[0] < 12 and (kk + 1) * P["l2_in_s"] // 12 > kk * P["l2_in_s"] // 12:
                l2_dma()
        a("v_cmp_eq_u32 vcc, -1, v11")
        a("s_cbranch_vccnz L_A_x2_slow")
        a("L_A_x2_ok:")
        main = a.L
        a.L = []
        a("L_A_x2_slow:")
        a("s_mov_b32 s28, 0")
        a("L_A_x2_loop:")
        a("s_add_u32 s29, s29, 1")
        for kk in range(12):
            a(qa_load(kk))
        a("v_mov_b32 v11, 0")
        a("s_add_u32 s28, s28, 1")
        a("s_waitcnt vmcnt(0)")
        for kk in range(1, 12, 2):
            a(f"v_max3_u32 v11, v11, v{QA+4*kk-1}, v{QA+4*kk+3}")
        a("v_cmp_eq_u32 vcc, -1, v11")
        a("s_cbranch_vccz L_A_x2_redo")
        a(f"s_cmp_lt_u32 s28, {SPIN}")
        a("s_cbranch_scc1 L_A_x2_loop")
        a("L_A_x2_redo:")
        for kk in range(12):
            s_mfma(kk)
        a("s_branch L_A_x2_ok")
        slow.append("\n".join(a.L))
        a.L = main
    stamp(7)
    stamp(4, 2)
    nw_ = 0
    for p in range(1, 4):
        for k in range(2):
            r = SA + 8 * p + 4 * k
            if not P.get("fake_red") or p == 3:
                a(f"ds_write_b128 v{27+p}, v[{r}:{r+3}] offset:{k*1024}")
        if nw_ < P["l2b_w"] and l2[0] < 24:
            l2_dma()
            nw_ += 1
    stamp(5, 2)
    if l2[0] == 24 and P["l2a_wait"] == 2:
        a.wait_vm(("l2", 1), " lgkmcnt(0)")
    elif l2[0] >= 12 and ("l2", 0) in a.vm and P["l2a_wait"]:
        a.wait_vm(("l2", 0), " lgkmcnt(0)")
    else:
        a("s_waitcnt lgkmcnt(0)")
    if l2[0] >= 12 and ("l2", 0) not in a.vm:
        tr_ok = 48
    if l2[0] == 24 and ("l2", 1) not in a.vm:
        tr_ok = P["tr_pre"]
    if not P["a_lvl"]:
        flag_check("A1", 1)
    stamp(6, 2)
    a("s_barrier")
    stamp(7, 2)
    for p in range(3):
        for k in range(2):
            r = QA + 8 * p + 4 * k
            if not P.get("fake_red") or p == 2:
                a(f"ds_read_b128 v[{r}:{r+3}], v31 offset:{p*2048+k*1024}")
    for k in range(P["l2b_r"]):
        if l2[0] < 24:
            l2_dma()

    def softmax():
        for p in range(2 if P.get("fake_red") else 0, 3):
            a(f"s_waitcnt lgkmcnt({4-2*p})")
            for k in range(0, 8, 2):
                a(f"v_pk_add_f32 v[{SA+k}:{SA+k+1}], v[{SA+k}:{SA+k+1}], v[{QA+8*p+k}:{QA+8*p+k+1}]")
        a(f"v_max3_f32 v4, v{SA}, v{SA+1}, v{SA+2}")
        a(f"v_max3_f32 v11, v{SA+3}, v{SA+4}, v{SA+5}")
        a(f"v_max3_f32 v4, v4, v{SA+6}, v{SA+7}")
        a("v_max_f32 v4, v4, v11")
        a("v_mov_b32 v11, v4")
        a("v_permlane32_swap_b32 v4, v11")
        a("v_max_f32 v4, v4, v11")
        a("v_ceil_f32 v4, v4")
        for e in range(8):
            a(f"v_sub_f32 v{SA+e}, v{SA+e}, v4")
        for e in range(8):
            a(f"v_exp_f32 v{SA+e}, v{SA+e}")
        a("v_min_u32 v4, -2, v4")
        for m in range(4):
            a(f"v_cvt_pk_bf16_f32 v{12+m}, v{SA+2*m}, v{SA+2*m+1}")
        a("v_and_b32 v15, 0x7fffffff, v15")

    sm = cap(softmax)
    nmid = P["l2b_mid"]
    step = len(sm) // (nmid + 1)
    for i, l in enumerate(sm):
        a(l)
        if (i + 1) % step == 0 and (i + 1) // step <= nmid and l2[0] < 24:
            l2_dma()
    def p_pub(fl):
        a.vmem(f"buffer_store_dwordx4 v[12:15], v10, s[16:19], s42 offen{fl}", "pub")
        a.vmem(f"buffer_store_dword v4, v32, s[16:19], s43 offen{fl}", "pub")

    stamp(8, 2)
    p_pub(LOC)
    if not P["local"]:
        a.wait_all()
    stamp(8)
    EARLY = P["m_at"] < 24 - l2[0]
    nd = 0
    ntr = (tr_ok - trn[0] + 24 - l2[0] - 1) // (24 - l2[0]) if EARLY else 4
    while l2[0] < 24:
        if nd == P["m_at"]:
            for p in range(2):
                a.vmem(f"buffer_load_dwordx4 v[{44+4*p}:{47+4*p}], v34, s[16:19], s20 offen offset:{p*512} sc1", "m")
        l2_dma()
        nd += 1
        for k in range(ntr):
            if trn[0] < tr_ok:
                tr_read()
    stamp(9)
    stamp(9, 2)
    MR = 44
    PR = 64
    PT = 128
    OC = 136

    def m_load(p):
        return f"buffer_load_dwordx4 v[{MR+4*p}:{MR+4*p+3}], v34, s[16:19], s20 offen offset:{p*512} sc1"

    def p_load(s):
        return f"buffer_load_dwordx4 v[{PR+4*s}:{PR+4*s+3}], v33, s[16:19], s{44+(s>>3)} offen offset:{(s&7)*512} sc1"

    def m_check():
        a(f"v_max3_u32 v11, v{MR}, v{MR+1}, v{MR+2}")
        a(f"v_max3_u32 v11, v11, v{MR+3}, v{MR+4}")
        a(f"v_max3_u32 v11, v11, v{MR+5}, v{MR+6}")
        a(f"v_max_u32 v11, v11, v{MR+7}")

    def m_max():
        a(f"v_max3_f32 v60, v{MR}, v{MR+1}, v{MR+2}")
        a(f"v_max3_f32 v61, v{MR+3}, v{MR+4}, v{MR+5}")
        a(f"v_max3_f32 v60, v60, v{MR+6}, v{MR+7}")
        a("v_max_f32 v60, v60, v61")
        for sw in ("32", "16"):
            a("v_mov_b32 v61, v60")
            a(f"v_permlane{sw}_swap_b32 v60, v61")
            a("v_max_f32 v60, v60, v61")

    def delta(p):
        a(f"v_sub_f32 v{MR+8+p}, v60, v{MR+p}")
        a(f"v_cvt_pk_u8_f32 v{MR+8+p}, v{MR+8+p}, 0, 0")
        a(f"v_mul_u32_u24 v{MR+8+p}, 0x800080, v{MR+8+p}")

    def pv_adj(s):
        for d in (3, 0, 1, 2):
            a(f"v_pk_sub_u16 v{PR+4*s+d}, v{PR+4*s+d}, v{MR+8+(s>>1)} clamp")

    def pv_mfma(s, T):
        t = PR + 4 * s
        c = "0" if s == 0 else f"v[{OC+4*T}:{OC+4*T+3}]"
        q = (s * 3 + T) * 4
        A = f"a[{q}:{q+3}]" if T < 3 else "v[40:43]"
        a(f"v_mfma_f32_16x16x32_bf16 v[{OC+4*T}:{OC+4*T+3}], {A}, v[{t}:{t+3}], {c}")

    if not EARLY:
        for p in range(2):
            a.vmem(m_load(p), "m")
    while trn[0] < tr_ok:
        tr_read()
    stamp(10, 2)
    a("s_mov_b32 s28, 0")
    if EARLY:
        a.wait_vm("m")
    a("s_branch L_A_m_chk1" if EARLY else "s_branch L_A_m_chk")
    a("L_A_m_loop:")
    a("s_add_u32 s29, s29, 0x10")
    for p in range(2):
        a(m_load(p))
    a("s_add_u32 s28, s28, 1")
    a(f"s_cmp_ge_u32 s28, {P['a_looks']}")
    a("s_cbranch_scc1 L_A_m_long")
    a("L_A_m_chk:")
    a.wait_all()
    a("L_A_m_chk1:")
    m_check()
    a("v_cmp_eq_u32 vcc, -1, v11")
    a("s_cbranch_vccnz L_A_m_loop")
    a("L_A_m_ok:")
    stamp(11, 2)
    slow.append("\n".join(["L_A_m_long:", f"s_cmp_lg_u32 s28, {P['a_looks']}", "s_cbranch_scc1 L_A_m_nore"] + cap(p_pub, " sc1") +
                ["L_A_m_nore:", f"s_cmp_lt_u32 s28, {SPIN}", "s_cbranch_scc1 L_A_m_chk", "s_waitcnt vmcnt(0)", "s_branch L_A_m_ok"]))
    a.vm = []
    pl = [0]

    def p_issue():
        if pl[0] < 16:
            a.vmem(p_load(pl[0]).replace(" sc1", " " + P["plf"]), ("p", pl[0]))
            pl[0] += 1
            return True
        return False

    p_issue()
    if not EARLY:
        a("s_barrier")
    stamp(10)
    stamp(12, 2)
    pre = cap(m_max)
    for k in range(3):
        for p in range(8):
            pre.append(cap(delta, p)[k])
    tr_in = P["tr_in"] if tr_ok else 6
    tr_before = trn[0]
    pre = mix(pre, [cap(tr_read)[0] for k in range(min(96 - trn[0], P["tr_pro"] if tr_ok else 18))])
    per = (len(pre) + P["p_ahead"] - 2) // (P["p_ahead"] - 1)
    while pl[0] < P["p_ahead"]:
        p_issue()
        for k in range(per):
            if pre:
                a(pre.pop(0))
    assert not pre
    a.wait_vm(("p", 0), f" lgkmcnt({min(15, trn[0] - max(tr_before, 6))})")
    if EARLY:
        assert tr_ok == 48 and trn[0] == 48
        a("s_barrier")
    stamp(13, 2)
    tr0 = max(tr_before, 6)
    pv_adj(0)
    p_issue()
    a.wait_vm(("p", 1))
    chk = [(2, f"v_or3_b32 v11, v{PR+3}, v{PR+7}, v{PR+11}")]
    chk += [(k + 1, f"v_or3_b32 v11, v11, v{PR+4*k+3}, v{PR+4*k+7}") for k in range(3, 15, 2)]
    chk += [(15, f"v_or_b32 v11, v11, v{PR+63}")]
    noted = False
    for s in range(16):
        adj = cap(pv_adj, s + 1) if s < 15 else [c[1] for c in chk]
        pv_mfma(s, 0)
        for l in adj[:2]:
            a(l)
        pv_mfma(s, 1)
        for l in adj[2:4]:
            a(l)
        pv_mfma(s, 2)
        for l in adj[4:]:
            a(l)
        if not p_issue():
            if s >= P["n3_step"] and not noted:
                notice(162, 81)
                noted = True
            elif s < 15 and chk and chk[0][0] <= s + 1:
                a(chk.pop(0)[1])
        for k in range(tr_in):
            if trn[0] < 96:
                tr_read()
        if s < 15:
            assert trn[0] >= 6 * (s + 2)
            lg = f" lgkmcnt({min(15, trn[0]-6*(s+2))})" if 6 * (s + 2) > tr0 else ""
            if s < 14:
                a.wait_vm(("p", s + 2), lg)
            else:
                a("s_waitcnt" + lg)
    assert trn[0] == 96
    a("v_cmp_gt_i32 vcc, 0, v11")
    a("s_cbranch_vccnz L_A_p_slow")
    a("L_A_p_ok:")
    main = a.L
    a.L = []
    a("L_A_p_slow:")
    vmk = list(a.vm)
    p_pub(" sc1")
    a.vm = vmk
    a("s_mov_b32 s28, 0")
    a("L_A_p_loop:")
    a("s_add_u32 s29, s29, 0x100")
    for p in range(2):
        a(m_load(p))
    for s in range(16):
        a(p_load(s))
    a("s_add_u32 s28, s28, 1")
    a("s_waitcnt vmcnt(0)")
    m_check()
    for s in range(1, 16, 2):
        a(f"v_max3_u32 v11, v11, v{PR+4*s-1}, v{PR+4*s+3}")
    a("v_cmp_eq_u32 vcc, -1, v11")
    a("s_cbranch_vccz L_A_p_redo")
    a(f"s_cmp_lt_u32 s28, {SPIN}")
    a("s_cbranch_scc1 L_A_p_loop")
    a("L_A_p_redo:")
    m_max()
    for s in range(16):
        if not s & 1:
            delta(s // 2)
        pv_adj(s)
        for T in range(3):
            pv_mfma(s, T)
    a("s_branch L_A_p_ok")
    slow.append("\n".join(a.L))
    a.L = main
    stamp(11)
    stamp(14, 2)
    epi = []
    for k in range(6):
        epi.append(f"v_cvt_pk_bf16_f32 v{OC+k}, v{OC+2*k}, v{OC+2*k+1}")
        if k & 1:
            epi.append(f"v_min_u32 v{OC+k}, -2, v{OC+k}")
        epi.append(f"ds_permute_b32 v{44+k}, v36, v{OC+k}")
    epi += [None, None, None, None, "s_waitcnt lgkmcnt(2)", "buffer_store_dwordx4 v[44:47], v37, s[16:19], s21 offen sc1",
            "s_waitcnt lgkmcnt(0)", "buffer_store_dwordx2 v[48:49], v38, s[16:19], s22 offen sc1"]
    for s in range(16):
        pv_mfma(s, 3)
        if s >= 2:
            for k in range(2):
                if epi:
                    l = epi.pop(0)
                    if l:
                        a(l)
    assert not epi
    if not noted:
        notice(162, 81)
    a(f"v_min_u32 v61, -2, v{OC+12}")
    a("buffer_store_dwordx2 v[60:61], v39, s[16:19], s35 offen sc1")
    if P["n_pf"]:
        if P["pf_bar"]:
            a("s_barrier")
        a("buffer_load_dword v209, v208, s[96:99], s100 offen")
    stamp(12)
    if RE:
        same_load()
        a("s_waitcnt lgkmcnt(0)")
        unless_same("L_A_nore")
        a.wait_all()
        p_pub(" sc1")
        a("L_A_nore:")
    a("s_cmp_lg_u32 s3, 0")
    a("s_cbranch_scc1 L_A_end")
    a("s_cmp_ge_u32 s25, 5")
    a("s_cbranch_scc1 L_A_end")
    a("s_mul_i32 s35, s24, 5")
    a("s_add_u32 s35, s35, s25")
    a("v_and_b32 v5, 3, v1")
    a("v_lshlrev_b32 v3, 1, v19")
    a("v_lshl_add_u32 v48, v5, 3, v3")
    a("s_lshl_b32 s40, s35, 5")
    a("buffer_load_ushort v49, v48, s[4:7], s40 offen")
    a("buffer_load_ushort v50, v48, s[8:11], s40 offen")
    if P["out_pt"]:
        a("buffer_load_ushort v58, v48, s[84:87], s40 offen")
    a(f"v_and_b32 v3, {60 if P['out_pk'] else 12}, v1")
    a("v_lshl_or_b32 v57, v3, 20, v48")
    a("v_lshrrev_b32 v3, 2, v1")
    a("v_mul_u32_u24 v56, 2560, v3")
    a("v_lshl_add_u32 v56, v5, 4, v56")
    a("s_lshl_b32 s27, s35, 7" if P["n5_priv"] else "s_lshl_b32 s27, s24, 10")
    a(f"s_add_u32 s27, s27, {XN5}")
    cnt_base(27)

    ZS = (41, 42, 43, 44, 45, 46, 47, 39)

    def z_offs(base, n):
        a("s_lshl_b32 s41, s35, 6")
        a(f"s_add_u32 s41, s41, {base}")
        for k in range(1, n):
            a(f"s_add_u32 s{ZS[k]}, s41, {40960*k}")

    def z_gather(name, n, cnt):
        a(f"L_Z_{name}:")
        a(f"s_add_u32 s29, s29, {cnt}")
        for k in range(n):
            a(f"buffer_load_dwordx4 v[{64+4*k}:{67+4*k}], v56, s[16:19], s{ZS[k]} offen sc1")
        a("s_add_u32 s28, s28, 1")
        a(f"s_waitcnt vmcnt({n-2})")
        a("v_max_u32 v3, v67, v71")
        for kk in (0, 2):
            a(f"v_pk_add_f32 v[{60+kk}:{61+kk}], v[{64+kk}:{65+kk}], v[{68+kk}:{69+kk}]")
        for k in range(2, n):
            a(f"s_waitcnt vmcnt({n-1-k})")
            a(f"v_max_u32 v3, v3, v{67+4*k}")
            for kk in (0, 2):
                a(f"v_pk_add_f32 v[{60+kk}:{61+kk}], v[{60+kk}:{61+kk}], v[{64+4*k+kk}:{65+4*k+kk}]")
        a("v_cmp_eq_u32 vcc, -1, v3")
        a(f"s_cbranch_vccnz L_Z_{name}_r")
        a(f"L_Z_{name}_ok:")
        slow.append(f"""L_Z_{name}_r:
            s_cmp_lt_u32 s28, {SPIN}
            s_cbranch_scc1 L_Z_{name}
            s_branch L_Z_{name}_ok""")
        a("v_permlane32_swap_b32 v60, v62")
        a("v_permlane32_swap_b32 v61, v63")
        a("v_add_f32 v60, v60, v62")
        a("v_add_f32 v61, v61, v63")
        a("v_permlane16_swap_b32 v60, v61")
        a("v_add_f32 v60, v60, v61")
        a("v_add_f32 v60, v60, v60 row_ror:8 row_mask:0xf bank_mask:0xf")
        a("v_add_f32 v60, v60, v60 row_ror:4 row_mask:0xf bank_mask:0xf")
        rbf(60)

    z_offs(XY, 2)
    a("s_mov_b32 s28, 0")
    z_gather("y", 2, 0x100000)
    only_if(4, 35, 1, 1)
    a("v_mov_b32 v5, s26")
    a(f"buffer_store_dword v5, v4, s[16:19], 0 offen offset:{EPOCH} sc1")
    z_offs(XS, 8)
    a("v_lshlrev_b32 v50, 16, v50")
    a("v_add_f32 v50, v50, v60")
    rbf(50)
    a(f"v_mul_f32 v3, {f32(-math.log2(math.e))}, v50")
    a("v_exp_f32 v3, v3")
    a("v_add_f32 v3, 1.0, v3")
    a("v_rcp_f32 v3, v3")
    a("v_mul_f32 v50, v50, v3")
    rbf(50)
    a("v_lshlrev_b32 v49, 16, v49")
    stamp(13)
    if P["n5_pos"] >= 0:
        if P["n5_priv"]:
            if P["rep5"] > 1:
                poll_multi("Z_n5", P["rep5"], None, 8 * P["n5_priv"] - 1, P["pipe5"])
            else:
                poll_cnt("Z_n5", ["0"], 8 * P["n5_priv"] - 1, 0)
        else:
            poll_cnt("Z_n5", [str(128 * k) for k in range(8)], 15, 0)
    stamp(14)
    z_gather("s", 8, 0x1000000)
    a("v_mul_f32 v60, v60, v50")
    rbf(60)
    if P["out_pk"]:
        a("v_add_f32 v61, v60, v49")
        a("v_add_f32 v60, v60, v49")
        a("v_permlane16_swap_b32 v60, v61")
        a("v_cvt_pk_bf16_f32 v62, v60, v61")
        a("v_cvt_pk_bf16_f32 v63, v60, v61")
        a("v_permlane32_swap_b32 v62, v63")
        a(f"buffer_store_dwordx2 v[62:63], v57, s[84:87], s40 offen {P['outf']}")
    else:
        a("v_add_f32 v60, v60, v49")
        a("v_cvt_pk_bf16_f32 v60, v60, v60")
        a(f"buffer_store_short v60, v57, s[84:87], s40 offen {P['outf']}")
    a("L_A_end:")
    dump_stamps()
    a("s_endpgm")

    a(".p2align 8")
    a("L_F:")
    role[0] = "F"
    a.vm = []
    common_ids()
    srd(4, 1280)
    a("s_sub_u32 s25, s25, 16")
    a("s_lshl_b32 s89, s24, 2")
    a("s_add_u32 s89, s89, s25")
    a("s_sub_u32 s89, s89, 12")
    a("v_lshrrev_b32 v2, 3, v1")
    a("v_and_b32 v5, 7, v1")
    a("v_lshlrev_b32 v7, 1, v2")
    a("s_and_b32 s46, s25, 3")
    a("s_lshl_b32 s46, s46, 2")
    a("s_add_u32 s46, s46, s3")
    a("s_mul_i32 s35, s46, 80")
    a("s_mul_i32 s42, s89, 3072")
    a(f"s_add_u32 s42, s42, {XQA if not P.get('no_c0') else 0x20000000}")
    a("v_lshlrev_b32 v14, 4, v0")
    a("v_and_b32 v16, 0x7ff, v14")
    for k in range(4):
        a(f"v_mov_b32 v{60+k}, -1")
    a("s_mul_i32 s36, s89, 18432")
    a(f"s_add_u32 s36, s36, {XP}")
    a(f"s_mul_i32 s38, s89, {CLR_PER}")
    a(f"s_add_u32 s38, s38, {CLR0}")
    a(f"s_add_u32 s39, s38, {CLR_PER}")
    a("s_waitcnt lgkmcnt(0)")
    load_epoch()
    a("v_min_u32 v17, 3056, v14")
    a.vmem("buffer_store_dwordx4 v[60:63], v17, s[16:19], s42 offen sc1", "c0")
    x_stats_loads(8)
    x_rows(88, 35, 5)
    a("s_load_dwordx2 s[12:13], s[0:1], 56")
    a("s_load_dwordx2 s[8:9], s[0:1], 72")
    a("s_load_dwordx2 s[96:97], s[0:1], 64")
    a("s_load_dwordx2 s[20:21], s[0:1], 40")


    def pm_clear():
        a("s_mov_b32 s27, s36" if not P.get("no_pm") else "s_mov_b32 s27, 0x20000000")
        for k in range(5):
            a.vmem(f"buffer_store_dwordx4 v[60:63], v{14 if k < 4 else 16}, s[16:19], s27 offen {P['pmf']}", "clr")
            a("s_add_u32 s27, s27, 4096")

    if P["c0_alone"] == 0:
        pm_clear()
    sel_masks(152, 3)
    a.wait_vm("c0", " lgkmcnt(0)")
    a("s_barrier")
    flag_add("F0", 0)
    stamp(3)
    if P["c0_alone"]:
        pm_clear()
    if P.get("no_clr"):
        a("v_mov_b32 v14, 0x20000000")
    a("L_F_clr:")
    a(f"buffer_store_dwordx4 v[60:63], v14, s[16:19], s38 offen {P['clf']}")
    a("s_add_u32 s38, s38, 4096")
    if P["dClr"] < 63:
        a(f"s_waitcnt vmcnt({P['dClr']})")
    a("s_cmp_lt_u32 s38, s39")
    a("s_cbranch_scc1 L_F_clr")
    a.vm += ["clr"] * (CLR_PER // 4096)
    make_tag()
    srd(12, 0 if P.get("no_f") else 1966080)
    srd(20, 0 if P.get("no_f") else 7864320)
    a.wait_vm("x")
    ln_stats(8, 24)
    sel_ops(88, 24, 5)
    red_addrs()
    a("v_mul_u32_u24 v6, 3072, v2")
    a("v_lshl_add_u32 v6, v5, 4, v6")
    a(f"s_mul_i32 s44, s46, {40*3072}")
    a("s_mul_i32 s27, s24, 384")
    a("s_add_u32 s44, s44, s27")
    a(f"s_movk_i32 s45, {8*3072}")
    fn = [0]

    def f_next():
        n = fn[0]
        if n < 15:
            rows_load(n, 5, 64, 6, 12, "w1")
        elif n < 30:
            q = 128 + 4 * (n - 15)
            a.vmem(f"buffer_load_dwordx4 a[{q}:{q+3}], v159, s[8:11], s{38+(n-15)//5} offen offset:{((n-15)%5)*256} {NT}", "w2")
        else:
            wo_load(n - 30)
        fn[0] += 1

    a("v_and_b32 v18, 15, v1")
    a("v_lshrrev_b32 v19, 4, v1")
    tail_setup(25, 18, 19, 3)
    a("v_mov_b32 v163, 0x20000000")
    srd(8, 0 if P.get("no_f") else 1966080)
    srd(96, 3072)
    a("s_mul_i32 s27, s24, 48")
    a("s_add_u32 s27, s27, s46")
    a("s_mul_i32 s38, s27, 5120")
    a(f"s_add_u32 s39, s38, {64*1280}")
    a(f"s_add_u32 s40, s38, {128*1280}")
    a("s_lshl_b32 s47, s27, 3")
    a("s_lshl_b32 s41, s89, 10")
    a(f"s_add_u32 s41, s41, {XH}")
    a("s_mul_i32 s43, s89, 2560")
    a(f"s_add_u32 s43, s43, {XY}")
    a("s_lshl_b32 s42, s24, 12")
    a("s_lshl_b32 s27, s46, 6")
    a("s_add_u32 s42, s42, s27")
    a(f"s_add_u32 s42, s42, {XH}")
    a("v_and_b32 v3, 3, v1")
    a("v_lshlrev_b32 v3, 10, v3")
    a("v_lshl_add_u32 v59, v19, 4, v3")
    phase5_addrs(11, 0, 3)
    a.wait_all()
    a("s_barrier")
    flag_add("F1", 128)
    stamp(1)
    a("v_min_u32 v14, 143, v0")
    a("v_lshlrev_b32 v14, 7, v14")
    a.vmem("buffer_load_dword v15, v14, s[16:19], s36 offen sc1", "pt")
    a("v_min_u32 v14, 95, v0")
    a("v_lshlrev_b32 v14, 7, v14")
    a("s_mul_i32 s27, s89, 12288")
    a(f"s_add_u32 s27, s27, {XC}")
    a.vmem("buffer_load_dword v15, v14, s[16:19], s27 offen sc1", "pt")
    a("v_lshlrev_b32 v3, 1, v19")
    for t in range(3):
        a.vmem(f"buffer_load_ushort v{56+t}, v3, s[96:99], s47 offen offset:{128*t}", "b1")
    while fn[0] < 15:
        throttle(P["dF"] if fn[0] >= P["nF0"] else 0)
        f_next()
        if fn[0] == 11:
            flag_load(0)
    a("s_waitcnt lgkmcnt(0)")
    flag_check("F", 0)
    same_add("F")
    rows_finish("F_h", 5, 24, 64, "w1", f_next, P["dF"] + 1, P["dF"], 140, 41, " sc1")
    stamp(5)
    while fn[0] < 30:
        throttle(P["dF2"])
        f_next()
    XHL = "buffer_load_dwordx4 v[60:63], v59, s[16:19], s42 offen sc1"
    a.vmem(XHL, "xh")
    flag_load(1)
    while "xh" in a.vm and fn[0] < 45:
        throttle(P["dF2"])
        if "xh" in a.vm:
            f_next()
    if "xh" in a.vm:
        a.wait_vm("xh")
    stamp(6)
    a("s_waitcnt lgkmcnt(0)")
    flag_check("F1", 1)
    a("v_cmp_ne_u32 vcc, s26, v63")
    a("s_cbranch_vccnz L_F_xh_slow")
    a("L_F_xh_ok:")
    slow.append(f"""L_F_xh_slow:
        s_mov_b32 s28, 0
        L_F_xh_loop:
        s_add_u32 s29, s29, 1
        {XHL}
        s_add_u32 s28, s28, 1
        s_waitcnt vmcnt(0)
        v_cmp_ne_u32 vcc, s26, v63
        s_cbranch_vccz L_F_xh_ok
        s_cmp_lt_u32 s28, {SPIN}
        s_cbranch_scc1 L_F_xh_loop
        s_branch L_F_xh_ok""")

    def gelu_part():
        for m in ("quad_perm:[1,0,3,2]", "quad_perm:[2,3,0,1]"):
            for k in range(3):
                a(f"v_add_f32 v{60+k}, v{60+k}, v{60+k} {m} row_mask:0xf bank_mask:0xf")
        for k in range(3):
            v = 60 + k
            rbf(v)
            a(f"v_lshlrev_b32 v3, 16, v{56+k}")
            a(f"v_add_f32 v{v}, v{v}, v3")
            rbf(v)
            a(f"v_mul_f32 v3, v{v}, v{v}")
            a(f"v_mul_f32 v3, {f32(0.044715)}, v3")
            a("v_add_f32 v3, 1.0, v3")
            a(f"v_mul_f32 v3, v3, v{v}")
            a(f"v_mul_f32 v3, {f32(-2*math.sqrt(2/math.pi)*math.log2(math.e))}, v3")
            a("v_exp_f32 v3, v3")
            a("v_add_f32 v3, 1.0, v3")
            a("v_rcp_f32 v3, v3")
            a(f"v_mul_f32 v{v}, v{v}, v3")

    gl = cap(gelu_part)
    for i, l in enumerate(gl):
        a(l)
        if i % 16 == 15 and fn[0] < 45:
            f_next()

    def f_hook(pos):
        if fn[0] < 45 and pos <= (4 if P["p5w"] < 2 else 1):
            f_next()

    phase5(60, 152, 128, 72, 11, 43, ng=3, hook=f_hook)
    stamp(7)
    while fn[0] < 45:
        throttle(P["dF2"])
        f_next()
    if P["f_gate"]:
        a("s_lshl_b32 s27, s24, 3")
        a("s_add_u32 s27, s27, s25")
        a("s_lshl_b32 s27, s27, 7")
        a(f"s_add_u32 s27, s27, {XN3 + 8192 - 12*128}")
        cnt_base(27)
        a("s_cmp_lg_u32 s3, 0")
        a("s_cbranch_scc1 L_F_n3_out")
        poll_cnt("F_n3", ["0"], 15, 0)
        a("s_barrier")
    a("s_mov_b32 s80, 31")
    a("s_branch L_T")
    for blk in slow:
        a(blk)
    a("L_codeend:")

    if not P["stamps"]:
        a.L = [l for l in a.L if not l.startswith(("s_add_u32 s29,", "s_mov_b32 s29,"))]
    body = fix_hazards(a.L)
    if P['al8']:
        body = align8(body)
    hdr = open("recurrent_scan__compressed_kv_cla__dense_activation_gelu__decode.s.ref").read().split("; Override launch")[0] if P.get("hdr", 1) else ""
    out = hdr
    out += f"; @launch grid=(256,1,1) block=(256,1,1) lds={LDS_SIZE}\n"
    if P.get("hdr", 1):
        out += DOC
    out += f""".amdgcn_target "amdgcn-amd-amdhsa--gfx950"
.text
.globl {KN}
.p2align 8
.type {KN},@function
{KN}:
"""
    out += "\n".join(("" if l.endswith(":") or l.startswith(".") else "    ") + l for l in body)
    out += f"""
s_endpgm
.section .rodata,"a"
.p2align 6
.amdhsa_kernel {KN}
  .amdhsa_next_free_vgpr 512
  .amdhsa_next_free_sgpr 102
  .amdhsa_accum_offset 256
  .amdhsa_group_segment_fixed_size 0
  .amdhsa_kernarg_size 112
  .amdhsa_user_sgpr_count 2
  .amdhsa_user_sgpr_kernarg_segment_ptr 1
  .amdhsa_system_sgpr_workgroup_id_x 1
  .amdhsa_float_denorm_mode_32 3
.end_amdhsa_kernel
"""
    return out


def parse(spec):
    kw = {}
    for p in spec.split(","):
        if "=" in p:
            k, v = p.split("=")
            kw[k] = int(v) if v.lstrip("-").isdigit() else v.replace("+", " ").replace("_", "")
    return kw


if __name__ == "__main__":
    out = sys.argv[1]
    kw = parse(sys.argv[2]) if len(sys.argv) > 2 else {}
    open(out, "w").write(gen(**kw))
```

```python
import sys, struct, math
from asmlib import Asm, fix_hazards, align8

KN = "recurrent_scan__compressed_kv_cla__dense_activation_gelu__decode_kernel"


def f32(x):
    return hex(struct.unpack("<I", struct.pack("<f", x))[0])


EPOCH = 0
XH = 0x8000
XQ = 0x290000
XP = 0x40000
XM = XP + 65536
PM = 73728
XC = 0xD0000
XQA = 0x130000
XN2 = XQA + 49152
XI = XN2 + 16384
CLR0 = XQA + 98304
XN3 = CLR0
XN5 = XN3 + 32768
XML = XN5 + 32768
XO = XML + 32768
XS = XO + 786432
XY = XS + 128 * 2560
CLR_END = XY + 32 * 2560
CLR_PER = 40960
assert CLR_END <= CLR0 + 32 * CLR_PER
STAMP = 0x400000
WS_SIZE = 0x10000000

R1 = 24608
R2 = 4 * R1
LDS_SIZE = R2 + 24576 + 1024
SPIN = 200000

DOC = '''; ---------------------------------------------------------------------------------------------
;   q = LN(x) Wq ; qa = q Wuk^T * log2e/sqrt(D) ; s = qa ckv^T ; softmax with the true running max
;   (rounded up to an integer exponent so partial results rescale exactly) ; o = p ckv ;
;   ctx = o Wuv ; out = x + (ctx Wo) * silu(gelu(LN(x) W1 + b1) W2 + b2)
; Hand-offs in the workspace are self-validating: 16-byte granules carry either a launch tag
; in this launch (completion counted in the debug buffer).  Arrival counters only say when to look.
; ---------------------------------------------------------------------------------------------
'''

DEF = dict(stamps=0, wnt="nt", local=1, re=1, cpf=1,
           dQ=8, x_at=8, a_first=3, q_bar=1, dH1=7, nH1=0, dH=5, x1_wait=3, x1_at=99, wo_late=0, qa_lines=0, p5w=1, w6=0, xperm=1, n_pf=0, prog=0, m_at=4, ckf='', l2f='', wq_pf=0, f_gate=0, pmf='sc1', clf='sc1', plf='sc1', qlf='sc1', uv_early=0, rperm=0, rinv=0, rep3=1, rep5=1, pipe2=0, pipe3=0, pipe5=0, pf_bar=1, al8=1, out_pk=0, outf='', out_pt=0,
           dV1=3, nV1=5, dV=7, c0_alone=1, a_lvl=1, h1_early=0, dClr=63, n2=2, n2_at=23, n2_tgt=24,
           q_looks=16, dC1=4, nC1=0, dC=7, a_flag_at=18, a_x2_wait=8, rr=2, qrot=1,
           l2_in_s=12, l2_after1=0, l2b_w=0, l2b_r=2, l2b_mid=3, l2a_wait=1, tr_pre=60, p_ahead=6, tr_in=4, tr_pro=0,
           n3_step=13, n5_priv=4, n5_who=3, n5_pos=2, h_looks=24, a_looks=24, nF0=0, dF=4, dF2=5)


def gen(**kw):
    P = dict(DEF)
    P.update(kw)
    a = Asm()
    NT = P["wnt"]
    RE = P["local"] and P["re"]

    def stamp(i, fine=None):
        if not P["stamps"]:
            return
        if fine is None:
            if P["stamps"] != 1 and (role[0] == "A" or P["stamps"] == 3) and 0 < i < 15:
                return
        elif fine != P["stamps"]:
            return
        a(f"s_memrealtime s[{48+2*i}:{49+2*i}]")
        if fine is None and 0 < i < 15 and P.get("stop" + role[0]) == i:
            a("s_waitcnt vmcnt(0)")
            dump_stamps()
            a("s_endpgm")
            a(f"L_dead_{role[0]}:")

    role = ["H"]

    def dump_stamps():
        if not P["stamps"]:
            return
        stamp(15)
        if P.get("clk"):
            a("s_memtime s[76:77]")
        a("s_waitcnt lgkmcnt(0)")
        a("s_mov_b64 exec, -1")
        a("v_mov_b32 v250, 0")
        for i in range(16):
            a(f"v_writelane_b32 v250, s{48+2*i}, {i}")
        a("v_writelane_b32 v250, s29, 16")
        a("s_lshl_b32 s27, s2, 2\ns_add_u32 s27, s27, s3\ns_lshl_b32 s27, s27, 7")
        a(f"s_add_u32 s27, s27, {STAMP}")
        a("v_lshlrev_b32 v251, 2, v1")
        a("s_mov_b32 exec_hi, 0")
        a("buffer_store_dword v250, v251, s[16:19], s27 offen sc1")

    def srd(reg, size):
        a(f"s_mov_b32 s{reg+2}, {size}")
        a(f"s_mov_b32 s{reg+3}, 0x20000")

    def common_ids():
        a("v_lshrrev_b32 v2, 6, v0")
        a("v_and_b32 v1, 63, v0")
        a("v_readfirstlane_b32 s3, v2")
        if P["xperm"]:
            a("s_and_b32 s24, s2, 3")
            a("s_bfe_u32 s27, s2, 0x10002")
            if P["xperm"] == 2:
                a("s_xor_b32 s27, s27, 1")
            a("s_lshl1_add_u32 s24, s24, s27")
        else:
            a("s_and_b32 s24, s2, 7")
        srd(16, WS_SIZE)
        a("s_mov_b32 s29, 0")
        if P.get("stop" + role[0]) == 0:
            a("s_waitcnt lgkmcnt(0)")
            for i in range(1, 16):
                a(f"s_mov_b64 s[{48+2*i}:{49+2*i}], 0")
            dump_stamps()
            a("s_endpgm")
            a(f"L_dead_{role[0]}:")
        if P["stamps"] and P["stamps"] != 3:
            for i in range(1, 16):
                a(f"s_mov_b64 s[{48+2*i}:{49+2*i}], 0")

    def load_epoch():
        a(f"s_load_dword s26, s[16:17], {EPOCH}")
        a("s_load_dwordx2 s[30:31], s[0:1], 96")

    def make_tag():
        a("s_mul_i32 s26, s26, 0x9e3779b1")
        a("s_add_u32 s26, s26, 0x7f4a7c15")

    def rbf(v, t=None):
        a(f"v_cvt_pk_bf16_f32 v{v}, v{v}, v{v}")
        a(f"v_and_b32 v{v}, 0xffff0000, v{v}")

    def wave_sum(v, s):
        for m in ("quad_perm:[1,0,3,2] row_mask:0xf", "quad_perm:[2,3,0,1] row_mask:0xf", "row_half_mirror row_mask:0xf",
                  "row_mirror row_mask:0xf", "row_bcast:15 row_mask:0xa", "row_bcast:31 row_mask:0xc"):
            a(f"v_add_f32 v{v}, v{v}, v{v} {m} bank_mask:0xf")
        a(f"v_readlane_b32 s{s}, v{v}, 63")

    def x_stats_loads(v):
        a("v_lshlrev_b32 v3, 4, v1")
        a("v_lshlrev_b32 v4, 2, v1")
        a.vmem(f"buffer_load_dwordx4 v[{v}:{v+3}], v3, s[4:7], 0 offen", "x")
        a.vmem(f"buffer_load_dword v{v+4}, v4, s[4:7], 0 offen offset:1024", "x")

    def ln_stats(v, t):
        for j in range(5):
            a(f"v_lshlrev_b32 v{t+2*j}, 16, v{v+j}")
            a(f"v_and_b32 v{t+2*j+1}, 0xffff0000, v{v+j}")
        a(f"v_add_f32 v{t+10}, v{t}, v{t+1}")
        for j in range(2, 10):
            a(f"v_add_f32 v{t+10}, v{t+10}, v{t+j}")
        wave_sum(t + 10, 32)
        a(f"v_mov_b32 v{t+10}, {f32(1/640)}")
        a(f"v_mul_f32 v{t+10}, s32, v{t+10}")
        for j in range(10):
            a(f"v_sub_f32 v{t+j}, v{t+j}, v{t+10}")
        a(f"v_mul_f32 v{t+11}, v{t}, v{t}")
        for j in range(1, 10):
            a(f"v_fmac_f32 v{t+11}, v{t+j}, v{t+j}")
        wave_sum(t + 11, 33)
        a(f"v_mov_b32 v{t+11}, {f32(1/640)}")
        a(f"v_mul_f32 v{t+11}, s33, v{t+11}")
        rbf(t + 10)
        rbf(t + 11)
        a(f"v_add_f32 v{t+11}, {f32(1e-5)}, v{t+11}")
        rbf(t + 11)
        a(f"v_sqrt_f32 v{t+11}, v{t+11}")
        a(f"v_readfirstlane_b32 s32, v{t+10}")
        rbf(t + 11)
        a(f"v_rcp_f32 v{t+10}, v{t+11}")
        a(f"v_readfirstlane_b32 s33, v{t+11}")
        a(f"v_readfirstlane_b32 s34, v{t+10}")

    def normalize(v, t):
        a(f"v_subrev_f32 v{v}, s32, v{v}")
        rbf(v)
        a(f"v_mul_f32 v{t}, s34, v{v}")
        a(f"v_fma_f32 v{v}, -v{t}, s33, v{v}")
        a(f"v_fmac_f32 v{t}, s34, v{v}")
        a(f"v_cvt_pk_bf16_f32 v{v}, v{t}, v{t}")

    def sel_masks(m, t):
        a(f"v_and_b32 v{t}, 1, v1")
        a(f"v_lshlrev_b32 v{t}, 4, v{t}")
        a(f"v_mov_b32 v{t+1}, 0xffff")
        a(f"v_lshlrev_b32 v{t}, v{t}, v{t+1}")
        a(f"v_bfe_u32 v{t+1}, v1, 1, 2")
        for d in range(4):
            a(f"v_cmp_eq_u32 vcc, {d}, v{t+1}")
            a(f"v_cndmask_b32 v{m+d}, 0, v{t}, vcc")

    LVL = {0: (0, 0, 32), 1: (128, 128, 32)}

    def flag_load(lvl):
        o0, o1, n = LVL[lvl]
        a(f"s_load_dword s92, s[30:31], {o0}")
        if o1 != o0:
            a(f"s_load_dword s95, s[30:31], {o1}")

    def flag_add(name, off):
        a("s_mov_b32 s94, 1")
        a("s_cmp_lg_u32 s3, 0")
        a(f"s_cbranch_scc1 L_{name}_noadd")
        a(f"s_atomic_add s94, s[30:31], {off}")
        a(f"L_{name}_noadd:")

    slow = []

    def cap(f, *args):
        main = a.L
        a.L = []
        f(*args)
        r = a.L
        a.L = main
        return r

    LOC = "" if P["local"] else " sc1"

    def only_if(vd, cond, nl, vsrc):
        a(f"s_cmp_eq_u32 s{cond}, 0")
        a(f"s_cselect_b32 s27, {nl}, 0")
        a("v_cmp_gt_u32 vcc, s27, v1")
        a(f"v_mov_b32 v{vd}, 0x20000000")
        a(f"v_cndmask_b32 v{vd}, v{vd}, v{vsrc}, vcc")

    def notice(va, soff):
        a.vmem(f"buffer_atomic_add v161, v{va}, s[16:19], s{soff} offen sc1", "note")

    def poll_cnt(name, offs, target, cnt, late=None, pipe=0):
        a("s_mov_b32 s28, 0")
        if pipe:
            for i in range(len(offs)):
                a(f"s_mov_b32 s{92+i}, -1")
            if late:
                late = (late[0] * 3, late[1])
        a(f"L_{name}:")
        if late:
            a(f"s_cmp_eq_u32 s28, {late[0]}")
            a(f"s_cbranch_scc1 L_{name}_late")
            a(f"L_{name}_go:")
            slow.append(f"L_{name}_late:\n{late[1]}\ns_branch L_{name}_go")
        for i, o in enumerate(offs):
            a(f"s_load_dword s{92+i}, s[90:91], {o} glc")
        a("s_add_u32 s28, s28, 1")
        if cnt:
            a(f"s_add_u32 s29, s29, {cnt}")
        a(f"s_cmp_ge_u32 s28, {SPIN * (4 if pipe else 1)}")
        a(f"s_sleep {pipe}" if pipe else "s_waitcnt lgkmcnt(0)")
        a(f"s_cbranch_scc1 L_{name}_out")
        r = 92
        for i in range(1, len(offs)):
            a(f"s_min_i32 s27, s{r}, s{92+i}")
            r = 27
        a(f"s_cmp_lt_i32 s{r}, {target}")
        a(f"s_cbranch_scc1 L_{name}")
        a(f"L_{name}_out:")

    def same_add(name):
        a("s_getreg_b32 s80, hwreg(HW_REG_XCC_ID, 0, 4)")
        a("s_lshl_b32 s80, s80, 2")
        a("s_lshl_b32 s93, s24, 7")
        a("s_add_u32 s80, s80, s93")
        a(f"s_add_u32 s80, s80, {XI}")
        a("s_cmp_lg_u32 s3, 0")
        a(f"s_cbranch_scc1 L_{name}_nocensus")
        a("s_mov_b32 s93, 1")
        a("s_atomic_add s93, s[16:17], s80")
        a(f"L_{name}_nocensus:")

    def same_load():
        a("s_load_dword s80, s[16:17], s80")

    def unless_same(label):
        a("s_cmp_eq_u32 s80, 31")
        a(f"s_cbranch_scc1 {label}")

    def poll_multi(name, nrep, second, target, gap):
        nc = 2 if second else 1
        a("s_mov_b32 s28, 0")
        for i in range(nrep * nc):
            a(f"s_mov_b32 s{92+i}, -1")
        a(f"L_{name}:")
        for r in range(nrep):
            a(f"s_load_dword s{92+r}, s[90:91], {8192*r} glc")
            if second:
                a(f"s_load_dword s{92+nrep+r}, s[90:91], {second} offset:{8192*r} glc")
            a(f"s_sleep {gap}")
            for c in range(nc):
                t = (27, 100)[c]
                b = 92 + nrep * c
                a(f"s_max_i32 s{t}, s{b}, s{b+1}")
                for k in range(2, nrep):
                    a(f"s_max_i32 s{t}, s{t}, s{b+k}")
            if second:
                a("s_min_i32 s27, s27, s100")
            a(f"s_cmp_ge_i32 s27, {target}")
            a(f"s_cbranch_scc1 L_{name}_out")
        a("s_add_u32 s28, s28, 1")
        a(f"s_cmp_lt_u32 s28, {SPIN}")
        a(f"s_cbranch_scc1 L_{name}")
        a(f"L_{name}_out:")

    def cnt_base(sreg):
        a(f"s_add_u32 s90, s16, s{sreg}")
        a("s_addc_u32 s91, s17, 0")

    def pop_n(fill, n):
        while fill and (n > 0 or fill[0].startswith(("s_cselect", "s_addc", "s_cbranch", "v_cndmask")) or
                        (len(fill) > 1 and fill[1].startswith("v_cndmask") and not fill[0].startswith("v_cmp"))):
            a(fill.pop(0))
            n -= 1

    def throttle(d):
        if len(a.vm) > d:
            a.wait_vm_n(d)

    def flag_check(name, lvl):
        o0, o1, n = LVL[lvl]
        if o1 != o0:
            a("s_min_u32 s92, s92, s95")
        a(f"s_cmp_lt_u32 s92, {n}")
        a(f"s_cbranch_scc1 L_{name}_fslow")
        a(f"L_{name}_fok:")
        slow.append(f"""L_{name}_fslow:
            s_mov_b32 s92, 0
            v_and_b32 v252, 1, v1
            v_mul_u32_u24 v252, {o1-o0}, v252
            L_{name}_floop:
            s_add_u32 s29, s29, 0x10000
            s_sleep 24
            global_load_dword v253, v252, s[30:31] offset:{o0} sc1
            s_add_u32 s92, s92, 1
            s_waitcnt vmcnt(0)
            v_cmp_gt_u32 vcc, {n}, v253
            s_cbranch_vccz L_{name}_fok
            s_cmp_lt_u32 s92, {SPIN}
            s_cbranch_scc1 L_{name}_floop
            s_branch L_{name}_fok""")

    def phase5(vin, vmask, wreg, vt, lds_s, s_out, ng=4, hook=None):
        acc = vt + 16
        for t in range(ng):
            a(f"v_cvt_pk_bf16_f32 v{vin+t}, v{vin+t}, v{vin+t}")
        for d in range(4):
            a(f"v_and_b32 v{vt+d}, v{vin}, v{vmask+d}")
        assert ng == 3
        seq = [(0, 0), (0, 1), (0, 2), (1, 0), (1, 1), (2, 0), (2, 1), (1, 2), (2, 2)] + [(t, b) for b in (3, 4) for t in range(3)]
        wr = lambda b: a(f"ds_write_b128 v{lds_s}, v[{acc+4*b}:{acc+4*b+3}] offset:{b*512}")
        for i, (t, b) in enumerate(seq):
            if hook and i % 5 == 0:
                hook(i // 5 + 1)
            q = wreg + 4 * (t * 5 + b)
            c = "0" if t == 0 else f"v[{acc+4*b}:{acc+4*b+3}]"
            a(f"v_mfma_f32_16x16x32_bf16 v[{acc+4*b}:{acc+4*b+3}], v[{vt+4*t}:{vt+4*t+3}], a[{q}:{q+3}], {c}")
            if i < 4:
                for d in (2 * (i & 1), 2 * (i & 1) + 1):
                    a(f"v_and_b32 v{vt+4*(i//2+1)+d}, v{vin+i//2+1}, v{vmask+d}")
            if P["p5w"] == 2 and i == 4:
                a("s_mov_b32 exec_hi, 0xff")
            if P["p5w"] and i in (8, 9, 11, 14):
                wr({8: 0, 9: 1, 11: 2, 14: 3}[i])
                if i < 14:
                    a("s_nop 0")
            elif P["p5w"] and i >= 5:
                a("s_nop 1")
        if hook:
            hook(ng + 1)
        if not P["p5w"]:
            a("s_mov_b32 exec_hi, 0")
        for b in range(4 if P["p5w"] else 0, 5):
            wr(b)
        a("s_mov_b32 exec_hi, 0xff")
        if hook:
            hook(ng + 2)
        a("s_waitcnt lgkmcnt(0)")
        a("s_barrier")
        for w in range(4):
            a(f"ds_read_b128 v[{vt+4*w}:{vt+4*w+3}], v{lds_s+1} offset:{w*2560}")
        a("s_waitcnt lgkmcnt(2)")
        for k in (0, 2):
            a(f"v_pk_add_f32 v[{vt+k}:{vt+k+1}], v[{vt+k}:{vt+k+1}], v[{vt+4+k}:{vt+5+k}]")
        a("s_waitcnt lgkmcnt(0)")
        for k in (0, 2):
            a(f"v_pk_add_f32 v[{vt+8+k}:{vt+9+k}], v[{vt+8+k}:{vt+9+k}], v[{vt+12+k}:{vt+13+k}]")
        for k in (2, 0):
            a(f"v_pk_add_f32 v[{vt+k}:{vt+k+1}], v[{vt+k}:{vt+k+1}], v[{vt+8+k}:{vt+9+k}]")
        a(f"v_min_u32 v{vt+3}, -2, v{vt+3}")
        a.vmem(f"buffer_store_dwordx4 v[{vt}:{vt+3}], v{lds_s+2}, s[16:19], s{s_out} offen sc1", "pub")
        a("s_mov_b64 exec, -1")

    def phase5_addrs(lds_s, base, t):
        a(f"v_and_b32 v{t}, 15, v1")
        a(f"v_lshlrev_b32 v{t}, 5, v{t}")
        a(f"v_and_b32 v{t+1}, 16, v1")
        a(f"s_mul_i32 s27, s3, 2560")
        a(f"s_add_u32 s27, s27, {base}")
        a(f"v_add3_u32 v{lds_s}, v{t}, v{t+1}, s27")
        a(f"s_mul_i32 s27, s3, 640")
        a(f"v_lshl_add_u32 v{lds_s+2}, v1, 4, s27")
        a(f"v_add_u32 v{lds_s+1}, {base}, v{lds_s+2}")

    def tail_setup(sn, vj, vg, vt):
        phase5_addrs(156, R2 + 14336, vt)
        a(f"v_mul_u32_u24 v{vt}, 1280, v{vg}")
        a(f"v_lshl_add_u32 v159, v{vj}, 4, v{vt}")
        a(f"v_lshlrev_b32 v{vt}, 10, v{vj}")
        a(f"v_lshl_add_u32 v160, v{vg}, 4, v{vt}")
        a(f"s_lshr_b32 s87, s{sn}, 2")
        a("s_lshl_b32 s27, s24, 2")
        a("s_add_u32 s87, s87, s27")
        a(f"s_and_b32 s27, s{sn}, 3")
        a("s_lshl_b32 s27, s27, 2")
        a("s_add_u32 s27, s27, s3")
        a("s_mul_i32 s84, s87, 48")
        a("s_add_u32 s84, s84, s27")
        a("s_mulk_i32 s84, 5120")
        a(f"s_add_u32 s85, s84, {64*1280}")
        a(f"s_add_u32 s86, s84, {128*1280}")
        a("s_mulk_i32 s87, 12288")
        a("s_lshl_b32 s27, s27, 6")
        a("s_add_u32 s87, s87, s27")
        a(f"s_add_u32 s87, s87, {XC}")
        a("s_lshl_b32 s88, s24, 4")
        a(f"s_add_u32 s88, s88, s{sn}")
        if P["n5_priv"]:
            a("s_lshl_b32 s83, s3, 13")
            a(f"s_add_u32 s83, s83, {XN5}")
        else:
            a("s_lshl_b32 s83, s24, 7")
            a(f"s_add_u32 s83, s83, {XN5}")
        a("s_mulk_i32 s88, 2560")
        a(f"s_add_u32 s88, s88, {XS}")
        for k in range(3):
            a(f"v_mov_b32 v{164+k}, 0")
        a("v_mov_b32 v161, 1")
        if P["n5_priv"]:
            a(f"s_and_b32 s28, s{sn}, {16 // P['n5_priv'] - 1}")
            a(f"s_xor_b32 s28, s28, {P['n5_who'] & (16 // P['n5_priv'] - 1)}")
            a(f"s_lshr_b32 s27, s3, {P['rep5'].bit_length() - 1}")
            a("s_or_b32 s28, s28, s27")
            a(f"v_lshlrev_b32 v{vt}, 7, v1")
            only_if(162, 28, 40, vt)
        else:
            a(f"v_lshlrev_b32 v{vt}, 10, v1")
            only_if(162, 3, 8, vt)

    def wo_load(n):
        q = 192 + 4 * n
        a.vmem(f"buffer_load_dwordx4 a[{q}:{q+3}], v159, s[20:23], s{84+n//5} offen offset:{(n%5)*256} {NT}", "wo")

    def tail():
        re = "buffer_store_dwordx4 v[28:31], v163, s[16:19], s43 offen sc1"
        a("L_T:")
        a("s_mov_b32 exec_lo, 0x0fff0fff")
        a("s_mov_b32 exec_hi, 0x0fff0fff")
        a("s_mov_b32 s28, 0")
        stamp(13)
        a("L_T_x4:")
        a("buffer_load_dwordx4 v[164:167], v160, s[16:19], s87 offen sc1")
        a("s_add_u32 s28, s28, 1")
        a(f"s_cmp_ge_u32 s28, {P['h_looks']}")
        a("s_cbranch_scc1 L_T_x4_long")
        a("L_T_x4_chk:")
        a.wait_all()
        a("v_cmp_ne_u32 vcc, s26, v167")
        a("s_cbranch_vccnz L_T_x4")
        a("L_T_x4_ok:")
        slow.append(f"""L_T_x4_long:
            s_cmp_lg_u32 s28, {P['h_looks']}
            s_cbranch_scc1 L_T_x4_nore
            s_mov_b64 exec, -1
            {re}
            s_mov_b32 exec_lo, 0x0fff0fff
            s_mov_b32 exec_hi, 0x0fff0fff
            L_T_x4_nore:
            s_cmp_lt_u32 s28, {SPIN}
            s_cbranch_scc1 L_T_x4_chk
            s_waitcnt vmcnt(0)
            s_branch L_T_x4_ok""")
        a("s_mov_b64 exec, -1")
        stamp(14)

        def n5(pos):
            if pos == P["n5_pos"]:
                notice(162, 83)

        n5(0)
        for m in ("quad_perm:[1,0,3,2]", "quad_perm:[2,3,0,1]", "row_half_mirror", "row_mirror"):
            for k in range(3):
                a(f"v_add_f32 v{164+k}, v{164+k}, v{164+k} {m} row_mask:0xf bank_mask:0xf")
        phase5(164, 152, 192, 168, 156, 88, ng=3, hook=n5)
        if RE:
            unless_same("L_T_end")
            a(re)
            a("L_T_end:")

    def x_rows(vd, sreg, ng):
        for g in range(ng):
            a.vmem(f"buffer_load_ushort v{vd+g}, v7, s[4:7], s{sreg} offen offset:{16*g}", "x")

    def rows_load(n, ng, areg, va, srdr, tag):
        g, t = n // 3, n % 3
        q = areg + n * 4
        a.vmem(f"buffer_load_dwordx4 a[{q}:{q+3}], v{va}, s[{srdr}:{srdr+3}], s44 offen offset:{t*128} {NT}", (tag, g))
        if t == 2 and g < ng - 1:
            a("s_add_u32 s44, s44, s45")

    def sel_ops(vx, vop, ng):
        for g in range(ng):
            a(f"v_lshlrev_b32 v{vx+g}, 16, v{vx+g}")
            normalize(vx + g, 3)
            for d in range(4):
                a(f"v_and_b32 v{vop+4*g+d}, v{vx+g}, v{152+d}")

    def red_addrs():
        a("v_bfe_u32 v3, v1, 3, 1")
        a("v_mul_u32_u24 v3, 768, v3")
        a("v_lshl_add_u32 v3, v5, 5, v3")
        a("v_and_b32 v4, 16, v1")
        a("s_mul_i32 s28, s3, 1536")
        a(f"s_add_u32 s28, s28, {R2}")
        a("v_add3_u32 v22, v3, v4, s28")
        a("v_lshlrev_b32 v23, 2, v1")
        a(f"v_add_u32 v23, {R2}, v23")
        a("v_lshlrev_b32 v10, 4, v1")

    def rows_finish(name, ng, vop, areg, tag, nxt, nfirst, depth, dst, slot, flags, before_bar=None, allw=False, two=False):
        done = [0]

        def ready():
            while done[0] < ng and (tag, done[0]) not in a.vm:
                g = done[0]
                for t in range(3):
                    q = areg + (g * 3 + t) * 4
                    c = "0" if g == 0 else f"v[{44+4*t}:{47+4*t}]"
                    a(f"v_mfma_f32_16x16x32_bf16 v[{44+4*t}:{47+4*t}], v[{vop+4*g}:{vop+4*g+3}], a[{q}:{q+3}], {c}")
                done[0] += 1

        ready()
        for k in range(nfirst):
            throttle(depth)
            nxt()
            ready()
        while done[0] < ng:
            a.wait_vm((tag, done[0]))
            ready()
        if before_bar:
            before_bar()
        a("s_mov_b32 exec_lo, 0x00ff00ff")
        a("s_mov_b32 exec_hi, 0xff00ff00")
        for t in range(3):
            a(f"ds_write_b128 v22, v[{44+4*t}:{47+4*t}] offset:{t*256}")
        a("s_mov_b64 exec, -1")
        a("s_waitcnt lgkmcnt(0)")
        a("s_barrier")
        if not allw:
            a("s_cmp_lg_u32 s3, 0")
            a(f"s_cbranch_scc1 L_{name}_nopub")
        for k in range(12):
            a(f"ds_read2st64_b32 v[{64+2*k}:{65+2*k}], v23 offset0:{2*k} offset1:{2*k+1}")
        a(f"v_mov_b32 v{dst+3}, s26")
        a("s_waitcnt lgkmcnt(6)")
        for t in range(3):
            a(f"v_add_f32 v{dst+t}, v{64+t}, v{67+t}")
        for p in (2, 3):
            for t in range(3):
                a(f"v_add_f32 v{dst+t}, v{dst+t}, v{64+3*p+t}")
        if two:
            a.vmem(f"buffer_store_dwordx4 v[{dst}:{dst+3}], v148, s[16:19], s{slot} offen{flags}", "pub")
            a(f"v_mov_b32 v{dst-1}, s26")
            a("s_waitcnt lgkmcnt(0)")
            for t in range(3):
                a(f"v_add_f32 v{dst-4+t}, v{76+t}, v{79+t}")
            for p in (6, 7):
                for t in range(3):
                    a(f"v_add_f32 v{dst-4+t}, v{dst-4+t}, v{64+3*p+t}")
            a.vmem(f"buffer_store_dwordx4 v[{dst-4}:{dst-1}], v149, s[16:19], s{slot} offen{flags}", "pub")
            return
        a("s_waitcnt lgkmcnt(0)")
        for p in range(4, 8):
            for t in range(3):
                a(f"v_add_f32 v{dst+t}, v{dst+t}, v{64+3*p+t}")
        if allw:
            a.vmem(f"buffer_store_dwordx4 v[{dst}:{dst+3}], v148, s[16:19], s{slot} offen{flags}", "pub")
        else:
            a(f"buffer_store_dwordx4 v[{dst}:{dst+3}], v10, s[16:19], s{slot} offen{flags}")
            a(f"L_{name}_nopub:")

    gA = 5
    W6 = P["w6"]
    NQ = 8 if W6 else 4

    stamp(0)
    if P.get("clk"):
        a("s_memtime s[74:75]")
    a("s_cmpk_ge_u32 s2, 256")
    a("s_cbranch_scc1 L_exit")
    a("s_load_dwordx2 s[4:5], s[0:1], 0")
    a("s_load_dwordx2 s[8:9], s[0:1], 16")
    a("s_load_dwordx2 s[12:13], s[0:1], 24")
    a("s_load_dwordx2 s[16:17], s[0:1], 104")
    a("s_getpc_b64 s[30:31]")
    a("L_pc:")
    a("s_lshr_b32 s25, s2, 3")
    if P["rperm"]:
        b = P["rperm"] - 1
        a(f"s_bfe_u32 s27, s25, {hex(0x10000 | b)}")
        a("s_lshl_b32 s27, s27, 4")
        a(f"s_and_b32 s28, s25, {(1 << b) - 1}")
        a("s_or_b32 s27, s27, s28")
        a(f"s_lshr_b32 s25, s25, {b+1}")
        a(f"s_lshl_b32 s25, s25, {b}")
        a("s_or_b32 s25, s25, s27")
    if P["rinv"]:
        a("s_xor_b32 s25, s25, 31")
    if P["cpf"] == 1:
        a("v_lshlrev_b32 v5, 7, v0")
    elif P["cpf"] == 2:
        a("v_and_b32 v5, 7, v0")
        a("v_lshl_add_u32 v5, s25, 3, v5")
        a("v_lshlrev_b32 v5, 7, v5")
    if P["cpf"]:
        a("v_min_u32 v5, L_codeend-L_pc-4, v5")
        a("global_load_dword v255, v5, s[30:31]")
    a("s_cmp_lt_u32 s25, 16")
    a("s_cbranch_scc1 L_A")
    a("s_cmp_ge_u32 s25, 28")
    a("s_cbranch_scc1 L_F")

    a.vm = []
    common_ids()
    srd(12, 0 if P.get("no_uk") else 9437184)
    a("s_sub_u32 s25, s25, 16")
    a("v_lshrrev_b32 v2, 3, v1")
    a("v_and_b32 v5, 7, v1")
    a("v_lshrrev_b32 v4, 5, v1")
    a("v_and_b32 v3, 3, v2")
    a("v_lshl_add_u32 v4, v4, 3, v3")
    a("v_mul_u32_u24 v4, 12288, v4")
    a("v_lshrrev_b32 v3, 1, v2")
    a("v_xor_b32 v3, v3, v5")
    a("v_lshl_add_u32 v6, v3, 4, v4")
    a("v_xor_b32 v7, 64, v6")
    a(f"v_add_u32 v7, {16*12288}, v7")
    a(f"s_mul_i32 s35, s25, {64*12288}")
    a("s_lshl_b32 s36, s24, 2")
    a("s_add_u32 s36, s36, s3")
    a("s_mul_i32 s27, s36, 384")
    a("s_add_u32 s35, s35, s27")
    a(f"s_mul_i32 s37, s3, {R1}")
    a("s_mov_b32 m0, s37")
    a("s_movk_i32 s38, 896")
    a("s_movk_i32 s39, 1280")
    a(f"s_mov_b32 s40, {4*12288}")
    a(f"s_mul_i32 s27, s25, {3*NQ}")
    a("v_lshrrev_b32 v8, 3, v0")
    a(f"v_min_u32 v8, {3*NQ-1}, v8")
    a("v_add_u32 v8, s27, v8")
    a(f"v_min_u32 v8, {32*NQ-1}, v8")
    a("v_lshlrev_b32 v8, 7, v8")
    a(f"s_mul_i32 s42, s24, {4096*NQ}")
    a(f"s_add_u32 s42, s42, {XQ}")
    a("s_waitcnt lgkmcnt(0)")
    tn = [0]

    def tile_dma(srdr, xor, tag, grp):
        n = tn[0]
        par, t = (n // 3) & 1, n % 3
        a.vmem(f"buffer_load_dwordx4 v{6+par}, s[{srdr}:{srdr+3}], s35 offen offset:{t*128} {NT} lds", (tag, n // grp))
        a(f"s_add_u32 m0, m0, s{39 if t == 2 else 38}")
        if n % 6 == 5 and n < 23:
            a("s_add_u32 s35, s35, s40")
            a(f"s_xor_b32 s40, s40, {xor}")
        tn[0] += 1

    XR = (4*12288) ^ (28*12288)
    uk = lambda: tile_dma(12, XR, "uk", 6)

    def h_setup():
        load_epoch()
        a("s_load_dwordx2 s[8:9], s[0:1], 32")
        a("s_load_dwordx2 s[20:21], s[0:1], 40")
        a("v_lshlrev_b32 v10, 4, v1")
        sel_masks(152, 3)
        a("v_and_b32 v2, 15, v1")
        a("v_lshrrev_b32 v3, 4, v1")
        a("v_lshrrev_b32 v4, 3, v2")
        a("v_mul_u32_u24 v4, 3072, v4")
        a("v_and_b32 v5, 7, v2")
        a("v_lshl_add_u32 v4, v5, 7, v4")
        a("v_lshrrev_b32 v5, 1, v2")
        a("v_xor_b32 v5, v5, v3")
        a("v_lshl_add_u32 v4, v5, 4, v4")
        a("v_add_u32 v8, s37, v4")
        a("v_xad_u32 v9, v4, 64, s37")
        a(f"s_mul_i32 s41, s36, {1024*NQ}")
        a(f"s_add_u32 s41, s41, {XQ}")
        a("s_add_u32 s45, s41, 4096")
        a("s_lshl_b32 s27, s3, 9")
        a(f"s_add_u32 s27, s27, {R2+12288}")
        a("v_lshl_add_u32 v11, v1, 1, s27")
        a("v_lshl_add_u32 v12, v3, 4, s27")
        a("v_lshrrev_b32 v4, 1, v3")
        a("v_lshl_add_u32 v4, v2, 1, v4")
        a("v_lshlrev_b32 v4, 10, v4")
        a("v_and_b32 v5, 1, v3")
        a("v_lshl_add_u32 v13, v5, 6, v4")
        a("s_lshl_b32 s42, s25, 12")
        a("s_lshl_b32 s27, s24, 7")
        a("s_add_u32 s42, s42, s27")
        a(f"s_lshl_b32 s27, s3, {10 if P['qa_lines'] else 4}")
        a("s_add_u32 s42, s42, s27")
        a(f"s_add_u32 s42, s42, {XQA}")
        if P["qa_lines"]:
            a("v_lshl_add_u32 v4, v2, 2, v3")
            a("s_lshl_b32 s27, s3, 4")
            a(f"s_add_u32 s27, s27, {R2+11264}")
            a("v_lshl_add_u32 v14, v4, 6, s27")
            a("s_lshl_b32 s27, s3, 7")
            a(f"s_add_u32 s27, s27, {R2+11264}")
            a("v_add_u32 v15, s27, v10")
        tail_setup(25, 2, 3, 4)
        a("v_mov_b32 v163, v10")
        a("v_lshlrev_b32 v4, 9, v1")
        only_if(150, 3, 32, 4)
        a("s_lshr_b32 s82, s24, 1")
        a("s_lshl_b32 s82, s82, 7")
        a(f"s_add_u32 s82, s82, {XN2}")
        a("s_waitcnt lgkmcnt(0)")
        make_tag()
        srd(8, 0 if P.get("no_uv") else 9437184)
        srd(20, 0 if P.get("no_wo") else 7864320)

    def uk_read(T):
        for kk in range(6):
            q = (T * 6 + kk) * 4
            a(f"ds_read_b128 a[{q}:{q+3}], v{8+(kk&1)} offset:{T*6144+(kk>>1)*1024}")

    def xq_loads(tag):
        for mq in range(NQ):
            t = f"buffer_load_dwordx4 v[{16+4*mq}:{19+4*mq}], v10, s[16:19], s{41 if mq < 4 else 45} offen offset:{(mq&3)*1024} sc1"
            if tag:
                a.vmem(t, tag)
            else:
                a(t)

    def xq_check():
        a("v_min3_u32 v4, s26, v19, v23")
        a("v_max3_u32 v5, s26, v19, v23")
        for mq in range(2, NQ, 2):
            a(f"v_min3_u32 v4, v4, v{19+4*mq}, v{23+4*mq}")
            a(f"v_max3_u32 v5, v5, v{19+4*mq}, v{23+4*mq}")
        a("v_cmp_ne_u32 vcc, v4, v5")

    dh = lambda: P["dH1"] if tn[0] < P["nH1"] else P["dH"]
    def wq_help():
        ng = P["wq_pf"]
        per = 8 * ng * 16
        k = (2 * per + 47) // 48
        srd(8, 7864320)
        a("s_lshr_b32 s27, s8, 7")
        a("s_mul_i32 s28, s24, 12")
        a("s_add_u32 s27, s27, s28")
        a("s_sub_u32 s27, 3, s27")
        a("s_and_b32 s27, s27, 7")
        a("s_cmp_lt_u32 s27, 4")
        a(f"s_cselect_b32 s43, {k}, {(k+1)//2}")
        a("s_cselect_b32 s44, 2, 1")
        a(f"s_mulk_i32 s44, {per}")
        a("s_sub_u32 s44, s44, 1")
        a("s_add_u32 s27, s27, s28")
        a("s_lshl_b32 s27, s27, 7")
        a(f"s_add_u32 s27, s27, {(40-8*ng)*12288}")
        a("s_lshl2_add_u32 s28, s25, s3")
        a("s_mul_i32 s28, s28, s43")
        a("s_sub_u32 s43, s43, 1")
        a("v_min_u32 v9, s43, v1")
        a("v_add_u32 v9, s28, v9")
        a("v_min_u32 v9, s44, v9")
        a(f"s_mov_b32 s28, {(1 << 32) // (8*ng) + 1}")
        a("v_mul_hi_u32 v11, v9, s28")
        a(f"v_mul_u32_u24 v12, {8*ng}, v11")
        a("v_sub_u32 v9, v9, v12")
        a("v_and_b32 v12, 15, v11")
        a("v_mad_u32_u24 v9, v12, 40, v9")
        a("v_mul_u32_u24 v9, 12288, v9")
        a("v_lshrrev_b32 v11, 4, v11")
        a("v_lshl_add_u32 v9, v11, 10, v9")
        a.vmem("buffer_load_dword v18, v9, s[8:11], s27 offen", "pt")

    uk()
    uk()
    if P["wq_pf"]:
        wq_help()
    a.vmem("buffer_load_dword v17, v8, s[16:19], s42 offen sc1", "pt")
    while tn[0] <= dh():
        uk()
    h_setup()
    while tn[0] < 24:
        throttle(dh() + (sum(t == "xq" for t in a.vm[-(dh()+NQ):])))
        uk()
        if tn[0] == P["x1_at"]:
            xq_loads("xq")
            flag_load(0)
    stamp(1)
    rd = [0]

    def uk_ready():
        while rd[0] < 4 and ("uk", rd[0]) not in a.vm:
            uk_read(rd[0])
            rd[0] += 1

    def uv_setup():
        a("s_cmp_lt_u32 s25, 8")
        a("s_cselect_b32 s44, 16, 4")
        a("s_cselect_b32 s47, 4, 8")
        a("s_cselect_b32 s40, 8, 48")
        a(f"s_cselect_b32 s46, {(8*12288) ^ (40*12288)}, 0")
        a("s_cselect_b32 s27, 1, 2")
        a(f"s_cselect_b32 s28, 0, {32*12288}")
        a("s_mulk_i32 s47, 12288")
        a("s_mulk_i32 s40, 12288")
        a("s_and_b32 s35, s25, 7")
        a("s_mul_i32 s35, s35, s27")
        a(f"s_mul_i32 s35, s35, {96*12288}")
        a("s_add_u32 s35, s35, s28")
        a("s_mul_i32 s27, s36, 384")
        a("s_add_u32 s35, s35, s27")
        a("v_lshrrev_b32 v4, 5, v1")
        a("v_bfe_u32 v5, v1, 3, 2")
        a("v_mad_u32_u24 v4, v4, s44, v5")
        a("v_mul_u32_u24 v4, 12288, v4")
        a("v_and_b32 v5, 2, v5")
        a("v_xor_b32 v5, v5, v1")
        a("v_and_b32 v5, 7, v5")
        a("v_lshl_add_u32 v6, v5, 4, v4")
        a("v_xad_u32 v7, v6, 64, s47")
        a("s_mov_b32 m0, s37")

    won = 0
    uk_ready()
    if P["uv_early"]:
        uv_setup()
        tn[0] = 0
    if P["x1_at"] > 24:
        throttle(P["x1_wait"])
        xq_loads("xq")
        flag_load(0)
    stamp(2)
    uk_ready()
    while rd[0] < 4 and "xq" in a.vm and a.vm_n(("uk", rd[0])) > a.vm_n("xq"):
        a.wait_vm(("uk", rd[0]))
        uk_ready()
    if "xq" in a.vm:
        a.wait_vm("xq", " lgkmcnt(0)")
    else:
        a("s_waitcnt lgkmcnt(0)")
    flag_check("H", 0)
    stamp(3)
    xq_check()
    a("s_cbranch_vccnz L_H_xq_slow")
    a("L_H_xq_ok:")
    stamp(4)
    if P["n2"] == 3:
        notice(150, 82)
    slow.append("\n".join(["L_H_xq_slow:", "s_mov_b32 s28, 0", "L_H_xq_loop:", "s_add_u32 s29, s29, 1",
                           ] + cap(xq_loads, None) +
                          ["s_add_u32 s28, s28, 1", "s_waitcnt vmcnt(0)"] + cap(xq_check) +
                          ["s_cbranch_vccz L_H_xq_ok", f"s_cmp_lt_u32 s28, {SPIN}", "s_cbranch_scc1 L_H_xq_loop", "s_branch L_H_xq_ok"]))
    for k in range(3):
        a(f"v_add_f32 v{16+k}, v{16+k}, v{20+k}")
        a(f"v_add_f32 v{24+k}, v{24+k}, v{28+k}")
    if NQ == 8:
        for k in range(3):
            a(f"v_add_f32 v{32+k}, v{32+k}, v{36+k}")
            a(f"v_add_f32 v{40+k}, v{40+k}, v{44+k}")
        for k in range(3):
            a(f"v_add_f32 v{16+k}, v{16+k}, v{32+k}")
            a(f"v_add_f32 v{24+k}, v{24+k}, v{40+k}")
    for k in range(3):
        a(f"v_add_f32 v{16+k}, v{16+k}, v{24+k}")
    a("v_cvt_pk_bf16_f32 v16, v16, v17")
    a("v_cvt_pk_bf16_f32 v18, v18, v18")
    a("ds_write_b16 v11, v16")
    a("ds_write_b16_d16_hi v11, v16 offset:128")
    a("ds_write_b16 v11, v18 offset:256")
    for kk in range(6):
        a(f"ds_read_b128 v[{32+4*kk}:{35+4*kk}], v12 offset:{kk*64}")

    def qa_mfma(T, kk):
        q = (T * 6 + kk) * 4
        c = "0" if kk == 0 else f"v[{16+4*T}:{19+4*T}]"
        a(f"v_mfma_f32_16x16x32_bf16 v[{16+4*T}:{19+4*T}], a[{q}:{q+3}], v[{32+4*kk}:{35+4*kk}], {c}")

    have = rd[0]
    for kk in range(6):
        a(f"s_waitcnt lgkmcnt({5-kk})")
        for T in range(have):
            qa_mfma(T, kk)
    while rd[0] < 4:
        T = rd[0]
        if ("uk", T) in a.vm:
            a.wait_vm(("uk", T))
        uk_read(T)
        rd[0] += 1
        for kk in range(6):
            a(f"s_waitcnt lgkmcnt({5-kk})")
            qa_mfma(T, kk)
    if P["n2"] == 2:
        a("s_barrier")
        notice(150, 82)
        for k in range(P["uv_early"] - 1):
            tile_dma(8, "s46", "uv", 12)
    a("v_cmp_eq_u32 vcc, 1, v2")
    a(f"s_mov_b32 s27, {f32(math.log2(math.e)/math.sqrt(192))}")
    a("s_mov_b32 exec_lo, 0x30003")
    a("s_mov_b32 exec_hi, 0x30003")
    for k in range(8):
        a(f"v_cndmask_b32 v{16+k}, v{16+k}, v{24+k}, vcc")
    for k in range(8):
        a(f"v_mul_f32 v{16+k}, s27, v{16+k}")
    for k in range(4):
        a(f"v_cvt_pk_bf16_f32 v{24+k}, v{16+2*k}, v{17+2*k}")
    a("v_min_u32 v27, -2, v27")
    if P["qa_lines"]:
        a("ds_write_b128 v14, v[24:27]")
        a("s_mov_b64 exec, 0xff")
        a("s_waitcnt lgkmcnt(0)")
        a("s_barrier")
        a("ds_read_b128 v[24:27], v15")
        if P["n2"] == 4:
            a("s_mov_b64 exec, -1")
            notice(150, 82)
            a("s_mov_b64 exec, 0xff")
        a("s_waitcnt lgkmcnt(0)")
        a.vmem("buffer_store_dwordx4 v[24:27], v10, s[16:19], s42 offen sc1", "pub")
    else:
        a.vmem("buffer_store_dwordx4 v[24:27], v13, s[16:19], s42 offen sc1", "pub")
    a("s_mov_b64 exec, -1")
    stamp(5)
    if not (P["uv_early"] and P["n2"] == 2):
        a("s_barrier")
    if P["n2"] == 1:
        notice(150, 82)
    stamp(6)
    if not P["uv_early"]:
        uv_setup()
    if not P["uv_early"]:
        same_add("H")
        tn[0] = 0
    while tn[0] < 24:
        throttle(P["dV1"] if tn[0] < P["nV1"] else P["dV"])
        tile_dma(8, "s46", "uv", 12)
        if P["uv_early"] and tn[0] == 6:
            same_add("H")
    a("v_mul_u32_u24 v4, 3072, v3")
    a("v_lshrrev_b32 v5, 2, v2")
    a("v_lshl_add_u32 v4, v5, 7, v4")
    a("v_and_b32 v5, 2, v5")
    a("v_and_b32 v12, 1, v3")
    a("v_lshl_or_b32 v5, v12, 2, v5")
    a("v_bfe_u32 v12, v1, 1, 1")
    a("v_or_b32 v5, v5, v12")
    a("v_lshl_add_u32 v4, v5, 4, v4")
    a("v_and_b32 v12, 1, v1")
    a("v_lshl_add_u32 v4, v12, 3, v4")
    a("v_add_u32 v8, s37, v4")
    a("v_xad_u32 v9, v4, 32, s37")
    a("v_xad_u32 v14, v4, 64, s37")
    a("v_xor_b32 v4, 64, v4")
    a("v_xad_u32 v15, v4, 32, s37")
    a("v_lshrrev_b32 v5, 3, v1")
    a("v_lshrrev_b32 v4, 1, v5")
    a("v_xor_b32 v4, v4, v1")
    a("v_and_b32 v4, 7, v4")
    a("v_lshlrev_b32 v4, 4, v4")
    a("v_mul_u32_u24 v5, 1536, v5")
    a("v_add_u32 v24, v4, v5")
    a("v_xor_b32 v4, 64, v4")
    a(f"v_add_u32 v4, {8*1536}, v4")
    a("v_add_u32 v25, v4, v5")
    a("s_mul_i32 s40, s36, 24576")
    a("s_lshl_b32 s27, s25, 7")
    a("s_add_u32 s40, s40, s27")
    a(f"s_add_u32 s40, s40, {XO}")
    a("s_lshl_b32 s41, s3, 11")
    a(f"s_add_u32 s41, s41, {R2+2048}")
    a("v_lshrrev_b32 v4, 1, v2")
    a("v_xor_b32 v4, v4, v3")
    a("v_lshlrev_b32 v4, 4, v4")
    a("v_lshl_add_u32 v5, v2, 7, s41")
    a("v_add_u32 v26, v4, v5")
    a("v_xad_u32 v27, v4, 64, v5")
    a("v_lshrrev_b32 v36, 2, v1")
    a("v_lshlrev_b32 v36, 8, v36")
    a("s_lshl_b32 s27, s25, 1")
    a("s_sub_u32 s27, s27, 16")
    a("s_cmp_lt_u32 s25, 8")
    a("s_cselect_b32 s27, s25, s27")
    a("s_cselect_b32 s89, 0, 128")
    a("s_lshl_b32 s42, s27, 12")
    a("s_lshl_b32 s28, s36, 3")
    a("s_add_u32 s42, s42, s28")
    a(f"s_add_u32 s42, s42, {XML}")
    a("s_lshl_b32 s28, s24, 3")
    a("s_add_u32 s27, s27, s28")
    a("s_lshl_b32 s27, s27, 7")
    a(f"s_add_u32 s27, s27, {XN3}")
    cnt_base(27)
    a("s_mul_i32 s43, s36, 12")
    a("s_add_u32 s43, s43, s25")
    a("s_lshl_b32 s43, s43, 10")
    a(f"s_add_u32 s43, s43, {XC}")
    a("v_mov_b32 v31, s26")
    tr_done = [0]

    def uv_ready():
        while tr_done[0] < 2 and ("uv", tr_done[0]) not in a.vm:
            st = tr_done[0]
            for T in range(12):
                for b in range(2):
                    q = (T * 2 + st) * 4 + 2 * b
                    a(f"ds_read_b64_tr_b16 a[{q}:{q+1}], v{(8, 9, 14, 15)[T&3]} offset:{st*12288+(T>>2)*1024+b*512}")
            tr_done[0] += 1

    uv_ready()
    if P["h1_early"]:
        same_load()
        flag_load(1)
    while won < 15 - P["wo_late"]:
        throttle(P["dV"])
        wo_load(won)
        won += 1
    if not P["h1_early"]:
        same_load()
        flag_load(1)
    while tr_done[0] < 2:
        if ("uv", tr_done[0]) in a.vm:
            a.wait_vm(("uv", tr_done[0]))
        uv_ready()
    stamp(7)
    OA = 48
    AC = 64
    D = " row_mask:0xf bank_mask:0xf"

    def allred(op, v):
        a(f"{op} v{v}, v{v}, v{v} row_ror:8{D}")
        for sw in ("32", "16"):
            a(f"v_mov_b32 v5, v{v}")
            a(f"v_permlane{sw}_swap_b32 v{v}, v5")
            a(f"{op} v{v}, v{v}, v5")

    def weights():
        a(f"v_max_f32 v4, v40, v40 row_ror:4{D}")
        allred("v_max_f32", 4)
        a("v_sub_f32 v16, v40, v4")
        a("v_exp_f32 v16, v16")

    def norm():
        a("v_mul_f32 v17, v16, v41")
        a(f"v_add_f32 v17, v17, v17 row_ror:4{D}")
        allred("v_add_f32", 17)
        a("v_rcp_f32 v17, v17")

    a("s_waitcnt lgkmcnt(0)")
    flag_check("H1", 1)
    a("s_cmp_lg_u32 s3, 0")
    a("s_cbranch_scc1 L_H_n3_out")
    if P["rep3"] > 1:
        poll_multi("H_n3", P["rep3"], "s89", 15, P["pipe3"])
    else:
        poll_cnt("H_n3", ["0", "s89"], 15, 0)
    a("s_barrier")
    stamp(10)
    a("s_mov_b32 s28, 0")

    def x3_loads():
        a("s_mov_b32 m0, s41")
        a("s_add_u32 s28, s28, 1")
        a("buffer_load_dwordx4 v24, s[16:19], s40 offen sc1 lds")
        a("s_add_u32 m0, m0, 1024")
        a("s_add_u32 s29, s29, 0x1000000")
        a("buffer_load_dwordx4 v25, s[16:19], s40 offen sc1 lds")
        a("buffer_load_dwordx2 v[40:41], v36, s[16:19], s42 offen sc1")

    x3_loads()
    nl8 = P["wo_late"]
    if nl8:
        a("s_barrier")
    while won < 15:
        wo_load(won)
        won += 1
    a(f"s_waitcnt vmcnt({1+nl8})")
    a("L_H_x3:")
    for st in range(2):
        a(f"ds_read_b128 v[{OA+4*st}:{OA+4*st+3}], v{26+st}")
    a(f"s_waitcnt vmcnt({nl8})")
    weights()
    a("s_waitcnt lgkmcnt(0)")
    a.vm = []
    slow.append("\n".join(["L_H_x3_retry:", f"s_cmp_ge_u32 s28, {SPIN}", "s_cbranch_scc1 L_H_x3_ok"] + cap(x3_loads) +
                           ["s_waitcnt vmcnt(0)", "s_branch L_H_x3"]))
    stamp(8)
    fill = [f"v_max3_u32 v39, v41, v{OA+1}, v{OA+3}", f"v_max3_u32 v39, v39, v{OA+5}, v{OA+7}",
            "v_cmp_eq_u32 vcc, -1, v39", "s_cbranch_vccnz L_H_x3_retry\nL_H_x3_ok:"]
    nl = cap(norm)

    def post(T):
        o = [f"v_mul_f32 v{AC+4*T}, v16, v{AC+4*T} row_newbcast:0{D}"]
        for r in range(1, 4):
            o.append(f"v_fmac_f32 v{112+T}, v16, v{AC+4*T+r} row_newbcast:{4*r}{D}")
        o[0] = f"v_mul_f32 v{112+T}, v16, v{AC+4*T} row_newbcast:0{D}"
        return o

    def fold(Q):
        b = 112 + 4 * Q
        return [f"v_permlane32_swap_b32 v{b}, v{b+2}", f"v_permlane32_swap_b32 v{b+1}, v{b+3}",
                f"v_add_f32 v{b}, v{b}, v{b+2}", f"v_add_f32 v{b+1}, v{b+1}, v{b+3}",
                f"v_permlane16_swap_b32 v{b}, v{b+1}", f"v_add_f32 v{b}, v{b}, v{b+1}", f"v_mul_f32 v{28+Q}, v{b}, v17"]

    def mix(*lists):
        o = []
        lists = [list(l) for l in lists]
        while any(lists):
            for l in lists:
                if l:
                    o.append(l.pop(0))
        return o

    for T in range(12):
        if T in (1, 2):
            fill += nl[:4] if T == 1 else []
        if T >= 3 and T & 1:
            fill += mix(post(T - 3), post(T - 2))
        for st in range(2):
            q = (T * 2 + st) * 4
            c = "0" if st == 0 else f"v[{AC+4*T}:{AC+4*T+3}]"
            a(f"v_mfma_f32_16x16x32_bf16 v[{AC+4*T}:{AC+4*T+3}], v[{OA+4*st}:{OA+4*st+3}], a[{q}:{q+3}], {c}")
            for k in range(2):
                if fill:
                    a(fill.pop(0))
    for l in mix(fill, nl[4:]) + mix(fold(0)[:6], fold(1)[:6], mix(post(10), post(11))) + mix(fold(2), fold(0)[6:] + fold(1)[6:]):
        a(l)
    a(f"buffer_store_dwordx4 v[28:31], v10, s[16:19], s43 offen{LOC}")
    stamp(9)
    tail()
    dump_stamps()
    a("L_exit:")
    a("s_endpgm")

    a(".p2align 8")
    a("L_A:")
    role[0] = "A"
    a.vm = []
    common_ids()
    srd(4, 1280)
    srd(8, 0 if P.get("no_wq") else 7864320)
    a("v_lshrrev_b32 v2, 3, v1")
    a("v_and_b32 v5, 7, v1")
    a("v_mul_u32_u24 v6, 12288, v2")
    a("v_lshl_add_u32 v6, v5, 4, v6")
    if W6:
        a("s_and_b32 s46, s25, 7")
        a("s_and_b32 s27, s3, 1")
        a("s_lshl1_add_u32 s46, s46, s27")
        a("s_lshr_b32 s27, s25, 3")
        a("s_lshl1_add_u32 s88, s24, s27")
        a("s_lshr_b32 s27, s3, 1")
        a("s_lshl1_add_u32 s27, s88, s27")
    else:
        a("s_and_b32 s46, s25, 3")
        a("s_lshl2_add_u32 s46, s46, s3")
        a("s_lshr_b32 s27, s25, 2")
        a("s_lshl2_add_u32 s27, s24, s27")
    a(f"s_mul_i32 s44, s46, {8*gA*12288}")
    a(f"s_mul_i32 s35, s46, {16*gA}")
    a("v_lshlrev_b32 v7, 1, v2")
    a("s_mul_i32 s27, s27, 384")
    a("s_add_u32 s44, s44, s27")
    a(f"s_mov_b32 s45, {8*12288}")
    a("s_waitcnt lgkmcnt(0)")
    dQ = P["dQ"]
    wq = 0
    while wq < min(3 * gA, dQ + 1):
        if wq == P["x_at"]:
            x_stats_loads(8)
            x_rows(13, 35, gA)
        rows_load(wq, gA, 0, 6, 8, "wq")
        wq += 1
    stamp(1)
    load_epoch()
    a("s_load_dwordx2 s[12:13], s[0:1], 8")
    a("s_load_dwordx2 s[84:85], s[0:1], 88")
    a("s_lshl_b32 s89, s24, 4")
    a("s_add_u32 s89, s89, s25")
    if W6:
        a("s_lshl_b32 s88, s88, 4")
        a("s_and_b32 s27, s25, 7")
        a("s_add_u32 s88, s88, s27")
        a("s_lshl_b32 s88, s88, 10")
    else:
        a("s_lshl_b32 s88, s89, 10")
    a(f"s_add_u32 s88, s88, {XQ}")
    sel_masks(152, 3)
    a("v_lshlrev_b32 v149, 4, v1")
    only_if(148, 3, 64, 149)
    if W6:
        a("v_add_u32 v150, 8192, v149")
        a("v_add_u32 v149, 8192, v148")
    a("v_lshrrev_b32 v3, 1, v2")
    a("v_xor_b32 v3, v3, v5")
    a("v_mul_u32_u24 v4, 1536, v2")
    a("v_lshl_add_u32 v62, v3, 4, v4")
    a("v_xor_b32 v63, 64, v62")
    a(f"v_add_u32 v63, {8*1536}, v63")
    a(f"s_mul_i32 s35, s89, {64*1536}")
    a("s_mul_i32 s28, s3, 384")
    a("s_add_u32 s35, s35, s28")
    for p in range(4):
        a(f"s_xor_b32 s28, s3, {p}")
        a(f"s_mul_i32 s28, s28, {16*1536}")
        a(f"s_add_u32 s{96+p}, s35, s28")
    a(f"s_mul_i32 s37, s3, {R1}")
    a("s_mov_b32 m0, s37")
    a("s_movk_i32 s100, 896")
    a("s_movk_i32 s101, 1280")
    a.wait_vm("x", " lgkmcnt(0)")
    make_tag()
    srd(12, 0 if P.get("no_ck") else 12582912)
    fill = cap(ln_stats, 8, 24) + cap(sel_ops, 13, 24, gA) + cap(red_addrs)
    while wq < 3 * gA and len(a.vm) <= dQ:
        rows_load(wq, gA, 0, 6, 8, "wq")
        wq += 1
    rem = 3 * gA - wq
    per = (len(fill) + rem) // (rem + 1) if rem else len(fill)
    while wq < 3 * gA:
        pop_n(fill, per)
        a.wait_vm_n(dQ)
        rows_load(wq, gA, 0, 6, 8, "wq")
        wq += 1
    for l in fill:
        a(l)
    a("s_load_dwordx2 s[8:9], s[0:1], 80")
    ck = [0]

    def ckv_dma():
        n = ck[0]
        p, par, t = n // 6, (n // 3) & 1, n % 3
        a.vmem(f"buffer_load_dwordx4 v{62+par}, s[12:15], s{96+p} offen offset:{t*128} {P['ckf']} lds", ("ck", n // 12))
        a(f"s_add_u32 m0, m0, s{101 if t == 2 else 100}")
        ck[0] += 1

    dck = lambda: P["dC1"] if ck[0] < P["nC1"] else P["dC"]
    rows_finish("A_q", gA, 24, 0, "wq", ckv_dma, P["a_first"], dQ, 232, 88, LOC, lambda: stamp(2), allw=P['prog'] or W6, two=W6)
    if P["q_bar"]:
        a("s_barrier")
    stamp(3)
    checked = False
    for k in range(dck() + 1):
        throttle(dck())
        ckv_dma()
    a("s_lshl_b32 s27, s25, 2")
    a("s_add_u32 s27, s27, s3")
    a("s_lshl_b32 s42, s27, 10")
    a(f"s_mul_i32 s28, s24, {PM}")
    a("s_add_u32 s42, s42, s28")
    a(f"s_add_u32 s42, s42, {XP}")
    a("s_lshl_b32 s43, s25, 9")
    a("s_add_u32 s43, s43, s28")
    a("s_lshl_b32 s27, s3, 2")
    a("s_add_u32 s43, s43, s27")
    a(f"s_add_u32 s43, s43, {XM}")
    a("v_lshrrev_b32 v3, 5, v1")
    a("v_lshl_or_b32 v32, v3, 29, v10")

    def a_setup():
        a("v_and_b32 v2, 31, v1")
        a("v_lshrrev_b32 v3, 5, v1")
        a("v_lshrrev_b32 v4, 3, v2")
        a("v_mul_u32_u24 v4, 3072, v4")
        a("v_lshl_add_u32 v4, v5, 7, v4")
        a("v_bfe_u32 v11, v2, 1, 3")
        a("v_xor_b32 v11, v11, v3")
        a("s_and_b32 s28, s25, 3" if P["qrot"] else "s_mov_b32 s28, 0")
        a("s_lshl_b32 s27, s28, 1")
        a("v_xor_b32 v11, s27, v11")
        a("v_lshl_add_u32 v4, v11, 4, v4")
        a("v_add_u32 v20, s37, v4")
        a("v_xad_u32 v21, v4, 32, s37")
        a("v_xad_u32 v22, v4, 64, s37")
        a("v_xor_b32 v4, 64, v4")
        a("v_xad_u32 v23, v4, 32, s37")
        a("v_lshrrev_b32 v4, 2, v2")
        a("v_lshlrev_b32 v4, 7, v4")
        a("v_lshl_add_u32 v4, v3, 6, v4")
        a("v_and_b32 v11, 3, v1")
        a("v_lshl_add_u32 v24, v11, 4, v4")
        for k in range(4):
            a(f"s_xor_b32 s27, s28, {k}")
            a(f"v_lshl_add_u32 v{224+k}, s27, 10, v24")
        a("s_mul_i32 s38, s3, 12288")
        a(f"s_add_u32 s38, s38, {XQA}")
        a("s_add_u32 s39, s38, 4096")
        a("s_add_u32 s40, s38, 8192")
        a("s_mov_b32 s27, 0x15555556")
        for m in range(3):
            a(f"v_add_u32 v4, {64*m}, v1")
            a("v_mul_hi_u32 v11, v4, s27")
            a(f"v_mul_u32_u24 v11, {1536-192}, v11")
            a(f"v_lshl_add_u32 v{25+m}, v4, 4, v11")
        a("s_lshr_b32 s27, s25, 3")
        a("s_lshl_b32 s35, s24, 1")
        a("s_add_u32 s35, s35, s27")
        a("s_and_b32 s36, s25, 7")
        a("s_lshl_b32 s27, s35, 2")
        a("s_add_u32 s27, s27, s3")
        a(f"s_mul_i32 s41, s27, {128*1536}")
        a("s_mul_i32 s27, s36, 192")
        a("s_add_u32 s41, s41, s27")
        a(f"s_movk_i32 s46, 1024")
        a(f"s_movk_i32 s47, {16*1536}")
        for p in range(1, 4):
            a(f"s_xor_b32 s27, s3, {p}")
            a("s_mul_i32 s27, s27, 6144")
            a(f"s_add_u32 s27, s27, {R2+(p-1)*2048}")
            a(f"v_add_u32 v{27+p}, s27, v10")
        a("s_mul_i32 s27, s3, 6144")
        a(f"s_add_u32 s27, s27, {R2}")
        a("v_add_u32 v31, s27, v10")
        a("v_and_b32 v18, 15, v1")
        a("v_lshrrev_b32 v19, 4, v1")
        a("v_lshlrev_b32 v4, 13, v19")
        a("v_lshl_add_u32 v33, v18, 4, v4")
        a("v_lshlrev_b32 v4, 10, v19")
        a("v_lshl_add_u32 v34, v18, 4, v4")
        a("s_lshr_b32 s27, s3, 1")
        a("s_and_b32 s28, s3, 1")
        a("s_lshl_b32 s44, s35, 15")
        a("s_lshl_b32 s20, s24, 13")
        a("s_add_u32 s44, s44, s20")
        a("s_lshl_b32 s20, s27, 8")
        a("s_add_u32 s44, s44, s20")
        a(f"s_add_u32 s44, s44, {XP}")
        a("s_add_u32 s45, s44, 4096")
        a("s_lshl_b32 s20, s35, 12")
        a("s_lshl_b32 s21, s24, 16")
        a("s_add_u32 s20, s20, s21")
        a("s_lshl_b32 s21, s27, 8")
        a("s_add_u32 s20, s20, s21")
        a(f"s_add_u32 s20, s20, {XM}")
        a(f"v_mul_u32_u24 v4, {R1}, v19")
        a("v_lshrrev_b32 v11, 2, v18")
        a("v_mul_u32_u24 v11, 192, v11")
        a("v_add_u32 v4, v4, v11")
        a("v_and_b32 v11, 3, v1")
        a("v_lshl_add_u32 v4, v11, 3, v4")
        a("s_mul_i32 s21, s28, 96")
        a("v_add_u32 v35, s21, v4")
        a("v_lshl_add_u32 v36, v18, 2, v19")
        a("v_lshlrev_b32 v36, 2, v36")
        a("v_lshrrev_b32 v4, 2, v1")
        a("v_mul_u32_u24 v4, 24576, v4")
        a("v_lshl_add_u32 v37, v11, 4, v4")
        a("v_lshl_add_u32 v38, v11, 3, v4")
        a(f"s_mul_i32 s21, s27, {16*24576}")
        a("s_mul_i32 s22, s35, 1536")
        a("s_add_u32 s21, s21, s22")
        a(f"s_add_u32 s21, s21, {XO}")
        a("s_lshl_b32 s23, s36, 1")
        a("s_add_u32 s23, s23, s28")
        a("s_lshl_b32 s22, s23, 5")
        a("s_add_u32 s22, s22, s21")
        a("s_add_u32 s22, s22, 1024")
        a("s_lshl_b32 s28, s23, 6")
        a("s_add_u32 s21, s21, s28")
        a("s_lshl_b32 s35, s35, 8")
        a("s_lshl_b32 s27, s27, 7")
        a("s_add_u32 s35, s35, s27")
        a("s_lshl_b32 s27, s36, 12")
        a("s_add_u32 s35, s35, s27")
        a(f"s_add_u32 s35, s35, {XML}")
        for k in range(4):
            a(f"v_mov_b32 v{40+k}, 0x3f803f80")
        a("s_lshl_b32 s81, s36, 7")
        a(f"s_add_u32 s81, s81, {XN3}")
        a("v_mov_b32 v161, 1")
        a("v_lshlrev_b32 v4, 10, v1")
        only_if(162, 3, 16 if P["f_gate"] else 8 * P["rep3"], 4)
        a("s_and_b32 s23, s3, 1")
        a("v_lshlrev_b32 v4, 3, v1")
        only_if(39, 23, 16, 4)
        a("s_lshr_b32 s27, s89, 2")
        a("s_lshl_b32 s27, s27, 9")
        a(f"s_add_u32 s27, s27, {XN2}")
        cnt_base(27)
        srd(8, 1280)
        srd(84, 1280)
        if P["n_pf"]:
            n = P["n_pf"]
            a("s_lshl2_add_u32 s27, s25, s3")
            a(f"s_mulk_i32 s27, {30*n}")
            a(f"v_min_u32 v4, {30*n-1}, v1")
            a("v_add_u32 v4, s27, v4")
            a(f"s_mov_b32 s27, {(1 << 32) // (640*n) + 1}")
            a("v_mul_hi_u32 v11, v4, s27")
            a(f"v_mul_u32_u24 v11, {1920-640*n}, v11")
            a("v_add_lshl_u32 v208, v4, v11, 7")

    fill = cap(a_setup)
    rem = 24 - ck[0]
    per = (len(fill) + rem - 1) // rem
    while ck[0] < 24:
        pop_n(fill, per)
        throttle(dck())
        ckv_dma()
        if ck[0] == P["a_flag_at"]:
            flag_load(P["a_lvl"])
        if ck[0] == P["a_flag_at"] + 4:
            a("s_waitcnt lgkmcnt(0)")
            flag_check("A", P["a_lvl"])
            same_add("A")
            checked = True
        if P["n2"] and ck[0] == P["n2_at"]:
            assert checked
            pop_n(fill, 999)
            a("s_cmp_lg_u32 s3, 0")
            a("s_cbranch_scc1 L_A_nolook")
            for k in range(4):
                a(f"s_load_dword s{(92, 94, 95, 83)[k]}, s[90:91], {128*k} glc")
            a("L_A_nolook:")
    assert checked
    assert not fill
    stamp(4)
    XQRE = "buffer_store_dwordx4 v[232:235], v10, s[16:19], s88 offen sc1"
    if W6:
        XQRE += "\nbuffer_store_dwordx4 v[228:231], v150, s[16:19], s88 offen sc1"
    CA = 160
    QA = 64
    SA = 112

    def ck_read(kt):
        for kk in range(12):
            q = CA + (kt * 12 + kk) * 4
            a(f"ds_read_b128 a[{q}:{q+3}], v{20+(kk&3)} offset:{kt*12288+(kk>>2)*1024}")

    def qa_load(kk):
        return f"buffer_load_dwordx4 v[{QA+4*kk}:{QA+4*kk+3}], v{224+(kk&3)}, s[16:19], s{38+(kk>>2)} offen sc1"

    def s_mfma(kk):
        for kt in range(2):
            q = CA + (kt * 12 + kk) * 4
            c = f"v[{SA+16*kt}:{SA+16*kt+15}]" if kk or P["prog"] else "0"
            a(f"v_mfma_f32_32x32x16_bf16 v[{SA+16*kt}:{SA+16*kt+15}], a[{q}:{q+3}], v[{QA+4*kk}:{QA+4*kk+3}], {c}")

    l2 = [0]

    def l2_dma():
        n = l2[0]
        if not P.get("no_l2") or (P.get("no_l2") == 2 and n % 2):
            a.vmem(f"buffer_load_dwordx4 v{25+n%3}, s[12:15], s41 offen {P['l2f']} lds", ("l2", n // 12))
        a("s_add_u32 m0, m0, s46")
        if n % 3 == 2:
            a("s_add_u32 s41, s41, s47")
        l2[0] += 1

    trn = [0]

    def tr_read():
        n = trn[0]
        s, T, b = n // 6, (n // 2) % 3, n & 1
        q = (s * 3 + T) * 4 + 2 * b
        a(f"ds_read_b64_tr_b16 a[{q}:{q+1}], v35 offset:{(16*(s>>1)+4*(s&1)+8*b)*192+32*T}")
        trn[0] += 1

    a("s_waitcnt lgkmcnt(0)")
    if ("ck", 0) in a.vm:
        a.wait_vm(("ck", 0))
    ck_read(0)
    a("s_mov_b32 m0, s37")
    if P["n_pf"]:
        a("s_load_dwordx2 s[96:97], s[0:1], 40")
        srd(96, 7864320)
        a("s_mul_i32 s100, s24, 983040")
        a(f"s_add_u32 s100, s100, {(3-P['n_pf'])*81920}")
    if P["prog"]:
        for k in range(32):
            a(f"v_mov_b32 v{SA+k}, 0")
        a("s_mov_b32 s82, 0")
    throttle(P["a_x2_wait"])
    stamp(5)
    tgt = P["n2_tgt"] - 1
    if P["n2"]:
        a("s_cmp_lg_u32 s3, 0")
        a("s_cbranch_scc1 L_A_n2_out")
        if P["n2_at"]:
            a("s_min_i32 s92, s92, s94")
            a("s_min_i32 s95, s95, s83")
            a("s_min_i32 s92, s92, s95")
            a(f"s_cmp_ge_i32 s92, {tgt}")
            a("s_cbranch_scc1 L_A_n2_out")
        poll_cnt("A_n2", ["0", "128", "256", "384"], tgt, 0, (P["q_looks"], XQRE) if P["local"] else None, pipe=P["pipe2"])
    a("s_barrier")
    tr_ok = 0
    stamp(6)
    stamp(1, 2)
    for kk in range(12):
        a.vmem(qa_load(kk).replace(" sc1", " " + P["qlf"]), ("qa", kk))
        if P["rr"] and (kk + 1) % P["rr"] == 0 and kk < 11:
            a("s_barrier")
    stamp(2, 2)
    if ("ck", 1) in a.vm:
        a.wait_vm(("ck", 1))
    ck_read(1)

    if P["prog"]:
        def q_chk(g):
            b = QA + 16 * g
            a(f"v_max3_u32 v11, v{b+3}, v{b+7}, v{b+11}")
            a(f"v_max_u32 v11, v11, v{b+15}")
            a("v_cmp_eq_u32 vcc, -1, v11")

        for g in range(3):
            a.wait_vm(("qa", 4 * g + 3), f" lgkmcnt({8-4*g})")
            if g == 0:
                stamp(3, 2)
            if g == 2 and not P["a_lvl"]:
                flag_load(1)
            q_chk(g)
            a(f"s_cbranch_vccnz L_A_skip{g}")
            alt = [f"L_A_skip{g}:", f"s_bitset1_b32 s82, {g}"]
            for kk in range(4 * g, 4 * g + 4):
                s_mfma(kk)
                if l2[0] < 12 and (kk + 1) * P["l2_in_s"] // 12 > kk * P["l2_in_s"] // 12:
                    d = cap(l2_dma)
                    alt += d
                    for l in d:
                        a(l)
            a(f"L_A_after{g}:")
            slow.append("\n".join(alt + [f"s_branch L_A_after{g}"]))
        for k in range(P["l2_after1"]):
            if l2[0] < 24:
                l2_dma()
        a("s_cmp_lg_u32 s82, 0")
        a("s_cbranch_scc1 L_A_x2_slow")
        a("L_A_x2_ok:")
        main = a.L
        a.L = []
        a("L_A_x2_slow:")
        a("s_mov_b32 s28, 0")
        a("L_A_x2_loop:")
        a("s_add_u32 s29, s29, 1")
        if P["local"]:
            a(f"s_cmp_lg_u32 s28, {P['q_looks']}")
            a("s_cbranch_scc1 L_A_x2_nore")
            a(XQRE)
            a("L_A_x2_nore:")
        for g in range(3):
            a(f"s_bitcmp0_b32 s82, {g}")
            a(f"s_cbranch_scc1 L_A_x2_l{g}")
            for kk in range(4 * g, 4 * g + 4):
                a(qa_load(kk))
            a(f"L_A_x2_l{g}:")
        a("s_add_u32 s28, s28, 1")
        a("s_waitcnt vmcnt(0)")
        for g in range(3):
            a(f"s_bitcmp0_b32 s82, {g}")
            a(f"s_cbranch_scc1 L_A_x2_m{g}")
            q_chk(g)
            a(f"s_cbranch_vccnz L_A_x2_m{g}")
            for kk in range(4 * g, 4 * g + 4):
                s_mfma(kk)
            a(f"s_bitset0_b32 s82, {g}")
            a(f"L_A_x2_m{g}:")
        a("s_cmp_eq_u32 s82, 0")
        a("s_cbranch_scc1 L_A_x2_ok")
        a(f"s_cmp_lt_u32 s28, {SPIN}")
        a("s_cbranch_scc1 L_A_x2_loop")
        a("s_branch L_A_x2_ok")
        slow.append("\n".join(a.L))
        a.L = main
    else:
        assert P["n2"] and P["n2_tgt"] == 24 and P["a_lvl"]
        for kk in range(12):
            a.wait_vm(("qa", kk), f" lgkmcnt({11-kk})")
            if kk == 0:
                stamp(3, 2)
            s_mfma(kk)
            if kk == 1:
                a(f"v_max_u32 v11, v{QA+3}, v{QA+7}")
            elif kk & 1:
                a(f"v_max3_u32 v11, v11, v{QA+4*kk-1}, v{QA+4*kk+3}")
            if l2[0] < 12 and (kk + 1) * P["l2_in_s"] // 12 > kk * P["l2_in_s"] // 12:
                l2_dma()
        a("v_cmp_eq_u32 vcc, -1, v11")
        a("s_cbranch_vccnz L_A_x2_slow")
        a("L_A_x2_ok:")
        main = a.L
        a.L = []
        a("L_A_x2_slow:")
        a("s_mov_b32 s28, 0")
        a("L_A_x2_loop:")
        a("s_add_u32 s29, s29, 1")
        for kk in range(12):
            a(qa_load(kk))
        a("v_mov_b32 v11, 0")
        a("s_add_u32 s28, s28, 1")
        a("s_waitcnt vmcnt(0)")
        for kk in range(1, 12, 2):
            a(f"v_max3_u32 v11, v11, v{QA+4*kk-1}, v{QA+4*kk+3}")
        a("v_cmp_eq_u32 vcc, -1, v11")
        a("s_cbranch_vccz L_A_x2_redo")
        a(f"s_cmp_lt_u32 s28, {SPIN}")
        a("s_cbranch_scc1 L_A_x2_loop")
        a("L_A_x2_redo:")
        for kk in range(12):
            s_mfma(kk)
        a("s_branch L_A_x2_ok")
        slow.append("\n".join(a.L))
        a.L = main
    stamp(7)
    stamp(4, 2)
    nw_ = 0
    for p in range(1, 4):
        for k in range(2):
            r = SA + 8 * p + 4 * k
            if not P.get("fake_red") or p == 3:
                a(f"ds_write_b128 v{27+p}, v[{r}:{r+3}] offset:{k*1024}")
        if nw_ < P["l2b_w"] and l2[0] < 24:
            l2_dma()
            nw_ += 1
    stamp(5, 2)
    if l2[0] == 24 and P["l2a_wait"] == 2:
        a.wait_vm(("l2", 1), " lgkmcnt(0)")
    elif l2[0] >= 12 and ("l2", 0) in a.vm and P["l2a_wait"]:
        a.wait_vm(("l2", 0), " lgkmcnt(0)")
    else:
        a("s_waitcnt lgkmcnt(0)")
    if l2[0] >= 12 and ("l2", 0) not in a.vm:
        tr_ok = 48
    if l2[0] == 24 and ("l2", 1) not in a.vm:
        tr_ok = P["tr_pre"]
    if not P["a_lvl"]:
        flag_check("A1", 1)
    stamp(6, 2)
    a("s_barrier")
    stamp(7, 2)
    for p in range(3):
        for k in range(2):
            r = QA + 8 * p + 4 * k
            if not P.get("fake_red") or p == 2:
                a(f"ds_read_b128 v[{r}:{r+3}], v31 offset:{p*2048+k*1024}")
    for k in range(P["l2b_r"]):
        if l2[0] < 24:
            l2_dma()

    def softmax():
        for p in range(2 if P.get("fake_red") else 0, 3):
            a(f"s_waitcnt lgkmcnt({4-2*p})")
            for k in range(0, 8, 2):
                a(f"v_pk_add_f32 v[{SA+k}:{SA+k+1}], v[{SA+k}:{SA+k+1}], v[{QA+8*p+k}:{QA+8*p+k+1}]")
        a(f"v_max3_f32 v4, v{SA}, v{SA+1}, v{SA+2}")
        a(f"v_max3_f32 v11, v{SA+3}, v{SA+4}, v{SA+5}")
        a(f"v_max3_f32 v4, v4, v{SA+6}, v{SA+7}")
        a("v_max_f32 v4, v4, v11")
        a("v_mov_b32 v11, v4")
        a("v_permlane32_swap_b32 v4, v11")
        a("v_max_f32 v4, v4, v11")
        a("v_ceil_f32 v4, v4")
        for e in range(8):
            a(f"v_sub_f32 v{SA+e}, v{SA+e}, v4")
        for e in range(8):
            a(f"v_exp_f32 v{SA+e}, v{SA+e}")
        a("v_min_u32 v4, -2, v4")
        for m in range(4):
            a(f"v_cvt_pk_bf16_f32 v{12+m}, v{SA+2*m}, v{SA+2*m+1}")
        a("v_and_b32 v15, 0x7fffffff, v15")

    sm = cap(softmax)
    nmid = P["l2b_mid"]
    step = len(sm) // (nmid + 1)
    for i, l in enumerate(sm):
        a(l)
        if (i + 1) % step == 0 and (i + 1) // step <= nmid and l2[0] < 24:
            l2_dma()
    def p_pub(fl):
        a.vmem(f"buffer_store_dwordx4 v[12:15], v10, s[16:19], s42 offen{fl}", "pub")
        a.vmem(f"buffer_store_dword v4, v32, s[16:19], s43 offen{fl}", "pub")

    stamp(8, 2)
    p_pub(LOC)
    if not P["local"]:
        a.wait_all()
    stamp(8)
    EARLY = P["m_at"] < 24 - l2[0]
    nd = 0
    ntr = (tr_ok - trn[0] + 24 - l2[0] - 1) // (24 - l2[0]) if EARLY else 4
    while l2[0] < 24:
        if nd == P["m_at"]:
            for p in range(2):
                a.vmem(f"buffer_load_dwordx4 v[{44+4*p}:{47+4*p}], v34, s[16:19], s20 offen offset:{p*512} sc1", "m")
        l2_dma()
        nd += 1
        for k in range(ntr):
            if trn[0] < tr_ok:
                tr_read()
    stamp(9)
    stamp(9, 2)
    MR = 44
    PR = 64
    PT = 128
    OC = 136

    def m_load(p):
        return f"buffer_load_dwordx4 v[{MR+4*p}:{MR+4*p+3}], v34, s[16:19], s20 offen offset:{p*512} sc1"

    def p_load(s):
        return f"buffer_load_dwordx4 v[{PR+4*s}:{PR+4*s+3}], v33, s[16:19], s{44+(s>>3)} offen offset:{(s&7)*512} sc1"

    def m_check():
        a(f"v_max3_u32 v11, v{MR}, v{MR+1}, v{MR+2}")
        a(f"v_max3_u32 v11, v11, v{MR+3}, v{MR+4}")
        a(f"v_max3_u32 v11, v11, v{MR+5}, v{MR+6}")
        a(f"v_max_u32 v11, v11, v{MR+7}")

    def m_max():
        a(f"v_max3_f32 v60, v{MR}, v{MR+1}, v{MR+2}")
        a(f"v_max3_f32 v61, v{MR+3}, v{MR+4}, v{MR+5}")
        a(f"v_max3_f32 v60, v60, v{MR+6}, v{MR+7}")
        a("v_max_f32 v60, v60, v61")
        for sw in ("32", "16"):
            a("v_mov_b32 v61, v60")
            a(f"v_permlane{sw}_swap_b32 v60, v61")
            a("v_max_f32 v60, v60, v61")

    def delta(p):
        a(f"v_sub_f32 v{MR+8+p}, v60, v{MR+p}")
        a(f"v_cvt_pk_u8_f32 v{MR+8+p}, v{MR+8+p}, 0, 0")
        a(f"v_mul_u32_u24 v{MR+8+p}, 0x800080, v{MR+8+p}")

    def pv_adj(s):
        for d in (3, 0, 1, 2):
            a(f"v_pk_sub_u16 v{PR+4*s+d}, v{PR+4*s+d}, v{MR+8+(s>>1)} clamp")

    def pv_mfma(s, T):
        t = PR + 4 * s
        c = "0" if s == 0 else f"v[{OC+4*T}:{OC+4*T+3}]"
        q = (s * 3 + T) * 4
        A = f"a[{q}:{q+3}]" if T < 3 else "v[40:43]"
        a(f"v_mfma_f32_16x16x32_bf16 v[{OC+4*T}:{OC+4*T+3}], {A}, v[{t}:{t+3}], {c}")

    if not EARLY:
        for p in range(2):
            a.vmem(m_load(p), "m")
    while trn[0] < tr_ok:
        tr_read()
    stamp(10, 2)
    a("s_mov_b32 s28, 0")
    if EARLY:
        a.wait_vm("m")
    a("s_branch L_A_m_chk1" if EARLY else "s_branch L_A_m_chk")
    a("L_A_m_loop:")
    a("s_add_u32 s29, s29, 0x10")
    for p in range(2):
        a(m_load(p))
    a("s_add_u32 s28, s28, 1")
    a(f"s_cmp_ge_u32 s28, {P['a_looks']}")
    a("s_cbranch_scc1 L_A_m_long")
    a("L_A_m_chk:")
    a.wait_all()
    a("L_A_m_chk1:")
    m_check()
    a("v_cmp_eq_u32 vcc, -1, v11")
    a("s_cbranch_vccnz L_A_m_loop")
    a("L_A_m_ok:")
    stamp(11, 2)
    slow.append("\n".join(["L_A_m_long:", f"s_cmp_lg_u32 s28, {P['a_looks']}", "s_cbranch_scc1 L_A_m_nore"] + cap(p_pub, " sc1") +
                ["L_A_m_nore:", f"s_cmp_lt_u32 s28, {SPIN}", "s_cbranch_scc1 L_A_m_chk", "s_waitcnt vmcnt(0)", "s_branch L_A_m_ok"]))
    a.vm = []
    pl = [0]

    def p_issue():
        if pl[0] < 16:
            a.vmem(p_load(pl[0]).replace(" sc1", " " + P["plf"]), ("p", pl[0]))
            pl[0] += 1
            return True
        return False

    p_issue()
    if not EARLY:
        a("s_barrier")
    stamp(10)
    stamp(12, 2)
    pre = cap(m_max)
    for k in range(3):
        for p in range(8):
            pre.append(cap(delta, p)[k])
    tr_in = P["tr_in"] if tr_ok else 6
    tr_before = trn[0]
    pre = mix(pre, [cap(tr_read)[0] for k in range(min(96 - trn[0], P["tr_pro"] if tr_ok else 18))])
    per = (len(pre) + P["p_ahead"] - 2) // (P["p_ahead"] - 1)
    while pl[0] < P["p_ahead"]:
        p_issue()
        for k in range(per):
            if pre:
                a(pre.pop(0))
    assert not pre
    a.wait_vm(("p", 0), f" lgkmcnt({min(15, trn[0] - max(tr_before, 6))})")
    if EARLY:
        assert tr_ok == 48 and trn[0] == 48
        a("s_barrier")
    stamp(13, 2)
    tr0 = max(tr_before, 6)
    pv_adj(0)
    p_issue()
    a.wait_vm(("p", 1))
    chk = [(2, f"v_or3_b32 v11, v{PR+3}, v{PR+7}, v{PR+11}")]
    chk += [(k + 1, f"v_or3_b32 v11, v11, v{PR+4*k+3}, v{PR+4*k+7}") for k in range(3, 15, 2)]
    chk += [(15, f"v_or_b32 v11, v11, v{PR+63}")]
    noted = False
    for s in range(16):
        adj = cap(pv_adj, s + 1) if s < 15 else [c[1] for c in chk]
        pv_mfma(s, 0)
        for l in adj[:2]:
            a(l)
        pv_mfma(s, 1)
        for l in adj[2:4]:
            a(l)
        pv_mfma(s, 2)
        for l in adj[4:]:
            a(l)
        if not p_issue():
            if s >= P["n3_step"] and not noted:
                notice(162, 81)
                noted = True
            elif s < 15 and chk and chk[0][0] <= s + 1:
                a(chk.pop(0)[1])
        for k in range(tr_in):
            if trn[0] < 96:
                tr_read()
        if s < 15:
            assert trn[0] >= 6 * (s + 2)
            lg = f" lgkmcnt({min(15, trn[0]-6*(s+2))})" if 6 * (s + 2) > tr0 else ""
            if s < 14:
                a.wait_vm(("p", s + 2), lg)
            else:
                a("s_waitcnt" + lg)
    assert trn[0] == 96
    a("v_cmp_gt_i32 vcc, 0, v11")
    a("s_cbranch_vccnz L_A_p_slow")
    a("L_A_p_ok:")
    main = a.L
    a.L = []
    a("L_A_p_slow:")
    vmk = list(a.vm)
    p_pub(" sc1")
    a.vm = vmk
    a("s_mov_b32 s28, 0")
    a("L_A_p_loop:")
    a("s_add_u32 s29, s29, 0x100")
    for p in range(2):
        a(m_load(p))
    for s in range(16):
        a(p_load(s))
    a("s_add_u32 s28, s28, 1")
    a("s_waitcnt vmcnt(0)")
    m_check()
    for s in range(1, 16, 2):
        a(f"v_max3_u32 v11, v11, v{PR+4*s-1}, v{PR+4*s+3}")
    a("v_cmp_eq_u32 vcc, -1, v11")
    a("s_cbranch_vccz L_A_p_redo")
    a(f"s_cmp_lt_u32 s28, {SPIN}")
    a("s_cbranch_scc1 L_A_p_loop")
    a("L_A_p_redo:")
    m_max()
    for s in range(16):
        if not s & 1:
            delta(s // 2)
        pv_adj(s)
        for T in range(3):
            pv_mfma(s, T)
    a("s_branch L_A_p_ok")
    slow.append("\n".join(a.L))
    a.L = main
    stamp(11)
    stamp(14, 2)
    epi = []
    for k in range(6):
        epi.append(f"v_cvt_pk_bf16_f32 v{OC+k}, v{OC+2*k}, v{OC+2*k+1}")
        if k & 1:
            epi.append(f"v_min_u32 v{OC+k}, -2, v{OC+k}")
        epi.append(f"ds_permute_b32 v{44+k}, v36, v{OC+k}")
    epi += [None, None, None, None, "s_waitcnt lgkmcnt(2)", "buffer_store_dwordx4 v[44:47], v37, s[16:19], s21 offen sc1",
            "s_waitcnt lgkmcnt(0)", "buffer_store_dwordx2 v[48:49], v38, s[16:19], s22 offen sc1"]
    for s in range(16):
        pv_mfma(s, 3)
        if s >= 2:
            for k in range(2):
                if epi:
                    l = epi.pop(0)
                    if l:
                        a(l)
    assert not epi
    if not noted:
        notice(162, 81)
    a(f"v_min_u32 v61, -2, v{OC+12}")
    a("buffer_store_dwordx2 v[60:61], v39, s[16:19], s35 offen sc1")
    if P["n_pf"]:
        if P["pf_bar"]:
            a("s_barrier")
        a("buffer_load_dword v209, v208, s[96:99], s100 offen")
    stamp(12)
    if RE:
        same_load()
        a("s_waitcnt lgkmcnt(0)")
        unless_same("L_A_nore")
        a.wait_all()
        p_pub(" sc1")
        a("L_A_nore:")
    a("s_cmp_lg_u32 s3, 0")
    a("s_cbranch_scc1 L_A_end")
    a("s_cmp_ge_u32 s25, 5")
    a("s_cbranch_scc1 L_A_end")
    a("s_mul_i32 s35, s24, 5")
    a("s_add_u32 s35, s35, s25")
    a("v_and_b32 v5, 3, v1")
    a("v_lshlrev_b32 v3, 1, v19")
    a("v_lshl_add_u32 v48, v5, 3, v3")
    a("s_lshl_b32 s40, s35, 5")
    a("buffer_load_ushort v49, v48, s[4:7], s40 offen")
    a("buffer_load_ushort v50, v48, s[8:11], s40 offen")
    if P["out_pt"]:
        a("buffer_load_ushort v58, v48, s[84:87], s40 offen")
    a(f"v_and_b32 v3, {60 if P['out_pk'] else 12}, v1")
    a("v_lshl_or_b32 v57, v3, 20, v48")
    a("v_lshrrev_b32 v3, 2, v1")
    a("v_mul_u32_u24 v56, 2560, v3")
    a("v_lshl_add_u32 v56, v5, 4, v56")
    a("s_lshl_b32 s27, s35, 7" if P["n5_priv"] else "s_lshl_b32 s27, s24, 10")
    a(f"s_add_u32 s27, s27, {XN5}")
    cnt_base(27)

    ZS = (41, 42, 43, 44, 45, 46, 47, 39)

    def z_offs(base, n):
        a("s_lshl_b32 s41, s35, 6")
        a(f"s_add_u32 s41, s41, {base}")
        for k in range(1, n):
            a(f"s_add_u32 s{ZS[k]}, s41, {40960*k}")

    def z_gather(name, n, cnt):
        a(f"L_Z_{name}:")
        a(f"s_add_u32 s29, s29, {cnt}")
        for k in range(n):
            a(f"buffer_load_dwordx4 v[{64+4*k}:{67+4*k}], v56, s[16:19], s{ZS[k]} offen sc1")
        a("s_add_u32 s28, s28, 1")
        a(f"s_waitcnt vmcnt({n-2})")
        a("v_max_u32 v3, v67, v71")
        for kk in (0, 2):
            a(f"v_pk_add_f32 v[{60+kk}:{61+kk}], v[{64+kk}:{65+kk}], v[{68+kk}:{69+kk}]")
        for k in range(2, n):
            a(f"s_waitcnt vmcnt({n-1-k})")
            a(f"v_max_u32 v3, v3, v{67+4*k}")
            for kk in (0, 2):
                a(f"v_pk_add_f32 v[{60+kk}:{61+kk}], v[{60+kk}:{61+kk}], v[{64+4*k+kk}:{65+4*k+kk}]")
        a("v_cmp_eq_u32 vcc, -1, v3")
        a(f"s_cbranch_vccnz L_Z_{name}_r")
        a(f"L_Z_{name}_ok:")
        slow.append(f"""L_Z_{name}_r:
            s_cmp_lt_u32 s28, {SPIN}
            s_cbranch_scc1 L_Z_{name}
            s_branch L_Z_{name}_ok""")
        a("v_permlane32_swap_b32 v60, v62")
        a("v_permlane32_swap_b32 v61, v63")
        a("v_add_f32 v60, v60, v62")
        a("v_add_f32 v61, v61, v63")
        a("v_permlane16_swap_b32 v60, v61")
        a("v_add_f32 v60, v60, v61")
        a("v_add_f32 v60, v60, v60 row_ror:8 row_mask:0xf bank_mask:0xf")
        a("v_add_f32 v60, v60, v60 row_ror:4 row_mask:0xf bank_mask:0xf")
        rbf(60)

    z_offs(XY, 2)
    a("s_mov_b32 s28, 0")
    z_gather("y", 2, 0x100000)
    only_if(4, 35, 1, 1)
    a("v_mov_b32 v5, s26")
    a(f"buffer_store_dword v5, v4, s[16:19], 0 offen offset:{EPOCH} sc1")
    z_offs(XS, 8)
    a("v_lshlrev_b32 v50, 16, v50")
    a("v_add_f32 v50, v50, v60")
    rbf(50)
    a(f"v_mul_f32 v3, {f32(-math.log2(math.e))}, v50")
    a("v_exp_f32 v3, v3")
    a("v_add_f32 v3, 1.0, v3")
    a("v_rcp_f32 v3, v3")
    a("v_mul_f32 v50, v50, v3")
    rbf(50)
    a("v_lshlrev_b32 v49, 16, v49")
    stamp(13)
    if P["n5_pos"] >= 0:
        if P["n5_priv"]:
            if P["rep5"] > 1:
                poll_multi("Z_n5", P["rep5"], None, 8 * P["n5_priv"] - 1, P["pipe5"])
            else:
                poll_cnt("Z_n5", ["0"], 8 * P["n5_priv"] - 1, 0)
        else:
            poll_cnt("Z_n5", [str(128 * k) for k in range(8)], 15, 0)
    stamp(14)
    z_gather("s", 8, 0x1000000)
    a("v_mul_f32 v60, v60, v50")
    rbf(60)
    if P["out_pk"]:
        a("v_add_f32 v61, v60, v49")
        a("v_add_f32 v60, v60, v49")
        a("v_permlane16_swap_b32 v60, v61")
        a("v_cvt_pk_bf16_f32 v62, v60, v61")
        a("v_cvt_pk_bf16_f32 v63, v60, v61")
        a("v_permlane32_swap_b32 v62, v63")
        a(f"buffer_store_dwordx2 v[62:63], v57, s[84:87], s40 offen {P['outf']}")
    else:
        a("v_add_f32 v60, v60, v49")
        a("v_cvt_pk_bf16_f32 v60, v60, v60")
        a(f"buffer_store_short v60, v57, s[84:87], s40 offen {P['outf']}")
    a("L_A_end:")
    dump_stamps()
    a("s_endpgm")

    a(".p2align 8")
    a("L_F:")
    role[0] = "F"
    a.vm = []
    common_ids()
    srd(4, 1280)
    a("s_sub_u32 s25, s25, 16")
    a("s_lshl_b32 s89, s24, 2")
    a("s_add_u32 s89, s89, s25")
    a("s_sub_u32 s89, s89, 12")
    a("v_lshrrev_b32 v2, 3, v1")
    a("v_and_b32 v5, 7, v1")
    a("v_lshlrev_b32 v7, 1, v2")
    a("s_and_b32 s46, s25, 3")
    a("s_lshl_b32 s46, s46, 2")
    a("s_add_u32 s46, s46, s3")
    a("s_mul_i32 s35, s46, 80")
    a("s_mul_i32 s42, s89, 3072")
    a(f"s_add_u32 s42, s42, {XQA if not P.get('no_c0') else 0x20000000}")
    a("v_lshlrev_b32 v14, 4, v0")
    a("v_and_b32 v16, 0x7ff, v14")
    for k in range(4):
        a(f"v_mov_b32 v{60+k}, -1")
    a("s_mul_i32 s36, s89, 18432")
    a(f"s_add_u32 s36, s36, {XP}")
    a(f"s_mul_i32 s38, s89, {CLR_PER}")
    a(f"s_add_u32 s38, s38, {CLR0}")
    a(f"s_add_u32 s39, s38, {CLR_PER}")
    a("s_waitcnt lgkmcnt(0)")
    load_epoch()
    a("v_min_u32 v17, 3056, v14")
    a.vmem("buffer_store_dwordx4 v[60:63], v17, s[16:19], s42 offen sc1", "c0")
    x_stats_loads(8)
    x_rows(88, 35, 5)
    a("s_load_dwordx2 s[12:13], s[0:1], 56")
    a("s_load_dwordx2 s[8:9], s[0:1], 72")
    a("s_load_dwordx2 s[96:97], s[0:1], 64")
    a("s_load_dwordx2 s[20:21], s[0:1], 40")


    def pm_clear():
        a("s_mov_b32 s27, s36" if not P.get("no_pm") else "s_mov_b32 s27, 0x20000000")
        for k in range(5):
            a.vmem(f"buffer_store_dwordx4 v[60:63], v{14 if k < 4 else 16}, s[16:19], s27 offen {P['pmf']}", "clr")
            a("s_add_u32 s27, s27, 4096")

    if P["c0_alone"] == 0:
        pm_clear()
    sel_masks(152, 3)
    a.wait_vm("c0", " lgkmcnt(0)")
    a("s_barrier")
    flag_add("F0", 0)
    stamp(3)
    if P["c0_alone"]:
        pm_clear()
    if P.get("no_clr"):
        a("v_mov_b32 v14, 0x20000000")
    a("L_F_clr:")
    a(f"buffer_store_dwordx4 v[60:63], v14, s[16:19], s38 offen {P['clf']}")
    a("s_add_u32 s38, s38, 4096")
    if P["dClr"] < 63:
        a(f"s_waitcnt vmcnt({P['dClr']})")
    a("s_cmp_lt_u32 s38, s39")
    a("s_cbranch_scc1 L_F_clr")
    a.vm += ["clr"] * (CLR_PER // 4096)
    make_tag()
    srd(12, 0 if P.get("no_f") else 1966080)
    srd(20, 0 if P.get("no_f") else 7864320)
    a.wait_vm("x")
    ln_stats(8, 24)
    sel_ops(88, 24, 5)
    red_addrs()
    a("v_mul_u32_u24 v6, 3072, v2")
    a("v_lshl_add_u32 v6, v5, 4, v6")
    a(f"s_mul_i32 s44, s46, {40*3072}")
    a("s_mul_i32 s27, s24, 384")
    a("s_add_u32 s44, s44, s27")
    a(f"s_movk_i32 s45, {8*3072}")
    fn = [0]

    def f_next():
        n = fn[0]
        if n < 15:
            rows_load(n, 5, 64, 6, 12, "w1")
        elif n < 30:
            q = 128 + 4 * (n - 15)
            a.vmem(f"buffer_load_dwordx4 a[{q}:{q+3}], v159, s[8:11], s{38+(n-15)//5} offen offset:{((n-15)%5)*256} {NT}", "w2")
        else:
            wo_load(n - 30)
        fn[0] += 1

    a("v_and_b32 v18, 15, v1")
    a("v_lshrrev_b32 v19, 4, v1")
    tail_setup(25, 18, 19, 3)
    a("v_mov_b32 v163, 0x20000000")
    srd(8, 0 if P.get("no_f") else 1966080)
    srd(96, 3072)
    a("s_mul_i32 s27, s24, 48")
    a("s_add_u32 s27, s27, s46")
    a("s_mul_i32 s38, s27, 5120")
    a(f"s_add_u32 s39, s38, {64*1280}")
    a(f"s_add_u32 s40, s38, {128*1280}")
    a("s_lshl_b32 s47, s27, 3")
    a("s_lshl_b32 s41, s89, 10")
    a(f"s_add_u32 s41, s41, {XH}")
    a("s_mul_i32 s43, s89, 2560")
    a(f"s_add_u32 s43, s43, {XY}")
    a("s_lshl_b32 s42, s24, 12")
    a("s_lshl_b32 s27, s46, 6")
    a("s_add_u32 s42, s42, s27")
    a(f"s_add_u32 s42, s42, {XH}")
    a("v_and_b32 v3, 3, v1")
    a("v_lshlrev_b32 v3, 10, v3")
    a("v_lshl_add_u32 v59, v19, 4, v3")
    phase5_addrs(11, 0, 3)
    a.wait_all()
    a("s_barrier")
    flag_add("F1", 128)
    stamp(1)
    a("v_min_u32 v14, 143, v0")
    a("v_lshlrev_b32 v14, 7, v14")
    a.vmem("buffer_load_dword v15, v14, s[16:19], s36 offen sc1", "pt")
    a("v_min_u32 v14, 95, v0")
    a("v_lshlrev_b32 v14, 7, v14")
    a("s_mul_i32 s27, s89, 12288")
    a(f"s_add_u32 s27, s27, {XC}")
    a.vmem("buffer_load_dword v15, v14, s[16:19], s27 offen sc1", "pt")
    a("v_lshlrev_b32 v3, 1, v19")
    for t in range(3):
        a.vmem(f"buffer_load_ushort v{56+t}, v3, s[96:99], s47 offen offset:{128*t}", "b1")
    while fn[0] < 15:
        throttle(P["dF"] if fn[0] >= P["nF0"] else 0)
        f_next()
        if fn[0] == 11:
            flag_load(0)
    a("s_waitcnt lgkmcnt(0)")
    flag_check("F", 0)
    same_add("F")
    rows_finish("F_h", 5, 24, 64, "w1", f_next, P["dF"] + 1, P["dF"], 140, 41, " sc1")
    stamp(5)
    while fn[0] < 30:
        throttle(P["dF2"])
        f_next()
    XHL = "buffer_load_dwordx4 v[60:63], v59, s[16:19], s42 offen sc1"
    a.vmem(XHL, "xh")
    flag_load(1)
    while "xh" in a.vm and fn[0] < 45:
        throttle(P["dF2"])
        if "xh" in a.vm:
            f_next()
    if "xh" in a.vm:
        a.wait_vm("xh")
    stamp(6)
    a("s_waitcnt lgkmcnt(0)")
    flag_check("F1", 1)
    a("v_cmp_ne_u32 vcc, s26, v63")
    a("s_cbranch_vccnz L_F_xh_slow")
    a("L_F_xh_ok:")
    slow.append(f"""L_F_xh_slow:
        s_mov_b32 s28, 0
        L_F_xh_loop:
        s_add_u32 s29, s29, 1
        {XHL}
        s_add_u32 s28, s28, 1
        s_waitcnt vmcnt(0)
        v_cmp_ne_u32 vcc, s26, v63
        s_cbranch_vccz L_F_xh_ok
        s_cmp_lt_u32 s28, {SPIN}
        s_cbranch_scc1 L_F_xh_loop
        s_branch L_F_xh_ok""")

    def gelu_part():
        for m in ("quad_perm:[1,0,3,2]", "quad_perm:[2,3,0,1]"):
            for k in range(3):
                a(f"v_add_f32 v{60+k}, v{60+k}, v{60+k} {m} row_mask:0xf bank_mask:0xf")
        for k in range(3):
            v = 60 + k
            rbf(v)
            a(f"v_lshlrev_b32 v3, 16, v{56+k}")
            a(f"v_add_f32 v{v}, v{v}, v3")
            rbf(v)
            a(f"v_mul_f32 v3, v{v}, v{v}")
            a(f"v_mul_f32 v3, {f32(0.044715)}, v3")
            a("v_add_f32 v3, 1.0, v3")
            a(f"v_mul_f32 v3, v3, v{v}")
            a(f"v_mul_f32 v3, {f32(-2*math.sqrt(2/math.pi)*math.log2(math.e))}, v3")
            a("v_exp_f32 v3, v3")
            a("v_add_f32 v3, 1.0, v3")
            a("v_rcp_f32 v3, v3")
            a(f"v_mul_f32 v{v}, v{v}, v3")

    gl = cap(gelu_part)
    for i, l in enumerate(gl):
        a(l)
        if i % 16 == 15 and fn[0] < 45:
            f_next()

    def f_hook(pos):
        if fn[0] < 45 and pos <= (4 if P["p5w"] < 2 else 1):
            f_next()

    phase5(60, 152, 128, 72, 11, 43, ng=3, hook=f_hook)
    stamp(7)
    while fn[0] < 45:
        throttle(P["dF2"])
        f_next()
    if P["f_gate"]:
        a("s_lshl_b32 s27, s24, 3")
        a("s_add_u32 s27, s27, s25")
        a("s_lshl_b32 s27, s27, 7")
        a(f"s_add_u32 s27, s27, {XN3 + 8192 - 12*128}")
        cnt_base(27)
        a("s_cmp_lg_u32 s3, 0")
        a("s_cbranch_scc1 L_F_n3_out")
        poll_cnt("F_n3", ["0"], 15, 0)
        a("s_barrier")
    a("s_mov_b32 s80, 31")
    a("s_branch L_T")
    for blk in slow:
        a(blk)
    a("L_codeend:")

    if not P["stamps"]:
        a.L = [l for l in a.L if not l.startswith(("s_add_u32 s29,", "s_mov_b32 s29,"))]
    body = fix_hazards(a.L)
    if P['al8']:
        body = align8(body)
    hdr = open("recurrent_scan__compressed_kv_cla__dense_activation_gelu__decode.s.ref").read().split("; Override launch")[0] if P.get("hdr", 1) else ""
    out = hdr
    out += f"; @launch grid=(256,1,1) block=(256,1,1) lds={LDS_SIZE}\n"
    if P.get("hdr", 1):
        out += DOC
    out += f""".amdgcn_target "amdgcn-amd-amdhsa--gfx950"
.text
.globl {KN}
.p2align 8
.type {KN},@function
{KN}:
"""
    out += "\n".join(("" if l.endswith(":") or l.startswith(".") else "    ") + l for l in body)
    out += f"""
s_endpgm
.section .rodata,"a"
.p2align 6
.amdhsa_kernel {KN}
  .amdhsa_next_free_vgpr 512
  .amdhsa_next_free_sgpr 102
  .amdhsa_accum_offset 256
  .amdhsa_group_segment_fixed_size 0
  .amdhsa_kernarg_size 112
  .amdhsa_user_sgpr_count 2
  .amdhsa_user_sgpr_kernarg_segment_ptr 1
  .amdhsa_system_sgpr_workgroup_id_x 1
  .amdhsa_float_denorm_mode_32 3
.end_amdhsa_kernel
"""
    return out


def parse(spec):
    kw = {}
    for p in spec.split(","):
        if "=" in p:
            k, v = p.split("=")
            kw[k] = int(v) if v.lstrip("-").isdigit() else v.replace("+", " ").replace("_", "")
    return kw


if __name__ == "__main__":
    out = sys.argv[1]
    kw = parse(sys.argv[2]) if len(sys.argv) > 2 else {}
    open(out, "w").write(gen(**kw))
```
